```python
import torch

def _softmax(x, axis=-1):
    return torch.softmax(x, dim=axis)
def _gelu(x):
    return torch.nn.functional.gelu(x, approximate="tanh")
def _silu(x):
    return torch.nn.functional.silu(x)
def _sigmoid(x):
    return torch.sigmoid(x)
def _layernorm(x, axis=-1, eps=1e-5):
    m = x.mean(dim=axis, keepdim=True)
    v = x.var(dim=axis, keepdim=True, unbiased=False)
    return (x - m) / torch.sqrt(v + eps)
def _scatter_add(tgt, idx, src, axis=0):
    return tgt.clone().index_add_(axis, idx, src)
def _segment_sum(src, seg, n):
    out = torch.zeros((n,) + src.shape[1:], dtype=src.dtype)
    return out.index_add_(0, seg, src)
def _pad(x, pw):
    flat = tuple(v for pair in reversed(pw) for v in pair)
    return torch.nn.functional.pad(x, flat)

kernel_name = 'interleave_layers__grouped_kv_mqa__sliding_block__prompt'

def setup_inputs():

    _w = (lambda a: (lambda t: t.to(torch.bfloat16) if t.is_floating_point() else t)(torch.as_tensor(a)))
    def _A_setup():
        B, S, D, H = 1, 2048, 576, 32
        Dh = D // H
        return {
            "x": _w((lambda *s: torch.randn(*s, dtype=torch.bfloat16) * 0.05)(B, S, D)),
            "wq": _w((lambda *s: torch.randn(*s, dtype=torch.bfloat16) * 0.05)(D, H * Dh)),
            "wk": _w((lambda *s: torch.randn(*s, dtype=torch.bfloat16) * 0.05)(D, Dh)),
            "wv": _w((lambda *s: torch.randn(*s, dtype=torch.bfloat16) * 0.05)(D, Dh)),
            "wo": _w((lambda *s: torch.randn(*s, dtype=torch.bfloat16) * 0.05)(H * Dh, D)),
        }
    _A_in = _A_setup()

    def _B_setup():
        B, S, D = 1, 2048, 576
        return {
            "x": _w((lambda *s: torch.randn(*s, dtype=torch.bfloat16) * 0.05)(B, S, D)),
            "wqkv": _w((lambda *s: torch.randn(*s, dtype=torch.bfloat16) * 0.05)(D, 3 * D)),
            "wo": _w((lambda *s: torch.randn(*s, dtype=torch.bfloat16) * 0.05)(D, D)),
        }
    _B_in = _B_setup()

    return {
        "A_x": _A_in["x"],
        "A_wq": _A_in["wq"],
        "A_wk": _A_in["wk"],
        "A_wv": _A_in["wv"],
        "A_wo": _A_in["wo"],
        "B_x": _B_in["x"],
        "B_wqkv": _B_in["wqkv"],
        "B_wo": _B_in["wo"],
    }

def reference(A_x, A_wq, A_wk, A_wv, A_wo, B_x, B_wqkv, B_wo):
    def _A_ref(x, wq, wk, wv, wo):
        B, S, D = x.shape
        H = 32
        Dh = D // H
        q = (lambda x, *d: x.permute(*d))((x @ wq).reshape(B, S, H, Dh), 0, 2, 1, 3)
        k = x @ wk
        v = x @ wv
        scores = torch.einsum("bhqd,bkd->bhqk", q, k) * (Dh ** -0.5)
        p = _softmax(scores, axis=-1)
        o = torch.einsum("bhqk,bkd->bhqd", p, v)
        return (lambda x, *d: x.permute(*d))(o, 0, 2, 1, 3).reshape(B, S, H * Dh) @ wo

    def _B_ref(x, wqkv, wo):
        B, S, D = x.shape
        H = 32; Dh = D // H; W = 256
        qkv = (lambda x, *d: x.permute(*d))((x @ wqkv).reshape(B, S, 3, H, Dh), 2, 0, 3, 1, 4)
        q, k, v = qkv[0], qkv[1], qkv[2]
        scores = torch.einsum("bhqd,bhkd->bhqk", q, k) * (Dh ** -0.5)
        idx = torch.arange(S)
        mask = (idx[:, None] - idx[None, :] >= 0) & (idx[:, None] - idx[None, :] < W)
        scores = torch.where(mask[None, None], scores, -1e9)
        p = _softmax(scores, axis=-1)
        o = torch.einsum("bhqk,bhkd->bhqd", p, v)
        return (lambda x, *d: x.permute(*d))(o, 0, 2, 1, 3).reshape(B, S, D) @ wo

    x = A_x
    x = x + _A_ref(_layernorm(x, axis=-1), A_wq, A_wk, A_wv, A_wo)
    x = x + _B_ref(_layernorm(x, axis=-1), B_wqkv, B_wo)
    x = x + _A_ref(_layernorm(x, axis=-1), A_wq, A_wk, A_wv, A_wo)
    x = x + _B_ref(_layernorm(x, axis=-1), B_wqkv, B_wo)
    return x
```

```python
import math, struct, sys

NAME = "interleave_layers__grouped_kv_mqa__sliding_block__prompt"

def f2u(x):
    return struct.unpack("<I", struct.pack("<f", x))[0]

FR = 1024
XT = 36 * FR
WCT = 37 * FR
KVT = 2304
QT = 1152
WA_OFF = 0x0000000
WB_OFF = 0x0100000
WOA_OFF = 0x0300000
WOB_OFF = 0x0400000
XSZ = 64 * XT
XF_OFF = [0x0500000 + i * XSZ for i in range(4)]
ST_OFF = [0x0E00000 + i * 0x48000 for i in range(4)]
Q_OFF = [0x1000000 + i * XSZ for i in range(4)]
O_OFF = [0x1A00000 + i * XSZ for i in range(4)]
KV_OFF = [0x2400000 + i * 0x480000 for i in range(4)]
WS_SIZE = 0x10000000
OOB = 0x40000000
QSCALE = (18 ** -0.5) * math.log2(math.e)
NEGBIG = f2u(-1e30)

class A:
    def __init__(self):
        self.l = []
        self.n = 0
    def __call__(self, s):
        self.l.append("    " + s)
    def lab(self, s):
        self.l.append(s + ":")
    def newlab(self, p="L"):
        self.n += 1
        return f"{p}_{self.n}"
    def c(self, s):
        self.l.append("    ; " + s)
    def text(self):
        return "\n".join(self.l) + "\n"

def vr(a, n):
    return f"v[{a}:{a+n-1}]" if n > 1 else f"v{a}"

sWAVE = "s3"
WS = "s[4:7]"
AUX = "s[8:11]"
pX, pST, pW, pQ, pKV, pO, pXR, pXO, pSO, pFIN = ["s%d" % i for i in range(12, 22)]
vL16, vT, vH = 1, 2, 3

def common_prologue(a, nwg):
    a(f"s_cmp_ge_u32 s2, {nwg}")
    a("s_cbranch_scc1 L_end")
    a("s_load_dwordx2 s[4:5], s[0:1], 80")
    a("s_load_dwordx2 s[8:9], s[0:1], 64")
    a("v_lshrrev_b32 v4, 6, v0")
    a("v_and_b32 v5, 63, v0")
    a("v_readfirstlane_b32 s3, v4")
    a(f"v_lshlrev_b32 v{vL16}, 4, v5")
    a(f"v_and_b32 v{vT}, 31, v5")
    a(f"v_lshrrev_b32 v{vH}, 5, v5")
    a(f"s_mov_b32 s6, {WS_SIZE:#x}")
    a("s_mov_b32 s7, 0x20000")
    a(f"s_mov_b32 s10, {2048*1152}")
    a("s_mov_b32 s11, 0x20000")
    a("s_waitcnt lgkmcnt(0)")

def store_x_and_stats(a, P, sT, sC, tmp, sXO, sSO, st1, st2):
    a(f"s_mul_i32 {st1}, {sT}, {XT}")
    a(f"s_lshl_b32 {st2}, {sC}, 11")
    a(f"s_add_u32 {st1}, {st1}, {st2}")
    a(f"s_add_u32 {st1}, {st1}, {sXO}")
    a(f"buffer_store_dwordx4 {vr(P,4)}, v{vL16}, {WS}, {st1} offen")
    a(f"buffer_store_dwordx4 {vr(P+4,4)}, v{vL16}, {WS}, {st1} offen offset:1024")
    a(f"s_mov_b32 {st2}, 0x3f803f80")
    a(f"v_mov_b32 v{tmp}, 0")
    a(f"v_mov_b32 v{tmp+1}, 0")
    for i in range(8):
        a(f"v_dot2_f32_bf16 v{tmp}, v{P+i}, {st2}, v{tmp}")
        a(f"v_dot2_f32_bf16 v{tmp+1}, v{P+i}, v{P+i}, v{tmp+1}")
    a(f"v_mul_u32_u24 v{tmp+2}, 144, v{vT}")
    a(f"v_lshl_add_u32 v{tmp+2}, v{vH}, 2, v{tmp+2}")
    a(f"s_mul_i32 {st1}, {sT}, {32*144}")
    a(f"s_lshl_b32 {st2}, {sC}, 3")
    a(f"s_add_u32 {st1}, {st1}, {st2}")
    a(f"s_add_u32 {st1}, {st1}, {sSO}")
    a(f"v_permlane32_swap_b32 v{tmp}, v{tmp+1}")
    a("s_nop 1")
    a(f"v_add_f32 v{tmp}, v{tmp}, v{tmp+1}")
    a(f"buffer_store_dword v{tmp}, v{tmp+2}, {WS}, {st1} offen")

def gen_prep(a):
    a.lab("B_prep")
    common_prologue(a, 174)
    a("s_load_dwordx16 s[32:47], s[0:1], 0")
    a("s_waitcnt lgkmcnt(0)")
    a("s_cmp_ge_u32 s2, 110")
    a("s_cbranch_scc1 L_prep_x")
    a("s_mov_b32 s27, 32")
    a("s_mov_b32 s29, 0")
    a("s_mov_b32 s31, 0")
    a("s_cmp_ge_u32 s2, 74")
    a("s_cbranch_scc1 L_pw_o")
    a("s_cmp_ge_u32 s2, 20")
    a("s_cbranch_scc1 L_pw_b")
    a(f"s_mul_i32 s28, s2, {WCT}")
    a(f"s_add_u32 s28, s28, {WA_OFF}")
    a("s_mov_b32 s30, s2")
    a("s_cmp_ge_u32 s2, 18")
    a("s_cbranch_scc1 L_pw_akv")
    a("s_mov_b32 s8, s34")
    a("s_mov_b32 s9, s35")
    a(f"s_mov_b32 s10, {576*1152}")
    a("s_mov_b32 s22, 1152")
    a("s_branch L_pw_qk")
    a.lab("L_pw_akv")
    a("s_cmp_eq_u32 s2, 18")
    a("s_cselect_b32 s8, s36, s38")
    a("s_cselect_b32 s9, s37, s39")
    a(f"s_mov_b32 s10, {576*36}")
    a("s_mov_b32 s22, 36")
    a("s_mov_b32 s27, 18")
    a("s_mov_b32 s30, 0")
    a("s_branch L_pw_dense")
    a.lab("L_pw_b")
    a("s_sub_u32 s30, s2, 20")
    a(f"s_mul_i32 s28, s30, {WCT}")
    a(f"s_add_u32 s28, s28, {WB_OFF}")
    a("s_mov_b32 s8, s44")
    a("s_mov_b32 s9, s45")
    a(f"s_mov_b32 s10, {576*3456}")
    a("s_mov_b32 s22, 3456")
    a("s_cmp_lt_u32 s30, 18")
    a("s_cbranch_scc1 L_pw_qk")
    a("s_sub_u32 s30, s30, 18")
    a("s_mov_b32 s31, 576")
    a("s_cmp_lt_u32 s30, 18")
    a("s_cbranch_scc1 L_pw_qk")
    a("s_sub_u32 s30, s30, 18")
    a("s_mov_b32 s31, 1152")
    a("s_branch L_pw_dense")
    a.lab("L_pw_o")
    a("s_mov_b32 s29, 1")
    a(f"s_mov_b32 s10, {576*1152}")
    a("s_mov_b32 s22, 1152")
    a("s_cmp_ge_u32 s2, 92")
    a("s_cselect_b32 s8, s46, s40")
    a("s_cselect_b32 s9, s47, s41")
    a("s_cselect_b32 s30, 18, 0")
    a(f"s_cselect_b32 s28, {WOB_OFF}, {WOA_OFF}".replace(f"{WOB_OFF}, {WOA_OFF}", f"{WOB_OFF>>20}, {WOA_OFF>>20}"))
    a("s_lshl_b32 s28, s28, 20")
    a("s_sub_u32 s30, s2, s30")
    a("s_sub_u32 s30, s30, 74")
    a(f"s_mul_i32 s23, s30, {XT}")
    a("s_add_u32 s28, s28, s23")
    a.lab("L_pw_dense")
    a("s_lshl_b32 s23, s30, 5")
    a("s_mov_b32 s24, 0")
    a("s_mov_b32 s25, 0")
    a("s_mov_b32 s26, 31")
    a("s_branch L_pw_go")
    a.lab("L_pw_qk")
    a("s_mov_b32 s24, 18")
    a("s_cmp_lt_u32 s30, 16")
    a("s_cbranch_scc0 L_pw_ext")
    a("s_mul_i32 s23, s30, 36")
    a("s_mov_b32 s25, 4")
    a("s_mov_b32 s26, 15")
    a("s_branch L_pw_go")
    a.lab("L_pw_ext")
    a("s_sub_u32 s23, s30, 16")
    a("s_mul_i32 s23, s23, 288")
    a("s_add_u32 s23, s23, 16")
    a("s_mov_b32 s25, 1")
    a("s_mov_b32 s26, 1")
    a.lab("L_pw_go")
    a("s_add_u32 s23, s23, s31")
    a(f"v_lshrrev_b32 v4, s25, v{vT}")
    a("v_mul_lo_u32 v4, v4, s24")
    a(f"v_and_b32 v5, s26, v{vT}")
    a("v_add3_u32 v4, v4, v5, s23")
    a("v_lshlrev_b32 v4, 1, v4")
    a(f"v_mov_b32 v5, {OOB:#x}")
    a(f"v_cmp_gt_u32 vcc, s27, v{vT}")
    a("s_nop 1")
    a("v_cndmask_b32 v4, v5, v4, vcc")
    a("s_cmp_eq_u32 s29, 1")
    a("s_cselect_b32 s48, 18, 16")
    a(f"v_mul_lo_u32 v5, v{vH}, s22")
    a("v_lshl_add_u32 v6, v5, 2, v4")
    a("s_mul_i32 s49, s48, s22")
    a(f"s_mul_i32 s50, s49, {sWAVE}")
    a("v_add_u32 v6, s50, v6")
    a("s_lshl_b32 s49, s49, 3")
    for j in range(8):
        a(f"s_mul_i32 s{52+j}, s22, {8*(j>>2)+(j&3)}")
    for r in range(4):
        for j in range(8):
            op = "buffer_load_ushort" if j % 2 == 0 else "buffer_load_short_d16_hi"
            a(f"{op} v{16+r*8+j}, v6, {AUX}, s{52+j} offen")
        a("v_add_u32 v6, s49, v6")
    for j in range(8):
        a(f"v_mov_b32 v{48+j}, 0")
    a(f"s_cmp_ge_u32 {sWAVE}, 4")
    a("s_cbranch_scc1 L_pw_no5")
    a("s_cmp_eq_u32 s29, 0")
    a("s_cbranch_scc1 L_pw_5go")
    a("v_mul_u32_u24 v5, 72, v5")
    a(f"s_mul_i32 s50, {sWAVE}, s22")
    a("s_mul_i32 s50, s50, 144")
    a("v_add3_u32 v6, v5, v4, s50")
    for j in range(8):
        a(f"s_mul_i32 s{52+j}, s22, {18*(j>>1)+16+(j&1)}")
    a.lab("L_pw_5go")
    for j in range(8):
        op = "buffer_load_ushort" if j % 2 == 0 else "buffer_load_short_d16_hi"
        a(f"{op} v{48+j}, v6, {AUX}, s{52+j} offen")
    a.lab("L_pw_no5")
    a("s_waitcnt vmcnt(0)")
    for r in range(5):
        for d in range(4):
            a(f"v_and_b32 v{16+r*8+2*d+1}, 0xffff0000, v{16+r*8+2*d+1}")
            a(f"v_or_b32 v{64+4*r+d}, v{16+r*8+2*d}, v{16+r*8+2*d+1}")
    a(f"s_lshl_b32 s50, {sWAVE}, 10")
    a("s_add_u32 s50, s50, s28")
    for r in range(4):
        a(f"buffer_store_dwordx4 {vr(64+4*r,4)}, v{vL16}, {WS}, s50 offen")
        a("s_add_u32 s50, s50, 8192")
    a(f"s_cmp_ge_u32 {sWAVE}, 4")
    a("s_cbranch_scc1 L_pw_no5s")
    a(f"buffer_store_dwordx4 {vr(80,4)}, v{vL16}, {WS}, s50 offen")
    a.lab("L_pw_no5s")
    a("s_cmp_eq_u32 s29, 1")
    a("s_cbranch_scc1 L_end")
    a("s_mov_b32 s50, 0x3f803f80")
    a("v_mov_b32 v4, 0")
    for i in range(20):
        a(f"v_dot2_f32_bf16 v4, v{64+i}, s50, v4")
    a("v_lshlrev_b32 v5, 2, v0")
    a("s_nop 2")
    a("ds_write_b32 v5, v4")
    a("s_waitcnt lgkmcnt(0)")
    a("s_barrier")
    a(f"s_cmp_lg_u32 {sWAVE}, 0")
    a("s_cbranch_scc1 L_end")
    for i in range(8):
        a(f"ds_read_b32 v{16+i}, v5 offset:{256*i}")
    a("s_waitcnt lgkmcnt(0)")
    for i in range(1, 8):
        a(f"v_add_f32 v16, v16, v{16+i}")
    a("v_cvt_pk_bf16_f32 v17, v16, v16")
    a("v_lshlrev_b32 v17, 16, v17")
    a("v_sub_f32 v18, v16, v17")
    a("v_cvt_pk_bf16_f32 v17, v17, v18")
    a(f"s_add_u32 s50, s28, {36*FR}")
    a(f"buffer_store_dword v17, v5, {WS}, s50 offen")
    a("s_branch L_end")
    a.lab("L_prep_x")
    a("s_sub_u32 s22, s2, 110")
    a("s_mov_b32 s8, s32")
    a("s_mov_b32 s9, s33")
    a(f"v_mul_u32_u24 v4, 1152, v{vT}")
    a(f"v_lshl_add_u32 v4, v{vH}, 3, v4")
    a(f"s_mul_i32 s24, s22, {32*1152}")
    a(f"s_mov_b32 s23, {sWAVE}")
    a(f"s_mov_b32 {pXO}, {XF_OFF[0]:#x}")
    a(f"s_mov_b32 {pSO}, {ST_OFF[0]:#x}")
    a.lab("L_px_loop")
    a("s_lshl_b32 s25, s23, 6")
    a("s_add_u32 s25, s25, s24")
    for q in range(4):
        a(f"buffer_load_dwordx2 {vr(16+2*q,2)}, v4, {AUX}, s25 offen offset:{16*q}")
    a("s_waitcnt vmcnt(0)")
    store_x_and_stats(a, 16, "s22", "s23", 24, pXO, pSO, "s26", "s27")
    a("s_add_u32 s23, s23, 8")
    a("s_cmp_lt_u32 s23, 18")
    a("s_waitcnt vmcnt(0)")
    a("s_cbranch_scc1 L_px_loop")
    a("s_branch L_end")

WREG = 64
WEXT = 208
XEXT = 210
RSTD = 214
STRAW = 216
ACC = 16
XB = 48

def x_dma(a, TT, sBase):
    if TT == 1:
        a(f"s_lshl_b32 s40, {sWAVE}, 10")
        a(f"s_add_u32 s41, {sBase}, s40")
        rounds, gstep = 5, 8192
    else:
        a(f"s_and_b32 s40, {sWAVE}, 1")
        a(f"s_mul_i32 s41, s40, {XT}")
        a(f"s_lshr_b32 s40, {sWAVE}, 1")
        a("s_lshl_b32 s40, s40, 10")
        a("s_add_u32 s41, s41, s40")
        a(f"s_add_u32 s41, s41, {sBase}")
        a(f"s_lshl_b32 s40, {sWAVE}, 10")
        rounds, gstep = 9, 4096
    a("s_mov_b32 m0, s40")
    for r in range(rounds):
        a("s_nop 0")
        a(f"buffer_load_dwordx4 v{vL16}, {WS}, s41 offen lds")
        if r + 1 < rounds:
            a("s_add_u32 m0, m0, 8192")
            a(f"s_add_u32 s41, s41, {gstep}")
    return rounds

def w_loads(a, sWoff, ext):
    for ks in range(36):
        a(f"buffer_load_dwordx4 {vr(WREG+4*ks,4)}, v{vL16}, {WS}, {sWoff} offen offset:{(ks%4)*1024}")
        if ks % 4 == 3:
            a(f"s_add_u32 {sWoff}, {sWoff}, 4096")
    if ext:
        a(f"v_lshrrev_b32 v4, 2, v{vL16}")
        a(f"buffer_load_dword v{WEXT}, v4, {WS}, {sWoff} offen")
        a(f"v_mov_b32 v{WEXT+1}, 0")

def gemm_loop(a, TT, swap, nafter, cinit):
    n = 36 * TT
    depth = 4
    def rd(i):
        a(f"ds_read_b128 {vr(XB+4*(i%depth),4)}, v{vL16} offset:{i*1024}" if i * 1024 < 65536 else
          f"ds_read_b128 {vr(XB+4*(i%depth),4)}, v5 offset:{i*1024-65536}")
    if n * 1024 > 65536:
        a(f"v_add_u32 v5, 0x10000, v{vL16}")
    for i in range(depth - 1):
        rd(i)
    for i in range(n):
        ks, t = i // TT, i % TT
        if i + depth - 1 < n:
            rd(i + depth - 1)
            out = depth - 1
        else:
            out = n - 1 - i
        if t == 0 and ks % 3 == 0:
            a(f"s_waitcnt vmcnt({nafter + 36 - min(36, ks + 3)}) lgkmcnt({out})")
        else:
            a(f"s_waitcnt lgkmcnt({out})")
        acc = vr(ACC + 16 * t, 16)
        w = vr(WREG + 4 * ks, 4)
        x = vr(XB + 4 * (i % depth), 4)
        c = acc if (cinit or ks > 0) else "0"
        if swap:
            a(f"v_mfma_f32_32x32x16_bf16 {acc}, {x}, {w}, {c}")
        else:
            a(f"v_mfma_f32_32x32x16_bf16 {acc}, {w}, {x}, {c}")

def stats_load(a, t, sTreg):
    a(f"v_mul_u32_u24 v4, 144, v{vT}")
    a(f"v_mul_u32_u24 v5, 72, v{vH}")
    a("v_add_u32 v4, v4, v5")
    a(f"s_mul_i32 s40, {sTreg}, {32*144}")
    a(f"s_add_u32 s40, s40, {pST}")
    if t:
        a(f"s_add_u32 s40, s40, {32*144*t}")
    b = STRAW + 18 * t
    for q in range(4):
        a(f"buffer_load_dwordx4 {vr(b+4*q,4)}, v4, {WS}, s40 offen offset:{16*q}")
    a(f"buffer_load_dwordx2 {vr(b+16,2)}, v4, {WS}, s40 offen offset:64")
    return 5

def stats_compute(a, t):
    b = STRAW + 18 * t
    for i in range(1, 9):
        a(f"v_add_f32 v{b}, v{b}, v{b+2*i}")
        a(f"v_add_f32 v{b+1}, v{b+1}, v{b+2*i+1}")
    a("s_nop 1")
    a(f"v_permlane32_swap_b32 v{b}, v{b+1}")
    a("s_nop 1")
    a(f"v_add_f32 v{b}, v{b}, v{b+1}")
    a(f"v_mov_b32 v{b+1}, v{b}")
    a("s_nop 1")
    a(f"v_permlane32_swap_b32 v{b}, v{b+1}")
    a("s_nop 1")
    a(f"v_mul_f32 v{b}, {f2u(1.0/576):#x}, v{b}")
    a(f"v_mul_f32 v{b+1}, {f2u(1.0/576):#x}, v{b+1}")
    a(f"v_fma_f32 v{b+1}, -v{b}, v{b}, v{b+1}")
    a(f"v_max_f32 v{b+1}, 0, v{b+1}")
    a(f"v_cvt_pk_bf16_f32 v{XEXT+2*t}, -v{b}, -v{b}")
    a(f"v_mov_b32 v{XEXT+2*t+1}, 0")
    a(f"v_cvt_pk_bf16_f32 v{b+1}, v{b+1}, v{b+1}")
    a(f"v_lshlrev_b32 v{b+1}, 16, v{b+1}")
    a(f"v_add_f32 v{b+1}, {f2u(1e-5):#x}, v{b+1}")
    a(f"v_cvt_pk_bf16_f32 v{b+1}, v{b+1}, v{b+1}")
    a(f"v_lshlrev_b32 v{b+1}, 16, v{b+1}")
    a(f"v_sqrt_f32 v{b+1}, v{b+1}")
    a("s_nop 0")
    a(f"v_cvt_pk_bf16_f32 v{b+1}, v{b+1}, v{b+1}")
    a(f"v_lshlrev_b32 v{b+1}, 16, v{b+1}")
    a(f"v_rcp_f32 v{RSTD+t}, v{b+1}")
    a("s_nop 0")

def gen_qkv(a, isB):
    tag = "B" if isB else "A"
    TT = 2 if isB else 1
    CT = 7 if isB else 5
    NC = 54 if isB else 20
    a.lab(f"B_qkv{tag}")
    common_prologue(a, 256)
    if isB:
        a("s_lshr_b32 s22, s2, 6")
        a("s_lshl_b32 s22, s22, 3")
        a("s_and_b32 s24, s2, 7")
        a("s_add_u32 s22, s22, s24")
        a("s_lshl_b32 s22, s22, 1")
        a("s_lshr_b32 s23, s2, 3")
        a("s_and_b32 s23, s23, 7")
    else:
        a("s_lshr_b32 s22, s2, 5")
        a("s_lshl_b32 s22, s22, 3")
        a("s_and_b32 s24, s2, 7")
        a("s_add_u32 s22, s22, s24")
        a("s_lshr_b32 s23, s2, 3")
        a("s_and_b32 s23, s23, 3")
    a(f"s_mul_i32 s23, s23, {CT}")
    a(f"s_add_u32 s23, s23, {sWAVE}")
    a(f"s_mul_i32 s24, s22, {XT}")
    a(f"s_add_u32 s24, s24, {pX}")
    x_dma(a, TT, "s24")
    a(f"s_cmp_ge_u32 {sWAVE}, {CT}")
    a(f"s_cbranch_scc1 L_idle")
    a(f"s_cmp_ge_u32 s23, {NC}")
    a(f"s_cbranch_scc1 L_idle")
    ns = 0
    for t in range(TT):
        ns += stats_load(a, t, "s22")
    a(f"s_mul_i32 s24, s23, {WCT}")
    a(f"s_add_u32 s24, s24, {pW}")
    w_loads(a, "s24", True)
    a(f"s_waitcnt vmcnt(37)")
    a("s_barrier")
    for t in range(TT):
        stats_compute(a, t)
    if isB:
        a("s_mov_b32 s25, 0")
        a("s_mov_b32 s26, s23")
        for _ in range(2):
            a("s_cmp_ge_u32 s26, 18")
            a("s_cselect_b32 s27, 18, 0")
            a("s_cselect_b32 s28, 1, 0")
            a("s_sub_u32 s26, s26, s27")
            a("s_add_u32 s25, s25, s28")
    else:
        a("s_mov_b32 s26, s23")
        a("s_sub_u32 s25, s23, 17")
        a("s_cmp_lt_u32 s23, 18")
        a("s_cselect_b32 s25, 0, s25")
    a("s_cmp_eq_u32 s25, 2")
    a(f"s_cbranch_scc1 L_qkv{tag}_v")
    gemm_loop(a, TT, False, 1, False)
    a("s_waitcnt vmcnt(0)")
    for t in range(TT):
        a(f"v_mfma_f32_32x32x8_bf16 {vr(ACC+16*t,16)}, {vr(WEXT,2)}, {vr(XEXT+2*t,2)}, {vr(ACC+16*t,16)}")
    a("s_cmp_eq_u32 s25, 0")
    a(f"s_cselect_b32 s27, {f2u(QSCALE):#x}, 1.0")
    a(f"s_mov_b32 s28, {QT}")
    a(f"s_cselect_b32 s28, s28, {KVT}")
    a(f"s_cselect_b32 s29, {pQ}, {pKV}")
    a("s_lshl_b32 s30, s28, 6")
    a("s_mul_i32 s31, s22, s28")
    a("s_add_u32 s29, s29, s31")
    for t in range(TT):
        a(f"v_mul_f32 v{RSTD+t}, s27, v{RSTD+t}")
    a("s_nop 8")
    for t in range(TT):
        for r in range(16):
            a(f"v_mul_f32 v{ACC+16*t+r}, v{RSTD+t}, v{ACC+16*t+r}")
        for p in range(8):
            a(f"v_cvt_pk_bf16_f32 v{ACC+16*t+p}, v{ACC+16*t+2*p}, v{ACC+16*t+2*p+1}")
    if not isB:
        a("s_cmp_eq_u32 s25, 1")
        a("s_cbranch_scc1 L_qkvA_k")
    a("s_cmp_ge_u32 s26, 16")
    a(f"s_cbranch_scc1 L_qkv{tag}_ext")
    a("s_mul_i32 s31, s26, s30")
    a("s_lshl_b32 s31, s31, 1")
    a("s_add_u32 s29, s29, s31")
    for t in range(TT):
        a(f"buffer_store_dwordx4 {vr(ACC+16*t,4)}, v{vL16}, {WS}, s29 offen")
        a("s_add_u32 s31, s29, s30")
        a(f"buffer_store_dwordx4 {vr(ACC+16*t+4,4)}, v{vL16}, {WS}, s31 offen")
        if t + 1 < TT:
            a("s_add_u32 s29, s29, s28")
    a("s_branch L_end")
    a.lab(f"L_qkv{tag}_ext")
    a("s_sub_u32 s31, s26, 16")
    a("s_mul_i32 s31, s31, s30")
    a("s_lshl_b32 s31, s31, 4")
    a("s_add_u32 s29, s29, s31")
    a(f"v_mul_lo_u32 v4, v{vH}, s30")
    a("v_lshlrev_b32 v4, 1, v4")
    a(f"v_lshl_add_u32 v4, v{vT}, 2, v4")
    for t in range(TT):
        for p in range(8):
            a(f"s_mul_i32 s31, s30, {4*(p>>1)+(p&1)}")
            a("s_add_u32 s31, s31, s29")
            a(f"buffer_store_dword v{ACC+16*t+p}, v4, {WS}, s31 offen offset:1024")
        if t + 1 < TT:
            a("s_add_u32 s29, s29, s28")
    a("s_branch L_end")
    if not isB:
        a.lab("L_qkvA_k")
        a(f"buffer_store_dwordx4 {vr(ACC,4)}, v{vL16}, {WS}, s29 offen")
        a(f"v_lshlrev_b32 v4, 30, v{vH}")
        a(f"v_lshl_add_u32 v4, v{vT}, 2, v4")
        a(f"buffer_store_dword v{ACC+4}, v4, {WS}, s29 offen offset:1024")
        a("s_branch L_end")
    a.lab(f"L_qkv{tag}_v")
    a(f"s_lshl_b32 s27, {sWAVE}, 8")
    a("s_add_u32 s27, s27, 0x14000")
    a(f"v_lshl_add_u32 v6, v{vT}, 2, s27")
    for t in range(TT):
        a(f"ds_write_b32 v6, v{RSTD+t} offset:{128*t}")
    a(f"v_lshl_add_u32 v6, v{vH}, 4, s27")
    a("s_waitcnt lgkmcnt(0)")
    for t in range(TT):
        for q in range(4):
            a(f"ds_read_b128 {vr(STRAW+16*t+4*q,4)}, v6 offset:{128*t+32*q}")
    a("s_waitcnt lgkmcnt(0)")
    gemm_loop(a, TT, True, 1, False)
    a("s_waitcnt vmcnt(0)")
    for t in range(TT):
        a(f"v_mfma_f32_32x32x8_bf16 {vr(ACC+16*t,16)}, {vr(XEXT+2*t,2)}, {vr(WEXT,2)}, {vr(ACC+16*t,16)}")
    if isB:
        a("s_lshl_b32 s27, s26, 5")
        a(f"v_add_u32 v4, s27, v{vT}")
        a("v_mul_u32_u24 v5, 3641, v4")
        a("v_lshrrev_b32 v5, 16, v5")
        a("v_mul_u32_u24 v6, 18, v5")
        a("v_sub_u32 v4, v4, v6")
        a("v_lshlrev_b32 v4, 4, v4")
        a(f"s_mov_b32 s27, {64*KVT}")
        a("v_mul_lo_u32 v5, v5, s27")
        a("v_add_u32 v4, v4, v5")
    else:
        a(f"v_lshlrev_b32 v4, 4, v{vT}")
        a(f"v_mov_b32 v5, {OOB:#x}")
        a(f"v_cmp_gt_u32 vcc, 18, v{vT}")
        a("s_nop 1")
        a("v_cndmask_b32 v4, v5, v4, vcc")
    a(f"v_mul_u32_u24 v5, 288, v{vH}")
    a("v_add_u32 v4, v4, v5")
    a(f"s_mul_i32 s29, s22, {KVT}")
    a(f"s_add_u32 s29, s29, {pKV}")
    a("s_nop 4")
    for t in range(TT):
        for r in range(16):
            a(f"v_mul_f32 v{ACC+16*t+r}, v{STRAW+16*t+r}, v{ACC+16*t+r}")
        for p in range(8):
            a(f"v_cvt_pk_bf16_f32 v{ACC+16*t+p}, v{ACC+16*t+2*p}, v{ACC+16*t+2*p+1}")
        a(f"buffer_store_dwordx4 {vr(ACC+16*t,4)}, v4, {WS}, s29 offen offset:1152")
        a(f"buffer_store_dwordx4 {vr(ACC+16*t+4,4)}, v4, {WS}, s29 offen offset:{1152+576}")
        if t + 1 < TT:
            a(f"s_add_u32 s29, s29, {KVT}")
    a("s_branch L_end")

def gen_outproj(a):
    a.lab("B_out")
    common_prologue(a, 192)
    a("s_lshr_b32 s24, s2, 3")
    a("s_mul_i32 s25, s24, 43691")
    a("s_lshr_b32 s25, s25, 17")
    a("s_mul_i32 s26, s25, 3")
    a("s_sub_u32 s23, s24, s26")
    a("s_lshl_b32 s22, s25, 3")
    a("s_and_b32 s24, s2, 7")
    a("s_add_u32 s22, s22, s24")
    a("s_mul_i32 s23, s23, 6")
    a(f"s_add_u32 s23, s23, {sWAVE}")
    a(f"s_mul_i32 s25, s22, {XT}")
    a(f"s_add_u32 s24, s25, {pX}")
    x_dma(a, 1, "s24")
    a(f"s_cmp_ge_u32 {sWAVE}, 6")
    a("s_cbranch_scc1 L_idle")
    a("s_lshl_b32 s26, s23, 11")
    a("s_add_u32 s25, s25, s26")
    a(f"s_add_u32 s25, s25, {pXR}")
    a(f"buffer_load_dwordx4 {vr(STRAW,4)}, v{vL16}, {WS}, s25 offen")
    a(f"buffer_load_dwordx4 {vr(STRAW+4,4)}, v{vL16}, {WS}, s25 offen offset:1024")
    a(f"s_mul_i32 s24, s23, {XT}")
    a(f"s_add_u32 s24, s24, {pW}")
    w_loads(a, "s24", False)
    a("s_waitcnt vmcnt(36)")
    a("s_barrier")
    for p in range(8):
        a(f"v_lshlrev_b32 v{ACC+2*p}, 16, v{STRAW+p}")
        a(f"v_and_b32 v{ACC+2*p+1}, 0xffff0000, v{STRAW+p}")
    gemm_loop(a, 1, False, 0, True)
    a("s_nop 12")
    for p in range(8):
        a(f"v_cvt_pk_bf16_f32 v{ACC+p}, v{ACC+2*p}, v{ACC+2*p+1}")
    a(f"s_cmp_lg_u32 {pFIN}, 0")
    a("s_cbranch_scc1 L_out_final")
    store_x_and_stats(a, ACC, "s22", "s23", 40, pXO, pSO, "s26", "s27")
    a("s_branch L_end")
    a.lab("L_out_final")
    a(f"v_mul_u32_u24 v4, 1152, v{vT}")
    a(f"v_lshl_add_u32 v4, v{vH}, 3, v4")
    a(f"s_mul_i32 s24, s22, {32*1152}")
    a("s_lshl_b32 s25, s23, 6")
    a("s_add_u32 s24, s24, s25")
    for q in range(4):
        a(f"buffer_store_dwordx2 {vr(ACC+2*q,2)}, v4, {AUX}, s24 offen offset:{16*q}")
    a("s_branch L_end")

QM, QE = 4, 8
CM = 16
S = [32, 48]
OA = 64
P = 80
KM = [88, 96]
KE = [92, 100]
V = [104, 112]
CF, CL = 120, 136
vKa, vKe, vVa = 10, 11, 12
VMASK = "s[30:31]"

def attn_setup(a):
    a(f"buffer_load_dwordx4 {vr(QM,4)}, v{vL16}, {WS}, s24 offen")
    a(f"v_lshlrev_b32 v13, 30, v{vH}")
    a(f"v_lshl_add_u32 v13, v{vT}, 2, v13")
    a(f"buffer_load_dword v{QE}, v13, {WS}, s24 offen offset:1024")
    a(f"v_mov_b32 v{QE+1}, 0")
    a(f"v_mov_b32 v{KE[0]+1}, 0")
    a(f"v_mov_b32 v{KE[1]+1}, 0")
    for r in range(16):
        a(f"v_mov_b32 v{CM+r}, 0")
    a(f"v_cmp_eq_u32 vcc, 18, v{vT}")
    a(f"v_cmp_eq_u32 s[30:31], 20, v{vT}")
    a("s_or_b64 vcc, vcc, s[30:31]")
    a("v_mov_b32 v13, 0x3f803f80")
    a("s_nop 1")
    a("v_cndmask_b32 v13, 0, v13, vcc")
    for i in range(8):
        a(f"v_mov_b32 v{V[0]+i}, v13")
        a(f"v_mov_b32 v{V[1]+i}, v13")
    a("s_mov_b32 s30, 0x3ffff")
    a("s_mov_b32 s31, 0x3ffff")

def addr_setup(a, sBase):
    a(f"v_add_u32 v{vKa}, {sBase}, v{vL16}")
    a(f"v_lshl_add_u32 v{vKe}, v{vT}, 2, {sBase}")
    a(f"v_mul_u32_u24 v{vVa}, 288, v{vH}")
    a(f"v_lshl_add_u32 v{vVa}, v{vT}, 4, v{vVa}")
    a(f"v_add_u32 v{vVa}, {sBase}, v{vVa}")

def rdK(a, buf, off):
    a(f"ds_read_b128 {vr(KM[buf],4)}, v{vKa} offset:{off}")
    a(f"ds_read_b32 v{KE[buf]}, v{vKe} offset:{off+1024}")

def rdV(a, buf, off):
    a(f"s_mov_b64 exec, {VMASK}")
    a(f"ds_read_b128 {vr(V[buf],4)}, v{vVa} offset:{off+1152}")
    a(f"ds_read_b128 {vr(V[buf]+4,4)}, v{vVa} offset:{off+1152+576}")
    a("s_mov_b64 exec, -1")

def qk(a, buf, C):
    a(f"v_mfma_f32_32x32x16_bf16 {vr(S[buf],16)}, {vr(KM[buf],4)}, {vr(QM,4)}, {vr(C,16)}")
    a(f"v_mfma_f32_32x32x8_bf16 {vr(S[buf],16)}, {vr(KE[buf],2)}, {vr(QE,2)}, {vr(S[buf],16)}")

def body(a, cur, offK2, offV1, Cn, do_next=True):
    nxt = cur ^ 1
    s = S[cur]
    a("s_waitcnt lgkmcnt(0)")
    if do_next:
        a(f"v_mfma_f32_32x32x16_bf16 {vr(S[nxt],16)}, {vr(KM[nxt],4)}, {vr(QM,4)}, {vr(Cn,16)}")
    if offK2 is not None:
        rdK(a, cur, offK2)
    if offV1 is not None:
        rdV(a, nxt, offV1)
    for r in range(4):
        a(f"v_exp_f32 v{s+r}, v{s+r}")
    if do_next:
        a(f"v_mfma_f32_32x32x8_bf16 {vr(S[nxt],16)}, {vr(KE[nxt],2)}, {vr(QE,2)}, {vr(S[nxt],16)}")
    for r in range(4, 8):
        a(f"v_exp_f32 v{s+r}, v{s+r}")
    for p in range(4):
        a(f"v_cvt_pk_bf16_f32 v{P+p}, v{s+2*p}, v{s+2*p+1}")
    for r in range(8, 10):
        a(f"v_exp_f32 v{s+r}, v{s+r}")
    a(f"v_mfma_f32_32x32x16_bf16 {vr(OA,16)}, {vr(V[cur],4)}, {vr(P,4)}, {vr(OA,16)}")
    for r in range(10, 16):
        a(f"v_exp_f32 v{s+r}, v{s+r}")
    for p in range(4, 8):
        a(f"v_cvt_pk_bf16_f32 v{P+p}, v{s+2*p}, v{s+2*p+1}")
    a("s_nop 1")
    a(f"v_mfma_f32_32x32x16_bf16 {vr(OA,16)}, {vr(V[cur]+4,4)}, {vr(P+4,4)}, {vr(OA,16)}")

def attn_epilogue(a, tag, sT, sHead):
    a("s_nop 12")
    a(f"v_cmp_eq_u32 vcc, 0, v{vH}")
    a("s_nop 1")
    a(f"v_cndmask_b32 v13, v{OA+8}, v{OA+10}, vcc")
    a("s_cmp_lg_u32 s33, 0")
    a(f"s_cbranch_scc1 L_attn{tag}_fin")
    a(f"v_cmp_le_f32 vcc, {f2u(2.0**-60):#x}, v13")
    a(f"v_mov_b32 v14, {f2u(2.0**60):#x}")
    a("v_cmp_le_f32 s[34:35], v13, v14")
    a("s_and_b64 vcc, vcc, s[34:35]")
    a("s_cmp_eq_u64 vcc, -1")
    a(f"s_cbranch_scc0 L_attn{tag}_slow")
    a.lab(f"L_attn{tag}_fin")
    a("v_rcp_f32 v13, v13")
    a("s_nop 0")
    for r in range(10):
        a(f"v_mul_f32 v{OA+r}, v13, v{OA+r}")
    for p in range(5):
        a(f"v_cvt_pk_bf16_f32 v{OA+p}, v{OA+2*p}, v{OA+2*p+1}")
    a(f"s_mul_i32 s24, {sT}, {XT}")
    a(f"s_add_u32 s24, s24, {pO}")
    a(f"s_lshl_b32 s25, {sHead}, 10")
    a("s_add_u32 s25, s25, s24")
    a(f"buffer_store_dwordx4 {vr(OA,4)}, v{vL16}, {WS}, s25 offen")
    a(f"s_lshr_b32 s25, {sHead}, 2")
    a("s_lshl_b32 s25, s25, 9")
    a(f"s_and_b32 s26, {sHead}, 3")
    a("s_lshl_b32 s26, s26, 2")
    a("s_add_u32 s25, s25, s26")
    a("s_add_u32 s25, s25, s24")
    a(f"s_add_u32 s25, s25, {32*1024}")
    a(f"v_lshlrev_b32 v13, 30, v{vH}")
    a(f"v_lshl_add_u32 v13, v{vT}, 4, v13")
    a(f"buffer_store_dword v{OA+4}, v13, {WS}, s25 offen")
    a("s_branch L_end")

def max_reduce_tile(a, first):
    s = S[0]
    a("s_nop 12")
    for i in range(8):
        a(f"v_max3_f32 v15, v{s+2*i}, v{s+2*i+1}, v15")

def gen_attnA(a):
    a.lab("B_attnA")
    common_prologue(a, 256)
    a("s_lshr_b32 s22, s2, 5")
    a("s_lshl_b32 s22, s22, 3")
    a("s_and_b32 s24, s2, 7")
    a("s_add_u32 s22, s22, s24")
    a("s_lshr_b32 s23, s2, 3")
    a("s_and_b32 s23, s23, 3")
    a("s_lshl_b32 s23, s23, 3")
    a(f"s_add_u32 s23, s23, {sWAVE}")
    a("s_lshl_b32 s24, s23, 6")
    a("s_add_u32 s24, s24, s22")
    a(f"s_mul_i32 s24, s24, {QT}")
    a(f"s_add_u32 s24, s24, {pQ}")
    attn_setup(a)
    a(f"s_lshl_b32 s40, {sWAVE}, 10")
    a(f"s_add_u32 s41, {pKV}, s40")
    a("s_mov_b32 m0, s40")
    for r in range(18):
        a("s_nop 0")
        a(f"buffer_load_dwordx4 v{vL16}, {WS}, s41 offen lds")
        if r < 17:
            a("s_add_u32 m0, m0, 8192")
            a("s_add_u32 s41, s41, 8192")
    a("s_mov_b32 s33, 0")
    a("s_waitcnt vmcnt(15)")
    a("s_barrier")
    a.lab("L_attnA_start")
    addr_setup(a, "0")
    for r in range(16):
        a(f"v_mov_b32 v{OA+r}, 0")
    rdK(a, 0, 0)
    rdK(a, 1, KVT)
    rdV(a, 0, 0)
    a("s_waitcnt lgkmcnt(4)")
    qk(a, 0, CM)
    a("s_mov_b32 s32, 0")
    a("s_nop 7")
    a.lab("L_attnA_loop")
    for j in range(8):
        body(a, j & 1, (j + 2) * KVT, (j + 1) * KVT, CM)
    a(f"v_add_u32 v{vKa}, {8*KVT}, v{vKa}")
    a(f"v_add_u32 v{vKe}, {8*KVT}, v{vKe}")
    a(f"v_add_u32 v{vVa}, {8*KVT}, v{vVa}")
    a("s_add_u32 s32, s32, 1")
    a("s_or_b32 s34, s33, s32")
    a("s_cmp_eq_u32 s34, 1")
    a("s_cbranch_scc0 L_attnA_nosync")
    a("s_waitcnt vmcnt(0)")
    a("s_barrier")
    a.lab("L_attnA_nosync")
    a("s_cmp_lt_u32 s32, 8")
    a("s_cbranch_scc1 L_attnA_loop")
    a("s_waitcnt lgkmcnt(0)")
    attn_epilogue(a, "A", "s22", "s23")
    a.lab("L_attnA_slow")
    addr_setup(a, "0")
    a(f"v_mov_b32 v15, {f2u(float('-inf')):#x}")
    a("s_mov_b32 s32, 0")
    a.lab("L_attnA_maxloop")
    rdK(a, 0, 0)
    a("s_waitcnt lgkmcnt(0)")
    qk(a, 0, CM)
    max_reduce_tile(a, False)
    a(f"v_add_u32 v{vKa}, {KVT}, v{vKa}")
    a(f"v_add_u32 v{vKe}, {KVT}, v{vKe}")
    a("s_add_u32 s32, s32, 1")
    a("s_cmp_lt_u32 s32, 64")
    a("s_cbranch_scc1 L_attnA_maxloop")
    a("v_mov_b32 v14, v15")
    a("s_nop 1")
    a("v_permlane32_swap_b32 v14, v15")
    a("s_nop 1")
    a("v_max_f32 v15, v14, v15")
    for r in range(16):
        a(f"v_sub_f32 v{CM+r}, 0, v15")
    a("s_mov_b32 s33, 16")
    a("s_branch L_attnA_start")

def gen_attnB(a):
    a.lab("B_attnB")
    common_prologue(a, 256)
    a("s_lshr_b32 s23, s2, 3")
    a("s_and_b32 s36, s2, 7")
    a("s_lshl_b32 s22, s36, 3")
    a(f"s_add_u32 s22, s22, {sWAVE}")
    a("s_lshl_b32 s24, s23, 6")
    a("s_add_u32 s24, s24, s22")
    a(f"s_mul_i32 s24, s24, {QT}")
    a(f"s_add_u32 s24, s24, {pQ}")
    attn_setup(a)
    a("s_lshl_b32 s24, s23, 6")
    a("s_lshl_b32 s25, s36, 3")
    a("s_add_u32 s24, s24, s25")
    a(f"s_mul_i32 s24, s24, {KVT}")
    a(f"s_add_u32 s24, s24, {pKV}")
    a(f"s_sub_u32 s24, s24, {8*KVT}")
    a(f"s_lshl_b32 s40, {sWAVE}, 10")
    a("s_add_u32 s41, s24, s40")
    a("s_mov_b32 m0, s40")
    for r in range(5):
        a("s_nop 0")
        a(f"buffer_load_dwordx4 v{vL16}, {WS}, s41 offen lds")
        if r < 4:
            a("s_add_u32 m0, m0, 8192")
            a("s_add_u32 s41, s41, 8192")
    a(f"v_lshlrev_b32 v13, 2, v{vH}")
    a(f"v_sub_u32 v13, v{vT}, v13")
    a(f"v_mov_b32 v14, {NEGBIG:#x}")
    for r in range(16):
        kb = (r & 3) + 8 * (r >> 2)
        a(f"v_cmp_le_i32 vcc, {kb}, v13")
        a("s_nop 1")
        a(f"v_cndmask_b32 v{CL+r}, v14, 0, vcc")
        a(f"v_cndmask_b32 v{CF+r}, 0, v14, vcc")
    a(f"s_add_u32 s37, {sWAVE}, 1")
    a("s_cmp_eq_u32 s36, 0")
    a("s_cselect_b32 s37, s37, 9")
    a(f"s_mul_i32 s38, {sWAVE}, {KVT}")
    a("s_mov_b32 s33, 0")
    a("s_waitcnt vmcnt(0)")
    a("s_barrier")
    a.lab("L_attnB_start")
    addr_setup(a, "s38")
    for r in range(16):
        a(f"v_mov_b32 v{OA+r}, 0")
    rdK(a, 0, 8 * KVT)
    rdK(a, 1, 7 * KVT)
    rdV(a, 0, 8 * KVT)
    a("s_waitcnt lgkmcnt(4)")
    qk(a, 0, CL)
    a("s_nop 7")
    for i in range(9):
        body(a, i & 1, (8 - i - 2) * KVT if i + 2 <= 8 else None, (8 - i - 1) * KVT if i + 1 <= 8 else None,
             CF if i + 1 == 8 else CM, do_next=(i < 8))
        if i < 8:
            a(f"s_cmp_eq_u32 s37, {i+1}")
            a("s_cbranch_scc1 L_attnB_done")
    a.lab("L_attnB_done")
    a("s_waitcnt lgkmcnt(0)")
    attn_epilogue(a, "B", "s22", "s23")
    a.lab("L_attnB_slow")
    a(f"v_mov_b32 v15, {f2u(float('-inf')):#x}")
    for i in range(9):
        rdK(a, 0, (8 - i) * KVT)
        a("s_waitcnt lgkmcnt(0)")
        qk(a, 0, CL if i == 0 else (CF if i == 8 else CM))
        max_reduce_tile(a, False)
        if i < 8:
            a(f"s_cmp_eq_u32 s37, {i+1}")
            a("s_cbranch_scc1 L_attnB_maxdone")
    a.lab("L_attnB_maxdone")
    a("v_mov_b32 v14, v15")
    a("s_nop 1")
    a("v_permlane32_swap_b32 v14, v15")
    a("s_nop 1")
    a("v_max_f32 v15, v14, v15")
    for r in range(16):
        a(f"v_sub_f32 v{CM+r}, 0, v15")
        a(f"v_sub_f32 v{CL+r}, v{CL+r}, v15")
        a(f"v_sub_f32 v{CF+r}, v{CF+r}, v15")
    a("s_mov_b32 s33, 16")
    a("s_branch L_attnB_start")

def main(out):
    ref = open(f"cdna_kernels/{NAME}.s.ref").read().splitlines()
    hdr = [l for l in ref if l.startswith(";") and "@launch" not in l and "Override" not in l and "grid=ceil" not in l]
    kern = []
    def K(name, lab, grid, lds, **kw):
        kern.append((name + "_kernel", lab, kw, grid, lds))
    LDS_G = 0x15000
    K("prep", "B_prep", 174, 4096)
    for it in range(2):
        la, lb = 2 * it, 2 * it + 1
        K(f"qkva{it}", "B_qkvA", 256, LDS_G, **{pX: XF_OFF[la], pST: ST_OFF[la], pW: WA_OFF, pQ: Q_OFF[la], pKV: KV_OFF[la]})
        K(f"attna{it}", "B_attnA", 256, 160 * 1024, **{pQ: Q_OFF[la], pKV: KV_OFF[la], pO: O_OFF[la]})
        K(f"outa{it}", "B_out", 192, LDS_G, **{pX: O_OFF[la], pW: WOA_OFF, pXR: XF_OFF[la], pXO: XF_OFF[lb], pSO: ST_OFF[lb], pFIN: 0})
        K(f"qkvb{it}", "B_qkvB", 256, LDS_G, **{pX: XF_OFF[lb], pST: ST_OFF[lb], pW: WB_OFF, pQ: Q_OFF[lb], pKV: KV_OFF[lb]})
        K(f"attnb{it}", "B_attnB", 256, 48 * 1024, **{pQ: Q_OFF[lb], pKV: KV_OFF[lb], pO: O_OFF[lb]})
        if it == 0:
            K(f"outb{it}", "B_out", 192, LDS_G, **{pX: O_OFF[lb], pW: WOB_OFF, pXR: XF_OFF[lb], pXO: XF_OFF[2], pSO: ST_OFF[2], pFIN: 0})
        else:
            K(f"outb{it}", "B_out", 192, LDS_G, **{pX: O_OFF[lb], pW: WOB_OFF, pXR: XF_OFF[lb], pXO: 0, pSO: 0, pFIN: 1})
    txt = "\n".join(hdr) + "\n"
    for name, lab, kw, grid, lds in kern:
        txt += f"; @launch kernel={name} grid=({grid},1,1) block=(512,1,1) lds={lds}\n"
    txt += '.amdgcn_target "amdgcn-amd-amdhsa--gfx950"\n.text\n'
    for name, lab, kw, grid, lds in kern:
        txt += f".globl {name}\n.p2align 8\n.type {name},@function\n{name}:\n"
        for k, v in kw.items():
            txt += f"    s_mov_b32 {k}, {v:#x}\n"
        txt += f"    s_branch {lab}\n"
    a = A()
    a.l.append(".p2align 8")
    gen_prep(a)
    gen_qkv(a, False)
    gen_qkv(a, True)
    gen_outproj(a)
    gen_attnA(a)
    gen_attnB(a)
    a.lab("L_idle")
    a("s_waitcnt vmcnt(0)")
    a("s_barrier")
    a.lab("L_end")
    a("s_endpgm")
    txt += a.text()
    txt += '.section .rodata,"a"\n'
    for name, lab, kw, grid, lds in kern:
        txt += f""".p2align 6
.amdhsa_kernel {name}
  .amdhsa_next_free_vgpr 256
  .amdhsa_next_free_sgpr 96
  .amdhsa_accum_offset 256
  .amdhsa_group_segment_fixed_size 0
  .amdhsa_kernarg_size 88
  .amdhsa_user_sgpr_count 2
  .amdhsa_user_sgpr_kernarg_segment_ptr 1
  .amdhsa_system_sgpr_workgroup_id_x 1
  .amdhsa_float_denorm_mode_32 3
.end_amdhsa_kernel
"""
    open(out, "w").write(txt)

if __name__ == "__main__":
    main(sys.argv[1] if len(sys.argv) > 1 else f"cdna_kernels/{NAME}.s")
```

```python
import math, struct, sys

NAME = "interleave_layers__grouped_kv_mqa__sliding_block__prompt"
def f2u(x): return struct.unpack("<I", struct.pack("<f", x))[0]

FR = 1024
XT = 36 * FR
WCT = 36 * FR
XA, XB, OA_, OB_ = 0x000000, 0x240000, 0x480000, 0x6C0000
STA, STB = 0x900000, 0x948000
KVA = 0x990000
KVB = 0xA00000
FL = 0xEA0000
ITS = 0xF20000
FXA, FXB, FOA, FOB, FKA, FKAL, FKB = FL, FL + 0x8000, FL + 0x10000, FL + 0x18000, FL + 0x20000, FL + 0x28000, FL + 0x40000
WA_OFF, WB_OFF, WOA_OFF, WOB_OFF, FPREP = 0x2000000, 0x2100000, 0x2400000, 0x2500000, 0x2600000
DBG_OFF = 0x4000000
WS_SIZE = 0x10000000
OOB = 0x40000000
LOOB = 0x40000
GRP = 9472
KVA_SZ = 16 * GRP
BLK = 2 * GRP
VT = 1216
KVT = 2368
QSCALE = (18 ** -0.5) * math.log2(math.e)
NEGBIG = f2u(-1e30)
L_XA = 40960
L_WB = 40960
L_KVB = 118784
L_Q = 151552
L_MISC = 160768
L_FLAG = 162816
NPREP = 252
L_PREP = 114688
L_WBX = L_WB + 2 * WCT

STAMPS = False
NOLOCAL = False
STN = []
ST = " sc1"
LD = " sc1"

class A:
    def __init__(self):
        self.l = []; self.n = 0; self.ns = 0; self.stn = []
    def __call__(self, s): self.l.append("    " + s)
    def lab(self, s): self.l.append(s + ":")
    def nl(self, p="L"):
        self.n += 1
        return f"{p}_{self.n}"
    def text(self): return "\n".join(self.l) + "\n"

def vr(a, n): return f"v[{a}:{a+n-1}]" if n > 1 else f"v{a}"

W = "s3"
WS, AUX, IT = "s[4:7]", "s[8:11]", "s[16:19]"
sX, sI, sNONCE, sIT, sLIM, sLOC = "s12", "s13", "s14", "s15", "s20", "s99"
vL16, vT, vH = 1, 2, 3
vNONCE, vSTAMP = 14, 15
RES = 16
R = 112
WEXT = 110
MASK = 64

def stamp(a, name, cyc=False):
    if not STAMPS: return
    if cyc: name = "c:" + name
    if name not in STN: STN.append(name)
    k = STN.index(name)
    a("s_memtime s[96:97]" if cyc else "s_memrealtime s[96:97]")
    a(f"s_mul_i32 s98, {sIT}, 32")
    a(f"s_add_u32 s98, s98, {k}")
    a("s_waitcnt lgkmcnt(0)")
    a(f"s_mov_b32 m0, s98")
    a(f"v_writelane_b32 v{vSTAMP}, s96, m0")

def set_exec(a, mask):
    lo, hi = mask & 0xffffffff, mask >> 32
    if mask <= 64:
        a(f"s_mov_b64 exec, {mask}")
    else:
        a(f"s_mov_b32 exec_lo, {lo:#x}" if lo != 0xffffffff else "s_mov_b32 exec_lo, -1")
        a(f"s_mov_b32 exec_hi, {hi:#x}")

def poll_issue(a, srd, soff, n, vtmp, voff):
    for q in range((n + 63) // 64):
        if q == 0:
            a(f"buffer_load_dword v{vtmp}, v{voff}, {srd}, {soff} offen sc1")
        else:
            a(f"s_add_u32 s61, {soff}, {8192*q}")
            a(f"buffer_load_dword v{vtmp+q}, v{voff}, {srd}, s61 offen sc1")

def poll_test(a, n, vtmp):
    a(f"v_cmp_ne_u32 vcc, {sNONCE}, v{vtmp}")
    for q in range(1, (n + 63) // 64):
        a(f"v_cmp_ne_u32 s[62:63], {sNONCE}, v{vtmp+q}")
        a("s_or_b64 vcc, vcc, s[62:63]")

def poll(a, srd, soff, n, vtmp=4, voff=5, setoff=True):
    l, d = a.nl("Lp"), a.nl("Lpd")
    if setoff: a(f"v_lshlrev_b32 v{voff}, 3, v{vL16}")
    if n < 64: set_exec(a, (1 << n) - 1)
    a("s_mov_b32 s21, 0")
    a.lab(l)
    poll_issue(a, srd, soff, n, vtmp, voff)
    a("s_add_u32 s21, s21, 1")
    a(f"s_cmp_gt_u32 s21, {sLIM}")
    a(f"s_cselect_b32 {sLIM}, 0, {sLIM}")
    a("s_waitcnt vmcnt(0)")
    a(f"s_cbranch_scc1 {d}")
    poll_test(a, n, vtmp)
    a(f"s_cbranch_vccnz {l}")
    a.lab(d)
    if n < 64: a("s_mov_b64 exec, -1")

def lstore(a, insts):
    l, e = a.nl("Ls"), a.nl("Lse")
    a(f"s_cmp_eq_u32 {sLOC}, 1")
    a(f"s_cbranch_scc1 {l}")
    for i in insts: a(i + " sc1")
    a(f"s_branch {e}")
    a.lab(l)
    for i in insts: a(i)
    a.lab(e)

def setflag(a, srd, soff, local=False):
    a("s_mov_b64 exec, 1")
    if local: lstore(a, [f"buffer_store_dword v{vNONCE}, off, {srd}, {soff}"])
    else: a(f"buffer_store_dword v{vNONCE}, off, {srd}, {soff} sc1")
    a("s_mov_b64 exec, -1")

def dma(a, srd, sG, n, gstep, lstep, flags=LD, half_last=False):
    for r in range(n):
        if half_last and r == n - 1:
            a("s_mov_b32 exec_hi, 0")
        else:
            a("s_nop 0")
        a(f"buffer_load_dwordx4 v{vL16}, {srd}, {sG} offen{flags} lds")
        if half_last and r == n - 1:
            a("s_mov_b64 exec, -1")
        if r + 1 < n:
            a(f"s_add_u32 m0, m0, {lstep}")
            a(f"s_add_u32 {sG}, {sG}, {gstep}")

def r_loads(a, srd, sOff, k0, k1, flags=""):
    for ks in range(k0, k1):
        if ks == k0 or ks % 4 == 0:
            a(f"s_add_u32 s61, {sOff}, {(ks//4)*4096}")
        a(f"buffer_load_dwordx4 {vr(R+4*ks,4)}, v{vL16}, {srd}, s61 offen offset:{(ks%4)*1024}{flags}")

def cs_dot(a, ks):
    for d in range(4):
        a(f"v_dot2_f32_bf16 v{CS}, v{R+4*ks+d}, s60, v{CS}")

def cs_pack(a, dst):
    a("s_nop 2")
    a(f"v_cvt_pk_bf16_f32 v{dst}, v{CS}, v{CS}")
    a(f"v_lshlrev_b32 v{dst}, 16, v{dst}")
    a(f"v_sub_f32 v{CS}, v{CS}, v{dst}")
    a(f"v_cvt_pk_bf16_f32 v{dst}, v{dst}, v{CS}")

def store_x_and_stats(a, P, sT, sC, tmp, XO, SO, srd):
    a(f"s_mul_i32 s26, {sT}, {XT}")
    a(f"s_lshl_b32 s27, {sC}, 11")
    a("s_add_u32 s26, s26, s27")
    a(f"s_add_u32 s26, s26, {XO:#x}")
    lstore(a, [f"buffer_store_dwordx4 {vr(P,4)}, v{vL16}, {srd}, s26 offen",
               f"buffer_store_dwordx4 {vr(P+4,4)}, v{vL16}, {srd}, s26 offen offset:1024"])
    a(f"v_mov_b32 v{tmp}, 0")
    a(f"v_mov_b32 v{tmp+1}, 0")
    for i in range(8):
        a(f"v_dot2_f32_bf16 v{tmp}, v{P+i}, s60, v{tmp}")
        a(f"v_dot2_f32_bf16 v{tmp+1}, v{P+i}, v{P+i}, v{tmp+1}")
    a(f"v_lshrrev_b32 v{tmp+2}, 2, v{vL16}")
    a(f"s_mul_i32 s26, {sT}, {18*256}")
    a(f"s_lshl_b32 s27, {sC}, 8")
    a("s_add_u32 s26, s26, s27")
    a(f"s_add_u32 s26, s26, {SO:#x}")
    a(f"v_permlane32_swap_b32 v{tmp}, v{tmp+1}")
    a("s_nop 1")
    a(f"v_add_f32 v{tmp}, v{tmp}, v{tmp+1}")
    lstore(a, [f"buffer_store_dword v{tmp}, v{tmp+2}, {srd}, s26 offen"])

def stats_load(a, b, sT, SO):
    a(f"v_lshrrev_b32 v4, 2, v{vL16}")
    a(f"s_mul_i32 s40, {sT}, {18*256}")
    a(f"s_add_u32 s40, s40, {SO:#x}")
    for c in range(18):
        if c == 16: a("s_add_u32 s40, s40, 4096")
        a(f"buffer_load_dword v{b+c}, v4, {IT}, s40 offen offset:{(c%16)*256}{LD}")

def stats_sum(a, b):
    for i in range(9):
        a(f"v_add_f32 v{b+i}, v{b+i}, v{b+9+i}")
    for i, j in ((0, 1), (2, 3), (4, 5), (6, 7), (0, 2), (4, 6), (0, 4), (0, 8)):
        a(f"v_add_f32 v{b+i}, v{b+i}, v{b+j}")

def stats_compute(a, b, xext, rstd):
    a(f"v_mov_b32 v{b+1}, v{b}")
    a("s_nop 1")
    a(f"v_permlane32_swap_b32 v{b}, v{b+1}")
    a("s_nop 1")
    a(f"v_mul_f32 v{b}, {f2u(1.0/576):#x}, v{b}")
    a(f"v_mul_f32 v{b+1}, {f2u(1.0/576):#x}, v{b+1}")
    a(f"v_fma_f32 v{b+1}, -v{b}, v{b}, v{b+1}")
    a(f"v_max_f32 v{b+1}, 0, v{b+1}")
    a(f"v_cvt_pk_bf16_f32 v{xext}, -v{b}, -v{b}")
    a(f"v_mov_b32 v{xext+1}, 0")
    a(f"v_cvt_pk_bf16_f32 v{b+1}, v{b+1}, v{b+1}")
    a(f"v_lshlrev_b32 v{b+1}, 16, v{b+1}")
    a(f"v_add_f32 v{b+1}, {f2u(1e-5):#x}, v{b+1}")
    a(f"v_cvt_pk_bf16_f32 v{b+1}, v{b+1}, v{b+1}")
    a(f"v_lshlrev_b32 v{b+1}, 16, v{b+1}")
    a(f"v_sqrt_f32 v{b+1}, v{b+1}")
    a("s_nop 0")
    a(f"v_cvt_pk_bf16_f32 v{b+1}, v{b+1}, v{b+1}")
    a(f"v_lshlrev_b32 v{b+1}, 16, v{b+1}")
    a(f"v_rcp_f32 v{rstd}, v{b+1}")
    a("s_nop 0")

def rstd_bcast(a, rstd, dst):
    a(f"s_lshl_b32 s27, {W}, 8")
    a(f"s_add_u32 s27, s27, {L_MISC}")
    a(f"v_lshl_add_u32 v6, v{vT}, 2, s27")
    a(f"ds_write_b32 v6, v{rstd}")
    a(f"v_lshl_add_u32 v6, v{vH}, 4, s27")
    a("s_waitcnt lgkmcnt(0)")
    for q in range(4):
        a(f"ds_read_b128 {vr(dst+4*q,4)}, v6 offset:{32*q}")

ACC = 24
XB_ = 56
STR = 88
CS = 106
DEPTH = 8
XEXT = 8
RSTD = 12

def xaddr(a, dst, base):
    l, e = a.nl("Lxa"), a.nl("Lxe")
    a(f"s_cmp_eq_u32 {sIT}, 0")
    a(f"s_cbranch_scc1 {l}")
    a(f"v_add_u32 v{dst}, {base}, v{vL16}")
    for q in range(1, 4):
        a(f"v_add_u32 v{dst+q}, {1024*q}, v{dst}")
    a(f"s_branch {e}")
    a.lab(l)
    a(f"v_bfe_u32 v4, v{vT}, 1, 3")
    a(f"v_xor_b32 v4, v4, v{vH}")
    a(f"v_lshlrev_b32 v{dst+3}, 7, v{vT}")
    a(f"v_add_u32 v{dst+3}, {base}, v{dst+3}")
    for q in range(4):
        if q: a(f"v_xor_b32 v4, {(2*q) ^ (2*q-2)}, v4")
        a(f"v_lshl_add_u32 v{dst+q}, v4, 4, v{dst+3}")
    a.lab(e)

def gemm_stage(a, bases, k0, k1, swap, first_zero, cs=False, pre=None, quad=False):
    TT = len(bases)
    items = [(ks, t) for ks in range(k0, k1) for t in range(TT)]
    n = len(items); depth = DEPTH
    def rd(i):
        ks, t = items[i]
        if quad: a(f"ds_read_b128 {vr(XB_+4*(i%depth),4)}, v{bases[t]+(ks&3)} offset:{(ks>>2)*4096}")
        else: a(f"ds_read_b128 {vr(XB_+4*(i%depth),4)}, v{bases[t]} offset:{ks*1024}")
    if pre: pre()
    for i in range(depth - 1): rd(i)
    if cs: a(f"s_cmp_eq_u32 {sIT}, 1")
    for i in range(n):
        ks, t = items[i]
        if i + depth - 1 < n:
            rd(i + depth - 1); out = depth - 1
        else:
            out = n - 1 - i
        if cs and t == 0 and ks % 4 == 0:
            l = a.nl("Lcs")
            a(f"s_cbranch_scc1 {l}")
            a(f"s_waitcnt vmcnt({32 - ks})")
            for k in range(ks, ks + 4): cs_dot(a, k)
            if ks == 32: cs_pack(a, WEXT)
            a.lab(l)
        a(f"s_waitcnt lgkmcnt({out})")
        acc = vr(ACC + 16 * t, 16); w = vr(R + 4 * ks, 4); x = vr(XB_ + 4 * (i % depth), 4)
        c = "0" if (first_zero and ks == 0) else acc
        a(f"v_mfma_f32_32x32x16_bf16 {acc}, {x}, {w}, {c}" if swap else f"v_mfma_f32_32x32x16_bf16 {acc}, {w}, {x}, {c}")

def pack(a, base, n=8, dst=None):
    dst = base if dst is None else dst
    for p in range(n):
        a(f"v_cvt_pk_bf16_f32 v{dst+p}, v{base+2*p}, v{base+2*p+1}")

def gen_start(a):
    a("s_cmp_ge_u32 s2, 256")
    a("s_cbranch_scc1 L_end")
    a("s_load_dwordx16 s[32:47], s[0:1], 0")
    a("s_load_dwordx4 s[48:51], s[0:1], 64")
    a("s_load_dwordx2 s[4:5], s[0:1], 80")
    a("s_memrealtime s[22:23]")
    a("v_lshrrev_b32 v4, 6, v0")
    a("v_and_b32 v5, 63, v0")
    a("v_readfirstlane_b32 s3, v4")
    a(f"v_lshlrev_b32 v{vL16}, 4, v5")
    a(f"v_and_b32 v{vT}, 31, v5")
    a(f"v_lshrrev_b32 v{vH}, 5, v5")
    a(f"s_mov_b32 s6, {WS_SIZE:#x}")
    a("s_mov_b32 s7, 0x20000")
    a("s_mov_b32 s11, 0x20000")
    a(f"s_mov_b32 s18, {WS_SIZE-2*ITS:#x}")
    a("s_mov_b32 s19, 0x20000")
    a(f"s_and_b32 {sX}, s2, 7")
    a(f"s_lshr_b32 {sI}, s2, 3")
    a(f"s_mov_b32 {sIT}, 0")
    a(f"s_mov_b32 {sLIM}, 200000")
    a(f"s_mov_b32 {sLOC}, 0")
    a(f"v_mov_b32 v{vSTAMP}, 0")
    a(f"v_mov_b32 v{WEXT+1}, 0")
    a(f"v_lshlrev_b32 v4, 2, v{vH}")
    a(f"v_sub_u32 v4, v{vT}, v4")
    for r in range(16):
        a(f"v_cmp_le_i32 s[{MASK+2*r}:{MASK+2*r+1}], {(r&3)+8*(r>>2)}, v4")
    a("s_waitcnt lgkmcnt(0)")
    a("s_mov_b32 s16, s4")
    a("s_mov_b32 s17, s5")
    a("s_mov_b32 s56, s50")
    a("s_mov_b32 s57, s51")
    a("s_mov_b32 s58, 256")
    a("s_mov_b32 s59, 0x20000")
    a("s_mov_b32 s52, s32")
    a("s_mov_b32 s53, s33")
    a(f"s_mov_b32 s54, {2048*1152}")
    a("s_mov_b32 s55, 0x20000")
    a("s_mov_b32 s60, 0x3f803f80")
    a(f"s_or_b32 s24, s2, {W}")
    a("s_cmp_lg_u32 s24, 0")
    a("s_cbranch_scc1 L_nononce")
    a("s_or_b32 s22, s22, 1")
    a("v_mov_b32 v4, s22")
    a("s_mov_b64 exec, 1")
    a("buffer_store_dword v4, off, s[56:59], 0 sc1")
    a("s_mov_b64 exec, -1")
    a.lab("L_nononce")
    stamp(a, "start")

X0 = "s[52:55]"
def gather(a, vaddr, rs, dst, tmp):
    for j in range(8):
        a(f"ds_read_u16 v{tmp+j}, v{vaddr} offset:{j*rs}")
def gpack(a, dst, tmp):
    for d in range(4):
        a(f"v_lshl_or_b32 v{dst+d}, v{tmp+2*d+1}, 16, v{tmp+2*d}")

def x0_dma(a):
    a("s_call_b64 s[30:31], L_x0")

def x0_sub(a):
    a.lab("L_x0")
    a(f"s_and_b32 s24, {sI}, 3")
    a("s_lshl_b32 s24, s24, 1")
    a(f"s_lshl_b32 s25, {sX}, 3")
    a("s_add_u32 s24, s24, s25")
    a(f"s_mul_i32 s24, s24, {XT}")
    a(f"s_mul_i32 s25, {W}, {8*1152}")
    a("s_add_u32 s24, s24, s25")
    a(f"s_lshr_b32 s25, {W}, 2")
    a(f"s_mul_i32 s25, s25, {XT}")
    a(f"s_and_b32 s26, {W}, 3")
    a("s_lshl_b32 s27, s26, 10")
    a("s_add_u32 s25, s25, s27")
    a(f"s_add_u32 m0, s25, {L_XA}")
    a("s_and_b32 s26, s26, 1")
    a("s_lshl_b32 s26, s26, 2")
    a(f"v_lshrrev_b32 v13, 7, v{vL16}")
    a("v_lshrrev_b32 v9, 1, v13")
    a("v_add_u32 v9, s26, v9")
    a(f"v_bfe_u32 v8, v{vL16}, 4, 3")
    a("v_xor_b32 v9, v8, v9")
    a("v_mul_u32_u24 v13, 1152, v13")
    a("v_lshl_add_u32 v13, v9, 4, v13")
    for kq in range(9):
        a(f"buffer_load_dwordx4 v13, {X0}, s24 offen lds")
        if kq < 8:
            a("s_add_u32 m0, m0, 4096")
            a("s_add_u32 s24, s24, 128")
    a("s_waitcnt vmcnt(9)")
    a("s_barrier")
    a("s_setpc_b64 s[30:31]")

def prep_flag(a):
    a("s_lshl_b32 s22, s2, 7")
    a(f"s_add_u32 s22, s22, {FPREP:#x}")
    a("s_getreg_b32 s23, hwreg(HW_REG_XCC_ID)")
    a(f"v_mov_b32 v4, v{vNONCE}")
    a("v_mov_b32 v5, s23")
    a("s_mov_b64 exec, 1")
    a(f"buffer_store_dwordx2 v[4:5], off, {WS}, s22 sc1")
    a("s_mov_b64 exec, -1")

def gen_prep(a):
    G0, P0 = 24, 64
    a(f"v_and_b32 v4, 0x13, v{vT}")
    a(f"v_and_b32 v5, 4, v{vT}")
    a("v_lshl_or_b32 v4, v5, 1, v4")
    a(f"v_and_b32 v5, 8, v{vT}")
    a("v_lshrrev_b32 v5, 1, v5")
    a("v_or_b32 v12, v4, v5")
    a("v_lshlrev_b32 v12, 1, v12")
    a(f"v_mov_b32 v11, {LOOB:#x}")
    a(f"s_cmp_ge_u32 s2, {NPREP}")
    a("s_cbranch_scc1 L_pn")
    a("s_cmp_ge_u32 s2, 180")
    a("s_cbranch_scc1 L_po")
    a("s_cmp_ge_u32 s2, 36")
    a("s_cbranch_scc1 L_pb")
    a("s_mov_b32 s8, s34")
    a("s_mov_b32 s9, s35")
    a(f"s_mov_b32 s10, {576*1152}")
    a(f"s_mul_i32 s22, s2, {16*1152}")
    a(f"s_lshl_b32 s23, {W}, 10")
    a("s_add_u32 s22, s22, s23")
    a(f"s_add_u32 m0, s23, {L_PREP}")
    dma(a, AUX, "s22", 2, 8192, 8192, flags="")
    a(f"s_cmp_ge_u32 {W}, 4")
    a("s_cbranch_scc1 L_pa1")
    a(f"s_cmp_ge_u32 {W}, 2")
    a("s_cbranch_scc1 L_pa0")
    a("s_add_u32 m0, m0, 8192")
    a("s_add_u32 s22, s22, 8192")
    dma(a, AUX, "s22", 1, 0, 0, flags="")
    a("s_branch L_pa1")
    a.lab("L_pa0")
    a(f"s_cmp_eq_u32 {W}, 2")
    a("s_cselect_b32 s8, s36, s38")
    a("s_cselect_b32 s9, s37, s39")
    a(f"s_mov_b32 s10, {576*36}")
    a("s_mul_i32 s22, s2, 576")
    a("s_add_u32 m0, m0, 8192")
    dma(a, AUX, "s22", 1, 0, 0, flags="")
    a.lab("L_pa1")
    x0_dma(a)
    a(f"v_mul_u32_u24 v10, {8*1152}, v{vH}")
    a(f"v_add_u32 v10, {L_PREP}, v10")
    for r in range(3):
        a(f"s_add_u32 s22, {W}, {8*r}")
        a("s_mul_i32 s23, s22, 86")
        a("s_lshr_b32 s23, s23, 8")
        a("s_mul_i32 s24, s23, 3")
        a("s_sub_u32 s24, s22, s24")
        a("s_mul_i32 s23, s23, 144")
        a("s_mul_i32 s25, s24, 72")
        a("s_cmp_eq_u32 s24, 2")
        a("s_cselect_b32 s25, 32, s25")
        a("s_cselect_b32 s26, 1, 4")
        a("s_cselect_b32 s27, 1, 15")
        a("s_cselect_b32 s28, 8, 32")
        a("s_add_u32 s23, s23, s25")
        a(f"v_lshrrev_b32 v4, s26, v{vT}")
        a("v_mul_u32_u24 v4, 36, v4")
        a(f"v_and_b32 v5, s27, v{vT}")
        a("v_lshl_add_u32 v4, v5, 1, v4")
        a("v_add3_u32 v4, v4, v10, s23")
        a(f"v_cmp_gt_u32 vcc, s28, v{vT}")
        a("s_nop 1")
        a("v_cndmask_b32 v4, v11, v4, vcc")
        gather(a, 4, 1152, P0 + 4 * r, G0 + 8 * r)
    a(f"v_lshlrev_b32 v4, 1, v{vT}")
    a(f"s_cmp_eq_u32 {W}, 1")
    a("s_cselect_b64 vcc, -1, 0")
    a(f"s_lshl_b32 s23, {W}, 10")
    a(f"s_add_u32 s23, s23, {L_PREP+18432}")
    a("v_cndmask_b32 v4, v4, v12, vcc")
    a(f"v_mul_u32_u24 v5, {8*36}, v{vH}")
    a("v_add3_u32 v4, v4, v5, s23")
    a(f"v_cmp_gt_u32 vcc, 18, v{vT}")
    a("s_nop 1")
    a("v_cndmask_b32 v4, v11, v4, vcc")
    a("s_waitcnt lgkmcnt(0)")
    gather(a, 4, 36, P0 + 12, G0 + 24)
    a(f"s_mul_i32 s22, {W}, {WCT}")
    a("s_lshl_b32 s23, s2, 10")
    a("s_add_u32 s22, s22, s23")
    a(f"s_add_u32 s22, s22, {WA_OFF:#x}")
    for r in range(3):
        gpack(a, P0 + 4 * r, G0 + 8 * r)
        a(f"buffer_store_dwordx4 {vr(P0+4*r,4)}, v{vL16}, {WS}, s22 offen sc1")
        a(f"s_add_u32 s22, s22, {8*WCT}")
    a(f"s_cmp_ge_u32 {W}, 2")
    a("s_cbranch_scc1 L_prep_done")
    a("s_waitcnt lgkmcnt(0)")
    gpack(a, P0 + 12, G0 + 24)
    a(f"buffer_store_dwordx4 {vr(P0+12,4)}, v{vL16}, {WS}, s22 offen sc1")
    a("s_branch L_prep_done")
    a.lab("L_pb")
    a("s_mov_b32 s8, s44")
    a("s_mov_b32 s9, s45")
    a(f"s_mov_b32 s10, {576*3456}")
    a("s_sub_u32 s28, s2, 36")
    a("s_and_b32 s29, s28, 3")
    a("s_lshr_b32 s28, s28, 2")
    a(f"s_mul_i32 s22, s28, {16*3456}")
    a("s_mul_i32 s23, s29, 288")
    a("s_add_u32 s22, s22, s23")
    a(f"s_lshl_b32 s23, {W}, 10")
    a(f"s_add_u32 m0, s23, {L_PREP}")
    for r in range(2):
        a(f"v_add_u32 v4, {512*r}, v0")
        a("v_mul_u32_u24 v5, 607, v4")
        a("v_lshrrev_b32 v5, 15, v5")
        a("v_mul_u32_u24 v6, 54, v5")
        a("v_sub_u32 v4, v4, v6")
        a("v_mul_u32_u24 v6, 57, v4")
        a("v_lshrrev_b32 v6, 10, v6")
        a(f"v_mul_u32_u24 v6, {1152-288}, v6")
        a("v_lshl_add_u32 v4, v4, 4, v6")
        a("v_mul_u32_u24 v5, 3456, v5")
        a("v_add_u32 v4, v4, v5")
        a(f"buffer_load_dwordx4 v4, {AUX}, s22 offen lds")
        if r == 0: a("s_add_u32 m0, m0, 8192")
    x0_dma(a)
    a(f"v_mul_u32_u24 v10, {8*864}, v{vH}")
    a(f"s_mul_i32 s23, {W}, 36")
    a(f"s_add_u32 s23, s23, {L_PREP}")
    a("v_add_u32 v10, s23, v10")
    a(f"v_lshrrev_b32 v4, 4, v{vT}")
    a("v_mul_u32_u24 v4, 288, v4")
    a(f"v_and_b32 v5, 15, v{vT}")
    a("v_lshl_add_u32 v4, v5, 1, v4")
    a("v_add_u32 v4, v4, v10")
    gather(a, 4, 864, P0, G0)
    a("v_add_u32 v4, 576, v12")
    a(f"v_cmp_gt_u32 vcc, 18, v{vT}")
    a(f"v_bfe_u32 v5, v{vT}, 1, 1")
    a("v_mul_u32_u24 v5, 288, v5")
    a("v_cndmask_b32 v4, v11, v4, vcc")
    a(f"v_and_b32 v6, 1, v{vT}")
    a("v_lshl_add_u32 v5, v6, 1, v5")
    a(f"v_lshrrev_b32 v6, 2, v{vT}")
    a("v_cmp_eq_u32 vcc, 6, v6")
    a("v_add_u32 v5, 32, v5")
    a("s_nop 0")
    a("v_cndmask_b32 v4, v4, v5, vcc")
    a("v_add_u32 v4, v4, v10")
    gather(a, 4, 864, P0 + 4, G0 + 8)
    a("s_lshl_b32 s22, s29, 3")
    a(f"s_add_u32 s22, s22, {W}")
    a(f"s_mul_i32 s22, s22, {2*WCT}")
    a("s_lshl_b32 s23, s28, 10")
    a("s_add_u32 s22, s22, s23")
    a(f"s_add_u32 s22, s22, {WB_OFF:#x}")
    a("s_mov_b32 s100, s22")
    a(f"s_mov_b32 s101, {WCT}")
    a("s_waitcnt lgkmcnt(0)")
    gpack(a, RES, G0)
    gpack(a, RES + 4, G0 + 8)
    a("s_branch L_prep_done")
    a.lab("L_po")
    a("s_cmp_ge_u32 s2, 216")
    a("s_cselect_b32 s8, s46, s40")
    a("s_cselect_b32 s9, s47, s41")
    a("s_cselect_b32 s28, 36, 0")
    a(f"s_cselect_b32 s29, {WOB_OFF>>20}, {WOA_OFF>>20}")
    a(f"s_mov_b32 s10, {576*1152}")
    a("s_sub_u32 s28, s2, s28")
    a("s_sub_u32 s28, s28, 180")
    a(f"s_mul_i32 s22, s28, {18*1152}")
    a("s_sub_u32 s23, s28, 32")
    a(f"s_mul_i32 s23, s23, {144*1152}")
    a(f"s_add_u32 s23, s23, {16*1152}")
    a("s_cmp_ge_u32 s28, 32")
    a("s_cselect_b32 s22, s23, s22")
    a(f"s_cselect_b32 s24, {18*1152-2304}, 0")
    a(f"s_lshl_b32 s23, {W}, 10")
    a(f"s_add_u32 m0, s23, {L_PREP}")
    for r in range(3):
        if r == 2:
            a(f"s_cmp_ge_u32 {W}, 2")
            a("s_cbranch_scc1 L_po1")
        a(f"v_add_u32 v4, {512*r}, v0")
        a("v_mul_u32_u24 v5, 1821, v4")
        a("v_lshrrev_b32 v5, 18, v5")
        a("v_mul_lo_u32 v5, v5, s24")
        a("v_lshl_add_u32 v4, v4, 4, v5")
        a(f"buffer_load_dwordx4 v4, {AUX}, s22 offen lds")
        if r < 2: a("s_add_u32 m0, m0, 8192")
    a.lab("L_po1")
    x0_dma(a)
    a(f"v_mul_u32_u24 v10, {8*1152}, v{vH}")
    a(f"s_lshl_b32 s23, {W}, 6")
    a(f"s_add_u32 s23, s23, {L_PREP}")
    a("v_add3_u32 v4, v10, v12, s23")
    for r in range(3):
        gather(a, 4, 1152, P0 + 4 * r, G0 + 8 * r)
        a("v_add_u32 v4, 512, v4")
        if r == 1: a("s_waitcnt lgkmcnt(0)")
    a("s_lshl_b32 s29, s29, 20")
    a(f"s_mul_i32 s22, {W}, {WCT}")
    a("s_lshl_b32 s23, s28, 10")
    a("s_add_u32 s22, s22, s23")
    a("s_add_u32 s22, s22, s29")
    a("s_mov_b32 s100, s22")
    a(f"s_mov_b32 s101, {8*WCT}")
    a("s_waitcnt lgkmcnt(0)")
    gpack(a, RES, G0)
    gpack(a, RES + 4, G0 + 8)
    gpack(a, R, G0 + 16)
    a("s_branch L_prep_done")
    a.lab("L_pn")
    x0_dma(a)
    a.lab("L_prep_done")
    stamp(a, "p_stored")
    a("s_mov_b32 s8, s48")
    a("s_mov_b32 s9, s49")
    a(f"s_mov_b32 s10, {2048*1152}")
    a(f"v_mov_b32 v5, {L_FLAG}")
    a(f"s_cmp_lg_u32 {W}, 7")
    a("s_cbranch_scc1 L_pd_w")
    a("s_mov_b32 s21, 0")
    a.lab("L_pd_poll")
    a("buffer_load_dword v4, off, s[56:59], 0 sc1")
    a("s_add_u32 s21, s21, 1")
    a(f"s_cmp_gt_u32 s21, {sLIM}")
    a("s_waitcnt vmcnt(0)")
    a("s_cbranch_scc1 L_pd_got")
    a("v_cmp_eq_u32 vcc, 0, v4")
    a("s_cbranch_vccnz L_pd_poll")
    a.lab("L_pd_got")
    a("ds_write_b32 v5, v4")
    a.lab("L_pd_w")
    a("s_waitcnt vmcnt(0) lgkmcnt(0)")
    a("s_barrier")
    a(f"ds_read_b32 v{vNONCE}, v5")
    a("s_waitcnt lgkmcnt(0)")
    a(f"v_readfirstlane_b32 {sNONCE}, v{vNONCE}")
    a(f"s_cmp_lg_u32 {W}, 3")
    a("s_cbranch_scc1 L_pd_noflag")
    a("s_cmp_ge_u32 s2, 36")
    a("s_cbranch_scc1 L_pd_noflag")
    prep_flag(a)
    a.lab("L_pd_noflag")
    stamp(a, "prep_done")

def wa_role(a, skip):
    a(f"s_cmp_lt_u32 {W}, 4")
    a(f"s_cbranch_scc1 {skip}")
    a(f"s_lshr_b32 s23, {sI}, 2")
    a("s_mul_i32 s22, s23, 3")
    a(f"s_add_u32 s22, s22, {W}")
    a("s_sub_u32 s22, s22, 5")
    a(f"s_cmp_lg_u32 {W}, 4")
    l = a.nl("Lwa")
    a(f"s_cbranch_scc1 {l}")
    a("s_and_b32 s24, s23, 2")
    a("s_cmp_eq_u32 s24, 0")
    a(f"s_cbranch_scc1 {skip}")
    a("s_lshr_b32 s22, s23, 2")
    a("s_add_u32 s22, s22, 24")
    a.lab(l)

def wa_issue(a):
    a(f"s_mul_i32 s22, s22, {WCT}")
    a(f"s_add_u32 s22, s22, {WA_OFF:#x}")
    r_loads(a, WS, "s22", 0, 36)

QM = 24
QE = 28
S_ = [36, 52]
OC = 68
KM = 84
KE = 88
VA, VB = 92, 96
vKa, vKe, vVa = 8, 9, 10

def body(a, cur, rdKM=None, rdKE=None, rdVa=None, rdVb=None, u=0, qk=True, pv1=True, cinit=None, ke64=True, pvwait=2):
    s, n = S_[cur], S_[cur ^ 1]
    e = lambda r: a(f"v_exp_f32 v{s+r}, v{s+r}")
    c = lambda p: a(f"v_cvt_pk_bf16_f32 v{s+p+(4 if p >= 4 else 0)}, v{s+2*p}, v{s+2*p+1}")
    e(0); e(1)
    if pv1:
        a(f"s_waitcnt lgkmcnt({pvwait})")
        a(f"v_mfma_f32_32x32x16_bf16 {vr(OC,16)}, {vr(VB,4)}, {vr(n+8,4)}, {vr(OC,16)}")
    if rdVb is not None:
        a(f"ds_read_b128 {vr(VB,4)}, v{vVa} offset:{rdVb}")
    if cinit is not None:
        cinit(n)
    e(2); e(3); e(4); c(0)
    if qk:
        a("s_waitcnt lgkmcnt(2)")
        a(f"v_mfma_f32_32x32x16_bf16 {vr(n,16)}, {vr(KM,4)}, {vr(QM,4)}, {vr(n,16) if cinit is not None else 0}")
    if rdKM is not None:
        a(f"ds_read_b128 {vr(KM,4)}, v{vKa} offset:{rdKM}")
    e(5); e(6); e(7); c(1); c(2)
    if qk:
        a(f"v_mfma_f32_32x32x8_bf16 {vr(n,16)}, {vr(KE,2)}, {vr(QE+2*u,2)}, {vr(n,16)}")
    if rdKE is not None:
        a(f"ds_read_b64 {vr(KE,2)}, v{vKe} offset:{rdKE}" if ke64 else f"ds_read_b32 v{KE}, v{vKe} offset:{rdKE}")
    c(3); e(8); e(9); e(10); e(11); c(4)
    later = (rdVb is not None) + (rdKM is not None) + (rdKE is not None)
    a(f"s_waitcnt lgkmcnt({min(later, 2)})")
    a(f"v_mfma_f32_32x32x16_bf16 {vr(OC,16)}, {vr(VA,4)}, {vr(s,4)}, {vr(OC,16)}")
    if rdVa is not None:
        a(f"ds_read_b128 {vr(VA,4)}, v{vVa} offset:{rdVa}")
    e(12); e(13); e(14); e(15); c(5); c(6); c(7)

def tail_pv1(a, cur):
    a("s_waitcnt lgkmcnt(0)")
    a("s_nop 0")
    a(f"v_mfma_f32_32x32x16_bf16 {vr(OC,16)}, {vr(VB,4)}, {vr(S_[cur]+8,4)}, {vr(OC,16)}")

def v_addr(a, base):
    a(f"v_mul_u32_u24 v{vVa}, 304, v{vH}")
    a(f"v_min_u32 v4, 18, v{vT}")
    a(f"v_lshl_add_u32 v{vVa}, v4, 4, v{vVa}")
    a(f"v_add_u32 v{vVa}, {base}, v{vVa}")
    a(f"v_cmp_ge_u32 vcc, 18, v{vT}")
    a(f"v_cmp_eq_u32 s[62:63], 28, v{vT}")
    a("s_or_b64 vcc, vcc, s[62:63]")
    a(f"v_mov_b32 v4, {LOOB:#x}")
    a("s_nop 0")
    a(f"v_cndmask_b32 v{vVa}, v4, v{vVa}, vcc")

def attn_finish(a, tag, sT, sHead, OO):
    a("s_nop 12")
    a(f"v_cmp_eq_u32 vcc, 0, v{vH}")
    a("s_nop 1")
    a(f"v_cndmask_b32 v4, v{OC+12}, v{OC+10}, vcc")
    a(f"v_cmp_le_f32 vcc, {f2u(2.0**-60):#x}, v4")
    a(f"v_mov_b32 v5, {f2u(2.0**60):#x}")
    a("v_cmp_le_f32 s[62:63], v4, v5")
    a("s_and_b64 vcc, vcc, s[62:63]")
    a("s_cmp_eq_u64 vcc, -1")
    a(f"s_cbranch_scc0 L_{tag}_slow")
    a.lab(f"L_{tag}_fin")
    a("v_rcp_f32 v4, v4")
    a("s_nop 0")
    for r in range(10):
        a(f"v_mul_f32 v{OC+r}, v4, v{OC+r}")
    pack(a, OC, 5)
    a(f"s_mul_i32 s24, {sT}, {XT}")
    a(f"s_add_u32 s24, s24, {OO:#x}")
    a(f"s_lshl_b32 s27, {sHead}, 10")
    a("s_add_u32 s27, s27, s24")
    a(f"s_lshr_b32 s25, {sHead}, 2")
    a("s_lshl_b32 s25, s25, 9")
    a(f"s_and_b32 s26, {sHead}, 3")
    a("s_lshl_b32 s26, s26, 2")
    a("s_add_u32 s25, s25, s26")
    a("s_add_u32 s25, s25, s24")
    a(f"s_add_u32 s25, s25, {32*1024}")
    a(f"v_lshlrev_b32 v4, 30, v{vH}")
    a(f"v_lshl_add_u32 v4, v{vT}, 4, v4")
    lstore(a, [f"buffer_store_dwordx4 {vr(OC,4)}, v{vL16}, {IT}, s27 offen",
               f"buffer_store_dword v{OC+4}, v4, {IT}, s25 offen"])

def mask_init(a, dst, diag):
    for r in range(16):
        m = f"s[{MASK+2*r}:{MASK+2*r+1}]"
        if diag: a(f"v_cndmask_b32 v{dst+r}, v11, 0, {m}")
        else:    a(f"v_cndmask_b32 v{dst+r}, 0, v11, {m}")

def slow_qk(a, u, cin):
    s = S_[0]
    a("s_waitcnt lgkmcnt(0)")
    a("s_nop 1")
    a(f"v_mfma_f32_32x32x16_bf16 {vr(s,16)}, {vr(KM,4)}, {vr(QM,4)}, {vr(s,16) if cin else 0}")
    a(f"v_mfma_f32_32x32x8_bf16 {vr(s,16)}, {vr(KE,2)}, {vr(QE+2*u,2)}, {vr(s,16)}")
    a("s_nop 12")

def slow_max(a):
    s = S_[0]
    for i in range(8):
        a(f"v_max3_f32 v7, v{s+2*i}, v{s+2*i+1}, v7")

def slow_pv(a):
    s = S_[0]
    for r in range(16):
        a(f"v_sub_f32 v{s+r}, v{s+r}, v7")
    for r in range(16):
        a(f"v_exp_f32 v{s+r}, v{s+r}")
    a("s_nop 0")
    pack(a, s, 8)
    a("s_nop 1")
    a(f"v_mfma_f32_32x32x16_bf16 {vr(OC,16)}, {vr(VA,4)}, {vr(s,4)}, {vr(OC,16)}")
    a(f"v_mfma_f32_32x32x16_bf16 {vr(OC,16)}, {vr(VB,4)}, {vr(s+4,4)}, {vr(OC,16)}")
    a("s_nop 7")

def slow_mid(a):
    a("v_mov_b32 v6, v7")
    a("s_nop 1")
    a("v_permlane32_swap_b32 v6, v7")
    a("s_nop 1")
    a("v_max_f32 v7, v6, v7")
    for r in range(16):
        a(f"v_mov_b32 v{OC+r}, 0")

def slow_end(a, tag):
    a("s_nop 12")
    a(f"v_cmp_eq_u32 vcc, 0, v{vH}")
    a("s_nop 1")
    a(f"v_cndmask_b32 v4, v{OC+12}, v{OC+10}, vcc")
    a(f"s_branch L_{tag}_fin")

def out_role(a):
    a(f"s_and_b32 s42, {sI}, 7")
    a(f"s_lshl_b32 s43, {sX}, 3")
    a("s_add_u32 s42, s42, s43")
    a(f"s_lshr_b32 s44, {sI}, 3")
    a("s_mul_i32 s43, s44, 9")
    a("s_add_u32 s43, s43, 1")
    a("s_lshr_b32 s43, s43, 1")
    a(f"s_add_u32 s43, s43, {W}")
    a("s_and_b32 s44, s44, 1")
    a("s_sub_u32 s44, 5, s44")

def gen_pha(a, slow):
    a.lab("L_it")
    stamp(a, "A_begin")
    a(f"s_and_b32 s45, {sI}, 3")
    a("s_lshl_b32 s45, s45, 1")
    a(f"s_lshl_b32 s46, {sX}, 3")
    a("s_add_u32 s45, s45, s46")
    a(f"s_lshr_b32 s46, {sI}, 2")
    a(f"s_cmp_ge_u32 {W}, 5")
    a("s_cbranch_scc1 L_A_q2")
    a(f"s_cmp_eq_u32 {W}, 4")
    a("s_cbranch_scc1 L_A_kv")
    a(f"s_cmp_ge_u32 {W}, 2")
    a("s_cbranch_scc1 L_A_st")
    a(f"s_add_u32 s22, s45, {W}")
    a(f"s_cmp_eq_u32 {sIT}, 0")
    a("s_cbranch_scc1 L_A_ld2")
    a("s_lshl_b32 s23, s22, 9")
    a(f"s_add_u32 s23, s23, {FXA:#x}")
    poll(a, IT, "s23", 4)
    stamp(a, "A_xflag")
    a(f"s_mul_i32 s22, s22, {XT}")
    a(f"s_add_u32 s22, s22, {XA:#x}")
    a(f"s_mul_i32 s23, {W}, {XT}")
    a(f"s_add_u32 m0, s23, {L_XA}")
    dma(a, IT, "s22", 36, 1024, 1024)
    a.lab("L_A_ld2")
    for n in (24, 12, 0):
        a(f"s_waitcnt vmcnt({n})")
        a("s_barrier")
        if n == 24: stamp(a, "A_bar1")
    stamp(a, "A_xdone")
    a(f"s_cmp_lg_u32 {W}, 0")
    a("s_cbranch_scc1 L_A_q")
    a(f"s_lshl_b32 s23, {sX}, 11")
    a(f"s_add_u32 s23, s23, {FKAL:#x}")
    poll(a, IT, "s23", 16)
    stamp(a, "A_kvflag")
    a(f"s_mul_i32 s22, {sX}, {BLK}")
    a(f"s_add_u32 s22, s22, {KVA+KVA_SZ:#x}")
    a("s_mov_b32 m0, 0")
    dma(a, IT, "s22", 19, 1024, 1024, half_last=True)
    a("s_waitcnt vmcnt(0)")
    a("s_branch L_A_q")
    a.lab("L_A_idle")
    for n in range(3):
        a("s_barrier")
    a("s_branch L_A_q")
    a.lab("L_A_st")
    a(f"s_sub_u32 s24, {W}, 2")
    a(f"s_cmp_eq_u32 {sIT}, 0")
    a("s_cbranch_scc0 L_A_st1")
    a(f"s_mul_i32 s25, s24, {XT}")
    a(f"s_add_u32 s25, s25, {L_XA}")
    xaddr(a, 40, "s25")
    a(f"v_mov_b32 v{STR}, 0")
    a(f"v_mov_b32 v{STR+1}, 0")
    a("s_mov_b32 s25, 0")
    a.lab("L_A_st0")
    for k in range(12):
        a(f"ds_read_b128 {vr(R+4+4*k,4)}, v{40+(k&3)} offset:{(k>>2)*4096}")
    for k in range(12):
        a(f"s_waitcnt lgkmcnt({11-k})")
        for d in range(4):
            a(f"v_dot2_f32_bf16 v{STR}, v{R+4+4*k+d}, s60, v{STR}")
            a(f"v_dot2_f32_bf16 v{STR+1}, v{R+4+4*k+d}, v{R+4+4*k+d}, v{STR+1}")
    for q in range(4):
        a(f"v_add_u32 v{40+q}, {3*4096}, v{40+q}")
    a("s_add_u32 s25, s25, 1")
    a("s_cmp_lt_u32 s25, 3")
    a("s_cbranch_scc1 L_A_st0")
    a("s_barrier")
    a(f"v_permlane32_swap_b32 v{STR}, v{STR+1}")
    a("s_nop 1")
    a(f"v_add_f32 v{STR}, v{STR}, v{STR+1}")
    a("s_barrier")
    a("s_branch L_A_st2")
    a.lab("L_A_st1")
    a("s_add_u32 s25, s45, s24")
    a("s_barrier")
    stats_load(a, STR, "s25", STA)
    a("s_barrier")
    a("s_waitcnt vmcnt(0)")
    stats_sum(a, STR)
    a.lab("L_A_st2")
    stats_compute(a, STR, XEXT, RSTD)
    a("s_lshl_b32 s24, s24, 8")
    a(f"s_add_u32 s24, s24, {L_MISC}")
    a(f"v_lshl_add_u32 v4, v{vT}, 2, s24")
    a(f"ds_write_b32 v4, v{RSTD}")
    a(f"ds_write_b32 v4, v{XEXT} offset:128")
    a("s_waitcnt lgkmcnt(0)")
    a("s_barrier")
    a("s_branch L_A_q")
    def gemm3(bases, swap, pre, staged):
        a(f"v_mov_b32 v{CS}, 0")
        a(f"v_mov_b32 v{XEXT+1}, 0")
        a(f"v_mov_b32 v{XEXT+3}, 0")
        if staged:
            a("s_barrier")
            gemm_stage(a, bases, 0, 12, swap, True, cs=True, quad=True)
            a("s_barrier")
            gemm_stage(a, bases, 12, 24, swap, False, cs=True, quad=True)
            a("s_barrier")
            gemm_stage(a, bases, 24, 36, swap, False, cs=True, pre=pre, quad=True)
        else:
            for _ in range(3): a("s_barrier")
            gemm_stage(a, bases, 0, 36, swap, True, cs=True, pre=pre, quad=True)
    def first_w():
        l, e = a.nl("Lfw"), a.nl("Lfe")
        a(f"s_cmp_eq_u32 {sIT}, 0")
        a(f"s_cbranch_scc0 {l}")
        a(f"s_mov_b32 s23, {FPREP:#x}")
        poll(a, WS, "s23", 36, vtmp=4, voff=13)
        stamp(a, "A_wflag")
        wa_role(a, l)
        wa_issue(a)
        a(f"s_branch {e}")
        a.lab(l)
        a("s_waitcnt vmcnt(0)")
        a.lab(e)
    a.lab("L_A_kv")
    a("s_and_b32 s24, s46, 2")
    a("s_cmp_eq_u32 s24, 0")
    a("s_cbranch_scc1 L_A_idle")
    a("s_and_b32 s24, s46, 1")
    a("s_add_u32 s47, s45, s24")
    a("s_lshl_b32 s27, s24, 8")
    a(f"s_add_u32 s27, s27, {L_MISC}")
    a(f"s_mul_i32 s24, s24, {XT}")
    a(f"s_add_u32 s24, s24, {L_XA}")
    xaddr(a, 40, "s24")
    a(f"v_lshl_add_u32 v6, v{vT}, 2, s27")
    a(f"v_lshl_add_u32 v5, v{vH}, 4, s27")
    a("s_lshr_b32 s28, s47, 2")
    a(f"s_mul_i32 s28, s28, {GRP}")
    a(f"s_add_u32 s28, s28, {KVA:#x}")
    a("s_and_b32 s29, s47, 3")
    first_w()
    a("s_cmp_ge_u32 s46, 4")
    a("s_cbranch_scc1 L_A_v")
    def pre_k():
        a(f"ds_read_b32 v{RSTD}, v6")
        a(f"ds_read_b32 v{XEXT}, v6 offset:128")
    gemm3([40], False, pre_k, True)
    a(f"v_mfma_f32_32x32x8_bf16 {vr(ACC,16)}, {vr(WEXT,2)}, {vr(XEXT,2)}, {vr(ACC,16)}")
    a("s_lshl_b32 s30, s29, 10")
    a("s_add_u32 s30, s30, s28")
    a(f"s_add_u32 s31, s30, {KVA_SZ}")
    a("s_lshr_b32 s24, s29, 1")
    a("s_lshl_b32 s24, s24, 8")
    a("s_and_b32 s25, s29, 1")
    a("s_lshl_b32 s25, s25, 2")
    a("s_add_u32 s24, s24, s25")
    a("s_add_u32 s24, s24, s28")
    a("s_add_u32 s24, s24, 4096")
    a(f"s_add_u32 s25, s24, {KVA_SZ}")
    a(f"v_lshlrev_b32 v4, 30, v{vH}")
    a(f"v_lshl_add_u32 v4, v{vT}, 3, v4")
    for r in range(10):
        a(f"v_mul_f32 v{ACC+r}, v{RSTD}, v{ACC+r}")
    pack(a, ACC, 5)
    lstore(a, [f"buffer_store_dwordx4 {vr(ACC,4)}, v{vL16}, {IT}, s31 offen", f"buffer_store_dword v{ACC+4}, v4, {IT}, s25 offen"])
    a(f"buffer_store_dwordx4 {vr(ACC,4)}, v{vL16}, {IT}, s30 offen sc1")
    a(f"buffer_store_dword v{ACC+4}, v4, {IT}, s24 offen sc1")
    a("s_mov_b32 s26, 0")
    a("s_branch L_A_kvflag")
    a.lab("L_A_v")
    def pre_v():
        a(f"ds_read_b32 v{XEXT}, v6 offset:128")
        for q in range(4):
            a(f"ds_read_b128 {vr(STR+4*q,4)}, v5 offset:{32*q}")
    gemm3([40], True, pre_v, True)
    a(f"v_mfma_f32_32x32x8_bf16 {vr(ACC,16)}, {vr(XEXT,2)}, {vr(WEXT,2)}, {vr(ACC,16)}")
    a(f"s_mul_i32 s30, s29, {VT}")
    a("s_add_u32 s30, s30, s28")
    a("s_add_u32 s30, s30, 4608")
    a(f"s_add_u32 s31, s30, {KVA_SZ}")
    a(f"v_mul_u32_u24 v4, 304, v{vH}")
    a(f"v_lshl_add_u32 v4, v{vT}, 4, v4")
    a(f"v_mov_b32 v5, {OOB:#x}")
    a(f"v_cmp_ge_u32 vcc, 18, v{vT}")
    a("s_nop 1")
    a("v_cndmask_b32 v4, v5, v4, vcc")
    a("s_nop 1")
    for r in range(16):
        a(f"v_mul_f32 v{ACC+r}, v{STR+r}, v{ACC+r}")
    pack(a, ACC, 8)
    a("s_mov_b32 s24, 0x40000")
    a("s_mov_b32 s25, 0x40000")
    a("s_mov_b64 exec, s[24:25]")
    for p in range(8):
        a(f"v_mov_b32 v{ACC+p}, s60")
    a("s_mov_b64 exec, -1")
    lstore(a, [f"buffer_store_dwordx4 {vr(ACC,4)}, v4, {IT}, s31 offen", f"buffer_store_dwordx4 {vr(ACC+4,4)}, v4, {IT}, s31 offen offset:608"])
    for so in ("s30",):
        a(f"buffer_store_dwordx4 {vr(ACC,4)}, v4, {IT}, {so} offen sc1")
        a(f"buffer_store_dwordx4 {vr(ACC+4,4)}, v4, {IT}, {so} offen offset:608 sc1")
    a("s_mov_b32 s26, 128")
    a.lab("L_A_kvflag")
    a("s_lshl_b32 s24, s47, 8")
    a("s_add_u32 s24, s24, s26")
    a(f"s_add_u32 s25, s24, {FKAL:#x}")
    a(f"s_add_u32 s24, s24, {FKA:#x}")
    a("s_waitcnt vmcnt(2)")
    setflag(a, IT, "s25", local=True)
    stamp(a, "A_kvack")
    a("s_waitcnt vmcnt(1)")
    setflag(a, IT, "s24")
    a("s_branch L_A_q")
    a.lab("L_A_q2")
    xaddr(a, 88, L_XA)
    for q in range(4):
        a(f"v_add_u32 v{92+q}, {XT}, v{88+q}")
    a(f"v_lshlrev_b32 v5, 2, v{vT}")
    a(f"v_add_u32 v5, {L_MISC}, v5")
    first_w()
    def pre_q():
        for t in range(2):
            a(f"ds_read_b32 v{RSTD+t}, v5 offset:{256*t}")
            a(f"ds_read_b32 v{XEXT+2*t}, v5 offset:{256*t+128}")
    gemm3([88, 92], False, pre_q, False)
    for t in range(2):
        a(f"v_mfma_f32_32x32x8_bf16 {vr(ACC+16*t,16)}, {vr(WEXT,2)}, {vr(XEXT+2*t,2)}, {vr(ACC+16*t,16)}")
    for t in range(2):
        a(f"v_mul_f32 v{RSTD+t}, {f2u(QSCALE):#x}, v{RSTD+t}")
    a(f"s_sub_u32 s24, {W}, 5")
    a(f"s_mul_i32 s24, s24, {4*1152}")
    a(f"s_add_u32 s24, s24, {L_Q}")
    a(f"v_add_u32 v4, s24, v{vL16}")
    a(f"v_mul_u32_u24 v5, {4*1152}, v{vH}")
    a(f"v_lshl_add_u32 v5, v{vT}, 2, v5")
    a(f"v_add_u32 v5, {L_Q+1024}, v5")
    a("s_nop 3")
    for t in range(2):
        for r in range(16):
            a(f"v_mul_f32 v{ACC+16*t+r}, v{RSTD+t}, v{ACC+16*t+r}")
        pack(a, ACC + 16 * t, 8)
    stamp(a, "A_qdone")
    a(f"s_cmp_eq_u32 {W}, 7")
    a("s_cbranch_scc1 L_A_qext")
    for t in range(2):
        for hh in range(2):
            a(f"ds_write_b128 v4, {vr(ACC+16*t+4*hh,4)} offset:{(2*hh+t)*1152}")
    a("s_branch L_A_q")
    a.lab("L_A_qext")
    for t in range(2):
        for p in range(2):
            a(f"ds_write_b32 v5, v{ACC+16*t+p} offset:{(2*p+t)*1152}")
    a.lab("L_A_q")
    a("s_waitcnt lgkmcnt(0)")
    a("s_barrier")
    stamp(a, "A_attn0")
    a(f"v_lshlrev_b32 v11, 3, v{vL16}")
    a(f"s_cmp_eq_u32 {sIT}, 0")
    a("s_cbranch_scc1 L_A_defer")
    a.lab("L_A_defer_ret")
    a(f"s_mul_i32 s24, {W}, 1152")
    a(f"s_add_u32 s24, s24, {L_Q}")
    a(f"v_add_u32 v4, s24, v{vL16}")
    a(f"v_lshl_add_u32 v5, v{vT}, 2, s24")
    a(f"ds_read_b128 {vr(QM,4)}, v4")
    a(f"ds_read_b32 v6, v5 offset:1024")
    a(f"v_mov_b32 v{vKa}, v{vL16}")
    a(f"v_lshlrev_b32 v{vKe}, 8, v{vH}")
    a(f"v_lshl_add_u32 v{vKe}, v{vT}, 3, v{vKe}")
    a(f"ds_read_b128 {vr(KM,4)}, v{vKa}")
    a(f"ds_read_b64 {vr(KE,2)}, v{vKe} offset:4096")
    v_addr(a, 4608)
    for r in range(16):
        a(f"v_mov_b32 v{OC+r}, 0")
    a(f"v_cmp_eq_u32 vcc, 0, v{vH}")
    for r in (1, 2, 5, 6):
        a(f"v_mov_b32 v{QE+r}, 0")
    a("s_waitcnt lgkmcnt(0)")
    a(f"v_cndmask_b32 v{QE}, 0, v6, vcc")
    a(f"v_cndmask_b32 v{QE+3}, 0, v6, vcc")
    a(f"v_cndmask_b32 v{QE+4}, v6, 0, vcc")
    a(f"v_cndmask_b32 v{QE+7}, v6, 0, vcc")
    a(f"v_mfma_f32_32x32x16_bf16 {vr(S_[0],16)}, {vr(KM,4)}, {vr(QM,4)}, 0")
    a(f"v_mfma_f32_32x32x8_bf16 {vr(S_[0],16)}, {vr(KE,2)}, {vr(QE,2)}, {vr(S_[0],16)}")
    a(f"ds_read_b128 {vr(KM,4)}, v{vKa} offset:1024")
    a(f"ds_read_b128 {vr(VA,4)}, v{vVa}")
    a(f"s_and_b32 s22, {W}, 1")
    a("s_add_u32 s45, s45, s22")
    a("s_lshl_b32 s46, s46, 2")
    a(f"s_lshr_b32 s22, {W}, 1")
    a("s_add_u32 s46, s46, s22")
    out_role(a)
    a("s_mov_b32 s41, 1")
    body(a, 0, rdKM=2048, rdVa=VT, rdVb=608, u=1, pv1=False)
    body(a, 1, rdKM=3072, rdVa=2*VT, rdVb=VT+608, u=2)
    a(f"s_sub_u32 s22, {W}, 1")
    a("s_cmp_lt_u32 s22, 2")
    a("s_cbranch_scc1 L_A_fetch")
    a.lab("L_A_loop")
    a(f"v_add_u32 v{vKa}, {GRP}, v{vKa}")
    a(f"v_add_u32 v{vKe}, {GRP}, v{vKe}")
    for b in range(4):
        vo = lambda tau: (tau + 4) * VT if tau < 0 else GRP + tau * VT
        body(a, b & 1, rdKM=b * 1024, rdKE=(4096 if b == 0 else None), rdVa=vo(b - 1), rdVb=vo(b - 2) + 608, u=(b + 3) & 3)
    a(f"v_add_u32 v{vVa}, {GRP}, v{vVa}")
    a("s_add_u32 s41, s41, 1")
    a("s_cmp_gt_u32 s41, 9")
    a("s_cbranch_scc0 L_A_stub")
    a.lab("L_A_next")
    a("s_cmp_lt_u32 s41, 16")
    a("s_cbranch_scc1 L_A_loop")
    body(a, 0, rdVa=3*VT, rdVb=2*VT+608, u=3)
    body(a, 1, rdVb=3*VT+608, qk=False, pvwait=1)
    tail_pv1(a, 1)
    stamp(a, "A_attn1")
    stamp(a, "A_attn1", True)
    attn_finish(a, "A", "s45", "s46", OA_)
    a("s_waitcnt vmcnt(0)")
    a("s_barrier")
    a(f"s_cmp_lg_u32 {W}, 0")
    a("s_cbranch_scc1 L_A_end")
    a("s_lshr_b32 s22, s45, 1")
    a("s_lshl_b32 s22, s22, 10")
    a("s_lshl_b32 s23, s46, 5")
    a("s_add_u32 s22, s22, s23")
    a(f"s_add_u32 s22, s22, {FOA:#x}")
    setflag(a, IT, "s22", local=True)
    a.lab("L_A_end")
    stamp(a, "A_end")
    b = slow
    x0_sub(b)
    b.lab("L_A_defer")
    b("s_cmp_lt_u32 s2, 36")
    b("s_cbranch_scc1 L_A_defer_ret")
    b(f"s_cmp_ge_u32 s2, {NPREP}")
    b("s_cbranch_scc1 L_A_defer_ret")
    b(f"buffer_store_dwordx4 {vr(RES,4)}, v{vL16}, {WS}, s100 offen sc1")
    b("s_add_u32 s100, s100, s101")
    b(f"buffer_store_dwordx4 {vr(RES+4,4)}, v{vL16}, {WS}, s100 offen sc1")
    b("s_cmp_lt_u32 s2, 180")
    b("s_cbranch_scc1 L_A_defer_ret")
    b(f"s_cmp_ge_u32 {W}, 2")
    b("s_cbranch_scc1 L_A_defer_ret")
    b("s_add_u32 s100, s100, s101")
    b(f"buffer_store_dwordx4 {vr(R,4)}, v{vL16}, {WS}, s100 offen sc1")
    b("s_branch L_A_defer_ret")
    b.lab("L_A_fetch")
    b(f"s_add_u32 s22, {sX}, {W}")
    b("s_and_b32 s22, s22, 7")
    b("s_lshl_b32 s23, s22, 11")
    b(f"s_add_u32 s23, s23, {FKA:#x}")
    poll(b, IT, "s23", 16, vtmp=4, voff=11, setoff=False)
    b(f"s_mul_i32 s22, s22, {BLK}")
    b(f"s_add_u32 s22, s22, {KVA:#x}")
    b(f"s_mul_i32 m0, {W}, {BLK}")
    dma(b, IT, "s22", 19, 1024, 1024, half_last=True)
    b("s_branch L_A_loop")
    b.lab("L_A_stub")
    b("s_cmp_eq_u32 s41, 2")
    b("s_cbranch_scc0 L_A_stub4")
    b("s_waitcnt vmcnt(0)")
    b("s_barrier")
    stamp(b, "A_n2b")
    b(f"s_cmp_ge_u32 {W}, 3")
    b("s_cbranch_scc1 L_A_fetch")
    b(f"s_or_b32 s22, {W}, {sIT}")
    b("s_cmp_eq_u32 s22, 0")
    b("s_cbranch_scc0 L_A_next")
    b("s_cmp_lt_u32 s2, 36")
    b("s_cbranch_scc1 L_A_next")
    prep_flag(b)
    b("s_branch L_A_next")
    b.lab("L_A_stub4")
    b("s_cmp_lt_u32 s41, 5")
    b("s_cbranch_scc1 L_A_next")
    b("s_cmp_eq_u32 s41, 5")
    b("s_cbranch_scc0 L_A_stub6")
    b(f"s_or_b32 s22, {W}, {sIT}")
    b("s_cmp_eq_u32 s22, 0")
    b("s_cbranch_scc0 L_A_next")
    b(f"s_mov_b32 s22, {FPREP:#x}")
    poll(b, WS, "s22", 256, vtmp=4, voff=11, setoff=False)
    b(f"v_lshlrev_b32 v5, 10, v{vT}")
    b(f"s_lshl_b32 s22, {sX}, 7")
    b(f"s_add_u32 s22, s22, {FPREP:#x}")
    b(f"buffer_load_dword v4, v5, {WS}, s22 offen offset:4 sc1")
    b("s_getreg_b32 s23, hwreg(HW_REG_XCC_ID)")
    b("s_waitcnt vmcnt(0)")
    b("v_cmp_ne_u32 vcc, s23, v4")
    b("s_cmp_eq_u64 vcc, 0")
    b("s_cselect_b32 s22, 1, 0")
    if NOLOCAL: b("s_mov_b32 s22, 0")
    b("v_mov_b32 v4, s22")
    b(f"v_mov_b32 v5, {L_FLAG}")
    b("ds_write_b32 v5, v4 offset:4")
    b("s_waitcnt lgkmcnt(0)")
    b("s_branch L_A_next")
    b.lab("L_A_stub6")
    b("s_cmp_eq_u32 s41, 6")
    b("s_cbranch_scc0 L_A_stub7")
    b("s_waitcnt vmcnt(0)")
    b("s_barrier")
    stamp(b, "A_n4b")
    stamp(b, "A_n4b", True)
    b(f"v_mov_b32 v5, {L_FLAG}")
    b("ds_read_b32 v4, v5 offset:4")
    b("s_waitcnt lgkmcnt(0)")
    b(f"v_readfirstlane_b32 {sLOC}, v4")
    b("s_branch L_A_next")
    b.lab("L_A_stub7")
    b(f"s_mul_i32 s22, s43, {XT}")
    b(f"s_add_u32 s22, s22, {WOA_OFF:#x}")
    b(f"s_cmp_lt_u32 {W}, s44")
    b("s_cbranch_scc1 L_A_stub5c")
    b(f"s_cmp_eq_u32 {W}, 4")
    b("s_cbranch_scc1 L_A_next")
    b(f"s_cmp_eq_u32 {W}, 7")
    b("s_cbranch_scc1 L_A_next")
    b(f"s_lshl_b32 s22, {sI}, 1")
    b(f"s_add_u32 s22, s22, {W}")
    b("s_sub_u32 s22, s22, 5")
    b(f"s_mul_i32 s22, s22, {WCT}")
    b(f"s_add_u32 s22, s22, {WB_OFF:#x}")
    b.lab("L_A_stub5c")
    for n in (5, 6, 7):
        if n < 7:
            b(f"s_cmp_eq_u32 s41, {n+2}")
            b(f"s_cbranch_scc0 L_A_stubw{n+1}")
        r_loads(b, WS, "s22", 12 * (n - 5), 12 * (n - 4))
        if n == 7:
            b(f"s_cmp_eq_u32 {sIT}, 0")
            b("s_cbranch_scc0 L_A_next")
            b(f"s_mul_i32 s22, s42, {XT}")
            b("s_lshl_b32 s23, s43, 6")
            b("s_add_u32 s22, s22, s23")
            b(f"v_mul_u32_u24 v4, 1152, v{vT}")
            b(f"v_lshl_add_u32 v4, v{vH}, 4, v4")
            b(f"buffer_load_dwordx4 {vr(RES,4)}, v4, {X0}, s22 offen")
            b(f"buffer_load_dwordx4 {vr(RES+4,4)}, v4, {X0}, s22 offen offset:32")
        b("s_branch L_A_next")
        if n < 7:
            b.lab(f"L_A_stubw{n+1}")
    b.lab("L_A_slow")
    for ps in range(2):
        b(f"v_mov_b32 v{vKa}, v{vL16}")
        b(f"v_lshlrev_b32 v{vKe}, 8, v{vH}")
        b(f"v_lshl_add_u32 v{vKe}, v{vT}, 3, v{vKe}")
        if ps == 0:
            b(f"v_mov_b32 v7, {f2u(float('-inf')):#x}")
        else:
            v_addr(b, 4608)
        b("s_mov_b32 s41, 0")
        b.lab(f"L_A_slow{ps}")
        b(f"ds_read_b64 {vr(KE,2)}, v{vKe} offset:4096")
        for u in range(4):
            b(f"ds_read_b128 {vr(KM,4)}, v{vKa} offset:{u*1024}")
            if ps:
                b(f"ds_read_b128 {vr(VA,4)}, v{vVa} offset:{u*VT}")
                b(f"ds_read_b128 {vr(VB,4)}, v{vVa} offset:{u*VT+608}")
            slow_qk(b, u, False)
            if ps: slow_pv(b)
            else: slow_max(b)
        b(f"v_add_u32 v{vKa}, {GRP}, v{vKa}")
        b(f"v_add_u32 v{vKe}, {GRP}, v{vKe}")
        b(f"v_add_u32 v{vVa}, {GRP}, v{vVa}")
        b("s_add_u32 s41, s41, 1")
        b("s_cmp_lt_u32 s41, 16")
        b(f"s_cbranch_scc1 L_A_slow{ps}")
        if ps == 0: slow_mid(b)
    slow_end(b, "A")

def gen_out(a, isB):
    tag = "OB" if isB else "OA"
    OO = OB_ if isB else OA_
    a(f"s_cmp_lt_u32 {W}, s44")
    a(f"s_cbranch_scc1 L_{tag}_c")
    a(f"s_cmp_eq_u32 {W}, 7")
    a(f"s_cbranch_scc1 L_{tag}_ld")
    if not isB:
        a(f"s_cmp_eq_u32 {W}, 4")
        a(f"s_cbranch_scc1 L_{tag}_idle")
        a(f"s_sub_u32 s22, {W}, 5")
        a(f"s_mul_i32 s23, s22, {WCT}")
        a(f"s_add_u32 s23, s23, {L_WB}")
        a(f"v_add_u32 v4, s23, v{vL16}")
        a(f"v_mov_b32 v{CS}, 0")
        for ks in range(36):
            a(f"ds_write_b128 v4, {vr(R+4*ks,4)} offset:{ks*1024}")
            cs_dot(a, ks)
        cs_pack(a, 5)
        a("s_lshl_b32 s22, s22, 8")
        a(f"s_add_u32 s22, s22, {L_WBX}")
        a(f"v_lshrrev_b32 v4, 2, v{vL16}")
        a("v_add_u32 v4, s22, v4")
        a("ds_write_b32 v4, v5")
        a("s_waitcnt lgkmcnt(0)")
    else:
        a(f"s_cmp_eq_u32 {sIT}, 0")
        a(f"s_cbranch_scc0 L_{tag}_idle")
        wa_role(a, f"L_{tag}_idle")
        wa_issue(a)
    a.lab(f"L_{tag}_idle")
    for n in range(3):
        a("s_barrier")
    a(f"s_branch L_{tag}_e")
    a.lab(f"L_{tag}_ld")
    if not isB:
        a("s_lshr_b32 s23, s42, 1")
        a("s_lshl_b32 s23, s23, 10")
        a(f"s_add_u32 s23, s23, {FOA:#x}")
        poll(a, IT, "s23", 8)
    else:
        a(f"s_lshl_b32 s23, {sX}, 12")
        a(f"s_add_u32 s23, s23, {FOB:#x}")
        poll(a, IT, "s23", 32)
    stamp(a, tag + "_flag")
    a(f"s_mul_i32 s22, s42, {XT}")
    a(f"s_add_u32 s22, s22, {OO:#x}")
    a("s_mov_b32 m0, 0")
    dma(a, IT, "s22", 36, 1024, 1024)
    for n in (24, 12, 0):
        a(f"s_waitcnt vmcnt({n})")
        a("s_barrier")
    stamp(a, tag + "_x")
    if isB:
        a(f"s_cmp_eq_u32 {sIT}, 0")
        a(f"s_cbranch_scc0 L_{tag}_e")
        wa_role(a, f"L_{tag}_e")
        wa_issue(a)
    a(f"s_branch L_{tag}_e")
    a.lab(f"L_{tag}_c")
    a("s_waitcnt vmcnt(0)")
    for p in range(8):
        a(f"v_lshlrev_b32 v{ACC+2*p}, 16, v{RES+p}")
        a(f"v_and_b32 v{ACC+2*p+1}, 0xffff0000, v{RES+p}")
    for st in range(3):
        a("s_barrier")
        gemm_stage(a, [vL16], 12 * st, 12 * st + 12, False, False)
    a("s_nop 12")
    pack(a, ACC, 8, RES)
    if isB:
        a(f"s_cmp_eq_u32 {sIT}, 1")
        a("s_cbranch_scc1 L_final")
        store_x_and_stats(a, RES, "s42", "s43", 4, ITS + XA, ITS + STA, IT)
    else:
        store_x_and_stats(a, RES, "s42", "s43", 4, XB, STB, IT)
    a("s_waitcnt vmcnt(0)")
    a.lab(f"L_{tag}_e")
    if isB:
        a(f"s_cmp_eq_u32 {sIT}, 1")
        a("s_cbranch_scc1 L_fin2")
    a("s_barrier")
    a(f"s_cmp_lg_u32 {W}, 0")
    a(f"s_cbranch_scc1 L_{tag}_nf")
    a("s_lshl_b32 s22, s42, 9")
    a(f"s_lshr_b32 s23, {sI}, 3")
    a("s_lshl_b32 s23, s23, 7")
    a("s_add_u32 s22, s22, s23")
    a(f"s_add_u32 s22, s22, {(ITS + FXA) if isB else FXB:#x}")
    setflag(a, IT, "s22", local=True)
    a.lab(f"L_{tag}_nf")
    stamp(a, tag + "_end")

def gen_phb(a, slow):
    a(f"s_lshl_b32 s45, {sX}, 3")
    a(f"s_add_u32 s45, s45, {W}")
    a(f"s_mov_b32 s46, {sI}")
    a("s_lshl_b32 s23, s45, 9")
    a(f"s_add_u32 s23, s23, {FXB:#x}")
    a(f"v_lshrrev_b32 v5, 2, v{vL16}")
    a(f"v_add_u32 v6, {L_WB}, v{vL16}")
    a(f"v_add_u32 v7, {L_WB+WCT}, v{vL16}")
    a(f"v_add_u32 v4, {L_WBX}, v5")
    a(f"ds_read_b32 v106, v4")
    a(f"ds_read_b32 v108, v4 offset:256")
    a("v_mov_b32 v107, 0")
    a("v_mov_b32 v109, 0")
    poll(a, IT, "s23", 4)
    stamp(a, "B_xflag")
    stats_load(a, STR, "s45", STB)
    a(f"s_mul_i32 s22, s45, {XT}")
    a(f"s_add_u32 s22, s22, {XB:#x}")
    r_loads(a, IT, "s22", 0, 36, LD)
    a("s_waitcnt lgkmcnt(0)")
    items = [(ks, t) for ks in range(36) for t in range(2)]
    n = len(items); depth = DEPTH
    def rd(i):
        ks, t = items[i]
        a(f"ds_read_b128 {vr(XB_+4*(i%depth),4)}, v{6+t} offset:{ks*1024}")
    for i in range(depth - 1): rd(i)
    for i in range(n):
        ks, t = items[i]
        if i == 0:
            a("s_waitcnt vmcnt(36)")
            stats_sum(a, STR)
            stats_compute(a, STR, XEXT, RSTD)
            a("s_waitcnt lgkmcnt(0)")
            a(f"s_lshl_b32 s27, {W}, 8")
            a(f"s_add_u32 s27, s27, {L_MISC}")
            a(f"v_lshl_add_u32 v4, v{vT}, 2, s27")
            a(f"ds_write_b32 v4, v{RSTD}")
            a(f"v_lshl_add_u32 v4, v{vH}, 4, s27")
            a("s_waitcnt lgkmcnt(0)")
            for q in range(4):
                a(f"ds_read_b128 {vr(STR+4*q,4)}, v4 offset:{32*q}")
        if i + depth - 1 < n:
            rd(i + depth - 1); out = depth - 1
        else:
            out = n - 1 - i
        if t == 0 and ks % 2 == 0:
            a(f"s_waitcnt vmcnt({36 - min(36, ks + 2)}) lgkmcnt({out})")
        else:
            a(f"s_waitcnt lgkmcnt({out})")
        acc = vr(ACC + 16 * t, 16); x = vr(R + 4 * ks, 4); w = vr(XB_ + 4 * (i % depth), 4)
        c = "0" if ks == 0 else acc
        a(f"v_mfma_f32_32x32x16_bf16 {acc}, {x}, {w}, {c}" if t else f"v_mfma_f32_32x32x16_bf16 {acc}, {w}, {x}, {c}")
    a(f"v_mfma_f32_32x32x8_bf16 {vr(ACC,16)}, v[106:107], {vr(XEXT,2)}, {vr(ACC,16)}")
    a(f"v_mfma_f32_32x32x8_bf16 {vr(ACC+16,16)}, {vr(XEXT,2)}, v[108:109], {vr(ACC+16,16)}")
    stamp(a, "B_gemm")
    a(f"s_add_u32 s28, {W}, 8")
    a(f"s_mul_i32 s28, s28, {KVT}")
    a(f"s_add_u32 s28, s28, {L_KVB}")
    a("s_lshl_b32 s29, s46, 6")
    a("s_add_u32 s29, s29, s45")
    a(f"s_mul_i32 s29, s29, {KVT}")
    a(f"s_add_u32 s29, s29, {KVB:#x}")
    a(f"v_mul_f32 v{RSTD+1}, {f2u(QSCALE):#x}, v{RSTD}")
    a(f"v_mul_u32_u24 v4, 304, v{vH}")
    a(f"v_lshl_add_u32 v4, v{vT}, 4, v4")
    a(f"v_mov_b32 v5, {OOB:#x}")
    a(f"v_cmp_ge_u32 vcc, 18, v{vT}")
    a(f"v_lshrrev_b32 v6, 1, v{vT}")
    a("v_add_u32 v11, s28, v4")
    a("v_cndmask_b32 v4, v5, v4, vcc")
    a(f"v_mov_b32 v5, {LOOB:#x}")
    a("v_cndmask_b32 v11, v5, v11, vcc")
    a("v_cmp_eq_u32 vcc, 12, v6")
    a("v_cmp_eq_u32 s[62:63], 13, v6")
    a(f"v_mov_b32 v7, {f2u(QSCALE):#x}")
    a("v_cndmask_b32 v7, 1.0, v7, vcc")
    a("s_add_u32 s30, s27, 128")
    a("s_add_u32 s31, s28, 1024")
    a("v_mov_b32 v6, s30")
    a("v_cndmask_b32 v5, v5, v6, vcc")
    a("v_mov_b32 v6, s31")
    a("v_cndmask_b32 v5, v5, v6, s[62:63]")
    a(f"v_and_b32 v6, 1, v{vT}")
    a("v_lshl_add_u32 v5, v6, 1, v5")
    a(f"v_lshl_add_u32 v5, v{vH}, 4, v5")
    for r in range(8):
        a(f"v_mul_f32 v{ACC+r}, v{RSTD+1}, v{ACC+r}")
    for r in range(8, 16):
        a(f"v_mul_f32 v{ACC+r}, v{RSTD}, v{ACC+r}")
    pack(a, ACC, 8)
    a(f"v_add_u32 v6, s28, v{vL16}")
    a(f"ds_write_b128 v6, {vr(ACC+4,4)}")
    a(f"buffer_store_dwordx4 {vr(ACC+4,4)}, v{vL16}, {IT}, s29 offen sc1")
    V1 = ACC + 16
    for r in range(16):
        a(f"v_mul_f32 v{STR+r}, v7, v{STR+r}")
    for r in range(16):
        a(f"v_mul_f32 v{V1+r}, v{STR+r}, v{V1+r}")
    pack(a, V1, 8)
    for r in range(16):
        op = "ds_write_b16" if r % 2 == 0 else "ds_write_b16_d16_hi"
        a(f"{op} v5, v{V1+r//2} offset:{((r&3)+8*(r>>2))*4}")
    a("s_mov_b32 s24, 0x40000")
    a("s_mov_b32 s25, 0x40000")
    a("s_mov_b64 exec, s[24:25]")
    for p in range(8):
        a(f"v_mov_b32 v{V1+p}, s60")
    a("s_mov_b64 exec, -1")
    a(f"ds_write_b128 v11, {vr(V1,4)} offset:1152")
    a(f"ds_write_b128 v11, {vr(V1+4,4)} offset:{1152+608}")
    a(f"buffer_store_dwordx4 {vr(V1,4)}, v4, {IT}, s29 offen offset:1152 sc1")
    a(f"buffer_store_dwordx4 {vr(V1+4,4)}, v4, {IT}, s29 offen offset:{1152+608} sc1")
    a(f"v_lshl_add_u32 v5, v{vT}, 2, s30")
    a(f"v_lshl_add_u32 v6, v{vT}, 2, s31")
    a("s_waitcnt lgkmcnt(0)")
    a("ds_read_b32 v7, v5")
    a("ds_read_b32 v12, v6")
    a(f"v_lshlrev_b32 v4, 30, v{vH}")
    a(f"v_lshl_add_u32 v4, v{vT}, 2, v4")
    a(f"v_mov_b32 v5, {L_FLAG}")
    a("v_mov_b32 v6, 0")
    a("ds_write_b32 v5, v6")
    a(f"v_cmp_eq_u32 vcc, 0, v{vH}")
    a("s_waitcnt lgkmcnt(0)")
    a(f"buffer_store_dword v12, v4, {IT}, s29 offen offset:1024 sc1")
    a(f"v_cndmask_b32 v{QE}, 0, v7, vcc")
    a(f"v_mov_b32 v{QE+1}, 0")
    a(f"v_mov_b32 v{KE+1}, 0")
    a(f"s_sub_u32 s28, s28, {8*KVT}")
    a(f"v_add_u32 v{vKa}, s28, v{vL16}")
    a(f"v_lshl_add_u32 v{vKe}, v{vT}, 2, s28")
    a("s_add_u32 s28, s28, 1152")
    v_addr(a, "s28")
    a(f"v_mov_b32 v11, {NEGBIG:#x}")
    for r in range(16):
        a(f"v_mov_b32 v{OC+r}, 0")
    mask_init(a, S_[0], True)
    a(f"s_add_u32 s47, {W}, 1")
    a(f"s_cmp_eq_u32 {sX}, 0")
    a("s_cselect_b32 s47, s47, 9")
    a(f"s_mul_i32 s41, s43, {XT}")
    a(f"s_add_u32 s41, s41, {WOB_OFF:#x}")
    a("s_lshl_b32 s30, s46, 6")
    a("s_add_u32 s30, s30, s45")
    a("s_lshl_b32 s30, s30, 7")
    a(f"s_add_u32 s30, s30, {FKB:#x}")
    a("s_barrier")
    stamp(a, "B_attn0")
    a(f"s_cmp_lg_u32 {W}, 0")
    a("s_cbranch_scc1 L_B_go")
    a("s_waitcnt vmcnt(0)")
    setflag(a, IT, "s30")
    a(f"s_cmp_eq_u32 {sX}, 0")
    a("s_cbranch_scc1 L_B_norem")
    a("s_sub_u32 s22, s30, 1024")
    poll(a, IT, "s22", 8)
    a(f"s_sub_u32 s22, s29, {8*KVT}")
    a(f"s_mov_b32 m0, {L_KVB}")
    dma(a, IT, "s22", 19, 1024, 1024, half_last=True)
    a("s_waitcnt vmcnt(0)")
    a.lab("L_B_norem")
    a(f"v_mov_b32 v5, {L_FLAG}")
    a("v_mov_b32 v6, 1")
    a("ds_write_b32 v5, v6")
    stamp(a, "B_rem")
    r_loads(a, WS, "s41", 0, 36)
    a.lab("L_B_go")
    to = lambda i: (8 - i) * KVT
    a(f"ds_read_b128 {vr(KM,4)}, v{vKa} offset:{to(0)}")
    a(f"ds_read_b32 v{KE}, v{vKe} offset:{to(0)+1024}")
    a("s_waitcnt lgkmcnt(0)")
    a(f"v_mfma_f32_32x32x16_bf16 {vr(S_[0],16)}, {vr(KM,4)}, {vr(QM,4)}, {vr(S_[0],16)}")
    a(f"v_mfma_f32_32x32x8_bf16 {vr(S_[0],16)}, {vr(KE,2)}, {vr(QE,2)}, {vr(S_[0],16)}")
    a(f"ds_read_b128 {vr(KM,4)}, v{vKa} offset:{to(1)}")
    a(f"ds_read_b32 v{KE}, v{vKe} offset:{to(1)+1024}")
    a(f"ds_read_b128 {vr(VA,4)}, v{vVa} offset:{to(0)}")
    a(f"s_cmp_eq_u32 {W}, 0")
    a("s_cbranch_scc1 L_B_pub")
    a("s_waitcnt vmcnt(0)")
    setflag(a, IT, "s30")
    a(f"s_cmp_ge_u32 {W}, s44")
    a("s_cbranch_scc1 L_B_pub")
    r_loads(a, WS, "s41", 0, 18)
    a.lab("L_B_pub")
    a("s_nop 8")
    for j in range(9):
        if j <= 6:
            a(f"s_cmp_eq_u32 {W}, {j+1}")
            a(f"s_cbranch_scc1 L_B_chk{j}")
            a.lab(f"L_B_b{j}")
        body(a, j & 1, rdKM=to(j + 2) if j + 2 <= 8 else None, rdKE=to(j + 2) + 1024 if j + 2 <= 8 else None,
             rdVa=to(j + 1) if j + 1 <= 8 else None, rdVb=to(j) + 608, u=0, qk=(j < 8), pv1=(j > 0),
             cinit=((lambda n: mask_init(a, n, False)) if j == 7 else None), ke64=False, pvwait=(1 if j == 8 else 2))
        if j < 8:
            a(f"s_cmp_eq_u32 s47, {j+1}")
            a(f"s_cbranch_scc1 L_B_t{j&1}")
    a.lab("L_B_t0")
    tail_pv1(a, 0)
    a.lab("L_B_done")
    stamp(a, "B_attn1")
    attn_finish(a, "B", "s45", "s46", OB_)
    a("s_waitcnt vmcnt(0)")
    a("s_barrier")
    a(f"s_cmp_lg_u32 {W}, 0")
    a("s_cbranch_scc1 L_B_end")
    a(f"s_lshl_b32 s22, {sX}, 12")
    a("s_lshl_b32 s23, s46, 7")
    a("s_add_u32 s22, s22, s23")
    a(f"s_add_u32 s22, s22, {FOB:#x}")
    setflag(a, IT, "s22", local=True)
    a.lab("L_B_end")
    stamp(a, "B_end")
    b = slow
    b.lab("L_B_t1")
    tail_pv1(b, 1)
    b("s_branch L_B_done")
    for j in range(7):
        b.lab(f"L_B_chk{j}")
        b(f"s_mov_b32 s40, {j}")
        b("s_branch L_B_chk")
    b.lab("L_B_chk")
    b(f"v_mov_b32 v5, {L_FLAG}")
    b("s_mov_b32 s21, 0")
    b.lab("L_B_spin")
    b("ds_read_b32 v6, v5")
    b("s_add_u32 s21, s21, 1")
    b("s_cmp_gt_u32 s21, 0x400000")
    b("s_waitcnt lgkmcnt(0)")
    b("s_cbranch_scc1 L_B_spun")
    b("v_cmp_eq_u32 vcc, 0, v6")
    b("s_cbranch_vccnz L_B_spin")
    b.lab("L_B_spun")
    b(f"s_cmp_ge_u32 {W}, s44")
    b("s_cbranch_scc1 L_B_ret")
    r_loads(b, WS, "s41", 18, 36)
    b.lab("L_B_ret")
    for j in range(7):
        b(f"s_cmp_eq_u32 s40, {j}")
        b(f"s_cbranch_scc1 L_B_b{j}")
    b("s_branch L_B_b6")
    b.lab("L_B_slow")
    for ps in range(2):
        if ps == 0:
            b(f"v_mov_b32 v7, {f2u(float('-inf')):#x}")
        for j in range(9):
            b(f"ds_read_b128 {vr(KM,4)}, v{vKa} offset:{to(j)}")
            b(f"ds_read_b32 v{KE}, v{vKe} offset:{to(j)+1024}")
            if ps:
                b(f"ds_read_b128 {vr(VA,4)}, v{vVa} offset:{to(j)}")
                b(f"ds_read_b128 {vr(VB,4)}, v{vVa} offset:{to(j)+608}")
            if j in (0, 8): mask_init(b, S_[0], j == 0)
            slow_qk(b, 0, j in (0, 8))
            if ps: slow_pv(b)
            else: slow_max(b)
            if j < 8:
                b(f"s_cmp_eq_u32 s47, {j+1}")
                b(f"s_cbranch_scc1 L_B_slowd{ps}")
        b.lab(f"L_B_slowd{ps}")
        if ps == 0: slow_mid(b)
    slow_end(b, "B")

def main(out):
    ref = open(f"cdna_kernels/{NAME}.s.ref").read().splitlines()
    hdr = [l for l in ref if l.startswith(";") and "@launch" not in l]
    a = A(); slow = A(); slow.n = 100000
    gen_start(a)
    gen_prep(a)
    gen_pha(a, slow)
    gen_out(a, False)
    gen_phb(a, slow)
    gen_out(a, True)
    a(f"s_mov_b32 {sIT}, 1")
    a(f"s_add_u32 s16, s16, {ITS:#x}")
    a("s_addc_u32 s17, s17, 0")
    a("s_branch L_it")
    a.lab("L_final")
    a(f"v_mul_u32_u24 v4, 1152, v{vT}")
    a(f"v_lshl_add_u32 v4, v{vH}, 4, v4")
    a(f"s_mul_i32 s24, s42, {32*1152}")
    a("s_lshl_b32 s25, s43, 6")
    a("s_add_u32 s24, s24, s25")
    for q in range(2):
        a(f"buffer_store_dwordx4 {vr(RES+4*q,4)}, v4, {AUX}, s24 offen offset:{32*q}")
    a.lab("L_fin2")
    if STAMPS:
        a("s_waitcnt vmcnt(0)")
        stamp(a, "end")
        a("v_lshlrev_b32 v4, 2, v0")
        a("s_lshl_b32 s22, s2, 11")
        a(f"s_add_u32 s22, s22, {DBG_OFF:#x}")
        a(f"buffer_store_dword v{vSTAMP}, v4, {WS}, s22 offen")
        open(out + ".stamps", "w").write("\n".join(STN))
        assert len(STN) <= 32
    a.lab("L_end")
    a("s_endpgm")
    K = NAME + "_kernel"
    txt = "\n".join(hdr) + "\n; @launch grid=(256,1,1) block=(512,1,1) lds=163840\n"
    txt += f'.amdgcn_target "amdgcn-amd-amdhsa--gfx950"\n.text\n.globl {K}\n.p2align 8\n.type {K},@function\n{K}:\n'
    txt += a.text() + slow.text()
    txt += f""".section .rodata,"a"
.p2align 6
.amdhsa_kernel {K}
  .amdhsa_next_free_vgpr 256
  .amdhsa_next_free_sgpr 102
  .amdhsa_accum_offset 256
  .amdhsa_group_segment_fixed_size 0
  .amdhsa_kernarg_size 88
  .amdhsa_user_sgpr_count 2
  .amdhsa_user_sgpr_kernarg_segment_ptr 1
  .amdhsa_system_sgpr_workgroup_id_x 1
  .amdhsa_float_denorm_mode_32 3
.end_amdhsa_kernel
"""
    open(out, "w").write(txt)

if __name__ == "__main__":
    if "stamps" in sys.argv: STAMPS = True
    if "nolocal" in sys.argv: NOLOCAL = True
    main(sys.argv[1])
```

```python
import math, struct, sys

NAME = "interleave_layers__grouped_kv_mqa__sliding_block__prompt"
def f2u(x): return struct.unpack("<I", struct.pack("<f", x))[0]

FR = 1024
XT = 36 * FR
WCT = 36 * FR
KVA = 0x0
KVB = 0x30000
FL = 0x4D0000
ITS = 0x550000
FXA, FXB, FOA, FOB, FKA, FKAL, FKB = FL, FL + 0x8000, FL + 0x10000, FL + 0x18000, FL + 0x20000, FL + 0x28000, FL + 0x40000
XS, OS, STS, KVL = 0xB00000, 0xD40000, 0xF80000, 0xFD0000
WA_OFF, WB_OFF, WOA_OFF, WOB_OFF, FPREP = 0x1000000, 0x1100000, 0x1400000, 0x1500000, 0x15C0000
DBG_OFF = 0x4000000
WS_SIZE = 0x10000000
OOB = 0x40000000
LOOB = 0x40000
GRP = 9472
KVA_SZ = 16 * GRP
BLK = 2 * GRP
VT = 1216
KVT = 2368
QSCALE = (18 ** -0.5) * math.log2(math.e)
NEGBIG = f2u(-1e30)
L_XA = 40960
L_WB = 40960
L_KVB = 118784
L_Q = 151552
L_MISC = 160768
L_FLAG = 162816
NPREP = 252
L_PREP = 114688
L_WBX = L_WB + 2 * WCT

STAMPS = False
NOLOCAL = False
STN = []
ST = " sc1"
LD = " sc1"

class A:
    def __init__(self):
        self.l = []; self.n = 0; self.ns = 0; self.stn = []
    def __call__(self, s): self.l.append("    " + s)
    def lab(self, s): self.l.append(s + ":")
    def nl(self, p="L"):
        self.n += 1
        return f"{p}_{self.n}"
    def text(self): return "\n".join(self.l) + "\n"

def vr(a, n): return f"v[{a}:{a+n-1}]" if n > 1 else f"v{a}"

W = "s3"
WS, AUX, IT = "s[4:7]", "s[8:11]", "s[16:19]"
sX, sI, sNONCE, sIT, sLIM, sLOC = "s12", "s13", "s14", "s15", "s20", "s99"
vL16, vT, vH = 1, 2, 3
vNONCE, vSTAMP = 14, 15
RES = 16
R = 112
WEXT = 110
MASK = 64

def stamp(a, name, cyc=False):
    if not STAMPS: return
    if cyc: name = "c:" + name
    if name not in STN: STN.append(name)
    k = STN.index(name)
    a("s_memtime s[96:97]" if cyc else "s_memrealtime s[96:97]")
    a(f"s_mul_i32 s98, {sIT}, 32")
    a(f"s_add_u32 s98, s98, {k}")
    a("s_waitcnt lgkmcnt(0)")
    a(f"s_mov_b32 m0, s98")
    a(f"v_writelane_b32 v{vSTAMP}, s96, m0")

def set_exec(a, mask):
    lo, hi = mask & 0xffffffff, mask >> 32
    if mask <= 64:
        a(f"s_mov_b64 exec, {mask}")
    else:
        a(f"s_mov_b32 exec_lo, {lo:#x}" if lo != 0xffffffff else "s_mov_b32 exec_lo, -1")
        a(f"s_mov_b32 exec_hi, {hi:#x}")

def poll_issue(a, srd, soff, n, vtmp, voff):
    for q in range((n + 63) // 64):
        if q == 0:
            a(f"buffer_load_dword v{vtmp}, v{voff}, {srd}, {soff} offen sc1")
        else:
            a(f"s_add_u32 s61, {soff}, {8192*q}")
            a(f"buffer_load_dword v{vtmp+q}, v{voff}, {srd}, s61 offen sc1")

def poll_test(a, n, vtmp):
    a(f"v_cmp_ne_u32 vcc, {sNONCE}, v{vtmp}")
    for q in range(1, (n + 63) // 64):
        a(f"v_cmp_ne_u32 s[62:63], {sNONCE}, v{vtmp+q}")
        a("s_or_b64 vcc, vcc, s[62:63]")

def poll(a, srd, soff, n, vtmp=4, voff=5, setoff=True):
    l, d = a.nl("Lp"), a.nl("Lpd")
    if setoff: a(f"v_lshlrev_b32 v{voff}, 3, v{vL16}")
    if n < 64: set_exec(a, (1 << n) - 1)
    a("s_mov_b32 s21, 0")
    a.lab(l)
    poll_issue(a, srd, soff, n, vtmp, voff)
    a("s_add_u32 s21, s21, 1")
    a(f"s_cmp_gt_u32 s21, {sLIM}")
    a(f"s_cselect_b32 {sLIM}, 0, {sLIM}")
    a("s_waitcnt vmcnt(0)")
    a(f"s_cbranch_scc1 {d}")
    poll_test(a, n, vtmp)
    a(f"s_cbranch_vccnz {l}")
    a.lab(d)
    if n < 64: a("s_mov_b64 exec, -1")

def lstore(a, insts):
    l, e = a.nl("Ls"), a.nl("Lse")
    a(f"s_cmp_eq_u32 {sLOC}, 1")
    a(f"s_cbranch_scc1 {l}")
    for i in insts: a(i + " sc1")
    a(f"s_branch {e}")
    a.lab(l)
    for i in insts: a(i)
    a.lab(e)

def setflag(a, srd, soff, local=False):
    a("s_mov_b64 exec, 1")
    if local: lstore(a, [f"buffer_store_dword v{vNONCE}, off, {srd}, {soff}"])
    else: a(f"buffer_store_dword v{vNONCE}, off, {srd}, {soff} sc1")
    a("s_mov_b64 exec, -1")

def dma(a, srd, sG, n, gstep, lstep, flags=LD, half_last=False):
    for r in range(n):
        if half_last and r == n - 1:
            a("s_mov_b32 exec_hi, 0")
        else:
            a("s_nop 0")
        a(f"buffer_load_dwordx4 v{vL16}, {srd}, {sG} offen{flags} lds")
        if half_last and r == n - 1:
            a("s_mov_b64 exec, -1")
        if r + 1 < n:
            a(f"s_add_u32 m0, m0, {lstep}")
            a(f"s_add_u32 {sG}, {sG}, {gstep}")

def r_loads(a, srd, sOff, k0, k1, flags=""):
    for ks in range(k0, k1):
        if ks == k0 or ks % 4 == 0:
            a(f"s_add_u32 s61, {sOff}, {(ks//4)*4096}")
        a(f"buffer_load_dwordx4 {vr(R+4*ks,4)}, v{vL16}, {srd}, s61 offen offset:{(ks%4)*1024}{flags}")

def cs_dot(a, ks):
    for d in range(4):
        a(f"v_dot2_f32_bf16 v{CS}, v{R+4*ks+d}, s60, v{CS}")

def cs_pack(a, dst):
    a("s_nop 2")
    a(f"v_cvt_pk_bf16_f32 v{dst}, v{CS}, v{CS}")
    a(f"v_lshlrev_b32 v{dst}, 16, v{dst}")
    a(f"v_sub_f32 v{CS}, v{CS}, v{dst}")
    a(f"v_cvt_pk_bf16_f32 v{dst}, v{dst}, v{CS}")

def store_x_and_stats(a, P, sT, sC, tmp, XO, SO, srd):
    a(f"s_mul_i32 s26, {sT}, {XT}")
    a(f"s_lshl_b32 s27, {sC}, 11")
    a("s_add_u32 s26, s26, s27")
    a(f"s_add_u32 s26, s26, {XO:#x}")
    lstore(a, [f"buffer_store_dwordx4 {vr(P,4)}, v{vL16}, {srd}, s26 offen",
               f"buffer_store_dwordx4 {vr(P+4,4)}, v{vL16}, {srd}, s26 offen offset:1024"])
    a(f"v_mov_b32 v{tmp}, 0")
    a(f"v_mov_b32 v{tmp+1}, 0")
    for i in range(8):
        a(f"v_dot2_f32_bf16 v{tmp}, v{P+i}, s60, v{tmp}")
        a(f"v_dot2_f32_bf16 v{tmp+1}, v{P+i}, v{P+i}, v{tmp+1}")
    a(f"v_lshrrev_b32 v{tmp+2}, 2, v{vL16}")
    a(f"s_mul_i32 s26, {sT}, {18*256}")
    a(f"s_lshl_b32 s27, {sC}, 8")
    a("s_add_u32 s26, s26, s27")
    a(f"s_add_u32 s26, s26, {SO:#x}")
    a(f"v_permlane32_swap_b32 v{tmp}, v{tmp+1}")
    a("s_nop 1")
    a(f"v_add_f32 v{tmp}, v{tmp}, v{tmp+1}")
    lstore(a, [f"buffer_store_dword v{tmp}, v{tmp+2}, {srd}, s26 offen"])

def stats_load(a, b, sT, SO):
    a(f"v_lshrrev_b32 v4, 2, v{vL16}")
    a(f"s_mul_i32 s40, {sT}, {18*256}")
    a(f"s_add_u32 s40, s40, {SO:#x}")
    for c in range(18):
        if c == 16: a("s_add_u32 s40, s40, 4096")
        a(f"buffer_load_dword v{b+c}, v4, {WS}, s40 offen offset:{(c%16)*256}{LD}")

def stats_sum(a, b):
    for i in range(9):
        a(f"v_add_f32 v{b+i}, v{b+i}, v{b+9+i}")
    for i, j in ((0, 1), (2, 3), (4, 5), (6, 7), (0, 2), (4, 6), (0, 4), (0, 8)):
        a(f"v_add_f32 v{b+i}, v{b+i}, v{b+j}")

def stats_compute(a, b, xext, rstd):
    a(f"v_mov_b32 v{b+1}, v{b}")
    a("s_nop 1")
    a(f"v_permlane32_swap_b32 v{b}, v{b+1}")
    a("s_nop 1")
    a(f"v_mul_f32 v{b}, {f2u(1.0/576):#x}, v{b}")
    a(f"v_mul_f32 v{b+1}, {f2u(1.0/576):#x}, v{b+1}")
    a(f"v_fma_f32 v{b+1}, -v{b}, v{b}, v{b+1}")
    a(f"v_max_f32 v{b+1}, 0, v{b+1}")
    a(f"v_cvt_pk_bf16_f32 v{xext}, -v{b}, -v{b}")
    a(f"v_mov_b32 v{xext+1}, 0")
    a(f"v_cvt_pk_bf16_f32 v{b+1}, v{b+1}, v{b+1}")
    a(f"v_lshlrev_b32 v{b+1}, 16, v{b+1}")
    a(f"v_add_f32 v{b+1}, {f2u(1e-5):#x}, v{b+1}")
    a(f"v_cvt_pk_bf16_f32 v{b+1}, v{b+1}, v{b+1}")
    a(f"v_lshlrev_b32 v{b+1}, 16, v{b+1}")
    a(f"v_sqrt_f32 v{b+1}, v{b+1}")
    a("s_nop 0")
    a(f"v_cvt_pk_bf16_f32 v{b+1}, v{b+1}, v{b+1}")
    a(f"v_lshlrev_b32 v{b+1}, 16, v{b+1}")
    a(f"v_rcp_f32 v{rstd}, v{b+1}")
    a("s_nop 0")

def rstd_bcast(a, rstd, dst):
    a(f"s_lshl_b32 s27, {W}, 8")
    a(f"s_add_u32 s27, s27, {L_MISC}")
    a(f"v_lshl_add_u32 v6, v{vT}, 2, s27")
    a(f"ds_write_b32 v6, v{rstd}")
    a(f"v_lshl_add_u32 v6, v{vH}, 4, s27")
    a("s_waitcnt lgkmcnt(0)")
    for q in range(4):
        a(f"ds_read_b128 {vr(dst+4*q,4)}, v6 offset:{32*q}")

ACC = 24
XB_ = 56
STR = 88
CS = 106
DEPTH = 8
XEXT = 8
RSTD = 12

def xaddr(a, dst, base):
    l, e = a.nl("Lxa"), a.nl("Lxe")
    a(f"s_cmp_eq_u32 {sIT}, 0")
    a(f"s_cbranch_scc1 {l}")
    a(f"v_add_u32 v{dst}, {base}, v{vL16}")
    for q in range(1, 4):
        a(f"v_add_u32 v{dst+q}, {1024*q}, v{dst}")
    a(f"s_branch {e}")
    a.lab(l)
    a(f"v_bfe_u32 v4, v{vT}, 1, 3")
    a(f"v_xor_b32 v4, v4, v{vH}")
    a(f"v_lshlrev_b32 v{dst+3}, 7, v{vT}")
    a(f"v_add_u32 v{dst+3}, {base}, v{dst+3}")
    for q in range(4):
        if q: a(f"v_xor_b32 v4, {(2*q) ^ (2*q-2)}, v4")
        a(f"v_lshl_add_u32 v{dst+q}, v4, 4, v{dst+3}")
    a.lab(e)

def gemm_stage(a, bases, k0, k1, swap, first_zero, cs=False, pre=None, quad=False):
    TT = len(bases)
    items = [(ks, t) for ks in range(k0, k1) for t in range(TT)]
    n = len(items); depth = DEPTH
    def rd(i):
        ks, t = items[i]
        if quad: a(f"ds_read_b128 {vr(XB_+4*(i%depth),4)}, v{bases[t]+(ks&3)} offset:{(ks>>2)*4096}")
        else: a(f"ds_read_b128 {vr(XB_+4*(i%depth),4)}, v{bases[t]} offset:{ks*1024}")
    if pre: pre()
    for i in range(depth - 1): rd(i)
    if cs: a(f"s_cmp_eq_u32 {sIT}, 1")
    for i in range(n):
        ks, t = items[i]
        if i + depth - 1 < n:
            rd(i + depth - 1); out = depth - 1
        else:
            out = n - 1 - i
        if cs and t == 0 and ks % 4 == 0:
            l = a.nl("Lcs")
            a(f"s_cbranch_scc1 {l}")
            a(f"s_waitcnt vmcnt({34 - ks})")
            for k in range(ks, ks + 4): cs_dot(a, k)
            if ks == 32: cs_pack(a, WEXT)
            a.lab(l)
        a(f"s_waitcnt lgkmcnt({out})")
        acc = vr(ACC + 16 * t, 16); w = vr(R + 4 * ks, 4); x = vr(XB_ + 4 * (i % depth), 4)
        c = "0" if (first_zero and ks == 0) else acc
        a(f"v_mfma_f32_32x32x16_bf16 {acc}, {x}, {w}, {c}" if swap else f"v_mfma_f32_32x32x16_bf16 {acc}, {w}, {x}, {c}")

def pack(a, base, n=8, dst=None):
    dst = base if dst is None else dst
    for p in range(n):
        a(f"v_cvt_pk_bf16_f32 v{dst+p}, v{base+2*p}, v{base+2*p+1}")

def gen_start(a):
    a("s_cmp_ge_u32 s2, 256")
    a("s_cbranch_scc1 L_end")
    a("s_load_dwordx16 s[32:47], s[0:1], 0")
    a("s_load_dwordx4 s[48:51], s[0:1], 64")
    a("s_load_dwordx2 s[4:5], s[0:1], 80")
    a("s_memrealtime s[22:23]")
    a("v_lshrrev_b32 v4, 6, v0")
    a("v_and_b32 v5, 63, v0")
    a("v_readfirstlane_b32 s3, v4")
    a(f"v_lshlrev_b32 v{vL16}, 4, v5")
    a(f"v_and_b32 v{vT}, 31, v5")
    a(f"v_lshrrev_b32 v{vH}, 5, v5")
    a(f"s_mov_b32 s6, {WS_SIZE:#x}")
    a("s_mov_b32 s7, 0x20000")
    a("s_mov_b32 s11, 0x20000")
    a(f"s_mov_b32 s18, {WS_SIZE-2*ITS:#x}")
    a("s_mov_b32 s19, 0x20000")
    a(f"s_and_b32 {sX}, s2, 7")
    a(f"s_lshr_b32 {sI}, s2, 3")
    a(f"s_mov_b32 {sIT}, 0")
    a(f"s_mov_b32 {sLIM}, 200000")
    a(f"s_mov_b32 {sLOC}, 0")
    a(f"v_mov_b32 v{vSTAMP}, 0")
    a(f"v_mov_b32 v{WEXT+1}, 0")
    a(f"v_lshlrev_b32 v4, 2, v{vH}")
    a(f"v_sub_u32 v4, v{vT}, v4")
    for r in range(16):
        a(f"v_cmp_le_i32 s[{MASK+2*r}:{MASK+2*r+1}], {(r&3)+8*(r>>2)}, v4")
    a("s_waitcnt lgkmcnt(0)")
    a("s_mov_b32 s16, s4")
    a("s_mov_b32 s17, s5")
    a("s_mov_b32 s56, s50")
    a("s_mov_b32 s57, s51")
    a("s_mov_b32 s58, 256")
    a("s_mov_b32 s59, 0x20000")
    a("s_mov_b32 s52, s32")
    a("s_mov_b32 s53, s33")
    a(f"s_mov_b32 s54, {2048*1152}")
    a("s_mov_b32 s55, 0x20000")
    a("s_mov_b32 s60, 0x3f803f80")
    a(f"s_or_b32 s24, s2, {W}")
    a("s_cmp_lg_u32 s24, 0")
    a("s_cbranch_scc1 L_nononce")
    a("s_or_b32 s22, s22, 1")
    a("v_mov_b32 v4, s22")
    a("s_mov_b64 exec, 1")
    a("buffer_store_dword v4, off, s[56:59], 0 sc1")
    a("s_mov_b64 exec, -1")
    a.lab("L_nononce")
    stamp(a, "start")

X0 = "s[52:55]"
def gather(a, vaddr, rs, dst, tmp):
    for j in range(8):
        a(f"ds_read_u16 v{tmp+j}, v{vaddr} offset:{j*rs}")
def gpack(a, dst, tmp):
    for d in range(4):
        a(f"v_lshl_or_b32 v{dst+d}, v{tmp+2*d+1}, 16, v{tmp+2*d}")

def x0_dma(a):
    a("s_call_b64 s[30:31], L_x0")

def x0_sub(a):
    a.lab("L_x0")
    a(f"s_and_b32 s24, {sI}, 3")
    a("s_lshl_b32 s24, s24, 1")
    a(f"s_lshl_b32 s25, {sX}, 3")
    a("s_add_u32 s24, s24, s25")
    a(f"s_mul_i32 s24, s24, {XT}")
    a(f"s_mul_i32 s25, {W}, {8*1152}")
    a("s_add_u32 s24, s24, s25")
    a(f"s_lshr_b32 s25, {W}, 2")
    a(f"s_mul_i32 s25, s25, {XT}")
    a(f"s_and_b32 s26, {W}, 3")
    a("s_lshl_b32 s27, s26, 10")
    a("s_add_u32 s25, s25, s27")
    a(f"s_add_u32 m0, s25, {L_XA}")
    a("s_and_b32 s26, s26, 1")
    a("s_lshl_b32 s26, s26, 2")
    a(f"v_lshrrev_b32 v13, 7, v{vL16}")
    a("v_lshrrev_b32 v9, 1, v13")
    a("v_add_u32 v9, s26, v9")
    a(f"v_bfe_u32 v8, v{vL16}, 4, 3")
    a("v_xor_b32 v9, v8, v9")
    a("v_mul_u32_u24 v13, 1152, v13")
    a("v_lshl_add_u32 v13, v9, 4, v13")
    for kq in range(9):
        a(f"buffer_load_dwordx4 v13, {X0}, s24 offen lds")
        if kq < 8:
            a("s_add_u32 m0, m0, 4096")
            a("s_add_u32 s24, s24, 128")
    a("s_waitcnt vmcnt(9)")
    a("s_barrier")
    a("s_setpc_b64 s[30:31]")

def prep_flag(a):
    a("s_lshl_b32 s22, s2, 7")
    a(f"s_add_u32 s22, s22, {FPREP:#x}")
    a("s_getreg_b32 s23, hwreg(HW_REG_XCC_ID)")
    a(f"v_mov_b32 v4, v{vNONCE}")
    a("v_mov_b32 v5, s23")
    a("s_mov_b64 exec, 1")
    a(f"buffer_store_dwordx2 v[4:5], off, {WS}, s22 sc1")
    a("s_mov_b64 exec, -1")

def gen_prep(a):
    G0, P0 = 24, 64
    a(f"v_and_b32 v4, 0x13, v{vT}")
    a(f"v_and_b32 v5, 4, v{vT}")
    a("v_lshl_or_b32 v4, v5, 1, v4")
    a(f"v_and_b32 v5, 8, v{vT}")
    a("v_lshrrev_b32 v5, 1, v5")
    a("v_or_b32 v12, v4, v5")
    a("v_lshlrev_b32 v12, 1, v12")
    a(f"v_mov_b32 v11, {LOOB:#x}")
    a(f"s_mov_b32 s100, {OOB:#x}")
    a("s_mov_b32 s101, 0")
    a(f"s_cmp_ge_u32 s2, {NPREP}")
    a("s_cbranch_scc1 L_pn")
    a("s_cmp_ge_u32 s2, 180")
    a("s_cbranch_scc1 L_po")
    a("s_cmp_ge_u32 s2, 36")
    a("s_cbranch_scc1 L_pb")
    a("s_mov_b32 s8, s34")
    a("s_mov_b32 s9, s35")
    a(f"s_mov_b32 s10, {576*1152}")
    a(f"s_mul_i32 s22, s2, {16*1152}")
    a(f"s_lshl_b32 s23, {W}, 10")
    a("s_add_u32 s22, s22, s23")
    a(f"s_add_u32 m0, s23, {L_PREP}")
    dma(a, AUX, "s22", 2, 8192, 8192, flags="")
    a(f"s_cmp_ge_u32 {W}, 4")
    a("s_cbranch_scc1 L_pa1")
    a(f"s_cmp_ge_u32 {W}, 2")
    a("s_cbranch_scc1 L_pa0")
    a("s_add_u32 m0, m0, 8192")
    a("s_add_u32 s22, s22, 8192")
    dma(a, AUX, "s22", 1, 0, 0, flags="")
    a("s_branch L_pa1")
    a.lab("L_pa0")
    a(f"s_cmp_eq_u32 {W}, 2")
    a("s_cselect_b32 s8, s36, s38")
    a("s_cselect_b32 s9, s37, s39")
    a(f"s_mov_b32 s10, {576*36}")
    a("s_mul_i32 s22, s2, 576")
    a("s_add_u32 m0, m0, 8192")
    dma(a, AUX, "s22", 1, 0, 0, flags="")
    a.lab("L_pa1")
    x0_dma(a)
    a(f"v_mul_u32_u24 v10, {8*1152}, v{vH}")
    a(f"v_add_u32 v10, {L_PREP}, v10")
    for r in range(3):
        a(f"s_add_u32 s22, {W}, {8*r}")
        a("s_mul_i32 s23, s22, 86")
        a("s_lshr_b32 s23, s23, 8")
        a("s_mul_i32 s24, s23, 3")
        a("s_sub_u32 s24, s22, s24")
        a("s_mul_i32 s23, s23, 144")
        a("s_mul_i32 s25, s24, 72")
        a("s_cmp_eq_u32 s24, 2")
        a("s_cselect_b32 s25, 32, s25")
        a("s_cselect_b32 s26, 1, 4")
        a("s_cselect_b32 s27, 1, 15")
        a("s_cselect_b32 s28, 8, 32")
        a("s_add_u32 s23, s23, s25")
        a(f"v_lshrrev_b32 v4, s26, v{vT}")
        a("v_mul_u32_u24 v4, 36, v4")
        a(f"v_and_b32 v5, s27, v{vT}")
        a("v_lshl_add_u32 v4, v5, 1, v4")
        a("v_add3_u32 v4, v4, v10, s23")
        a(f"v_cmp_gt_u32 vcc, s28, v{vT}")
        a("s_nop 1")
        a("v_cndmask_b32 v4, v11, v4, vcc")
        gather(a, 4, 1152, P0 + 4 * r, G0 + 8 * r)
    a(f"v_lshlrev_b32 v4, 1, v{vT}")
    a(f"s_cmp_eq_u32 {W}, 1")
    a("s_cselect_b64 vcc, -1, 0")
    a(f"s_lshl_b32 s23, {W}, 10")
    a(f"s_add_u32 s23, s23, {L_PREP+18432}")
    a("v_cndmask_b32 v4, v4, v12, vcc")
    a(f"v_mul_u32_u24 v5, {8*36}, v{vH}")
    a("v_add3_u32 v4, v4, v5, s23")
    a(f"v_cmp_gt_u32 vcc, 18, v{vT}")
    a("s_nop 1")
    a("v_cndmask_b32 v4, v11, v4, vcc")
    a("s_waitcnt lgkmcnt(0)")
    gather(a, 4, 36, P0 + 12, G0 + 24)
    a(f"s_mul_i32 s22, {W}, {WCT}")
    a("s_lshl_b32 s23, s2, 10")
    a("s_add_u32 s22, s22, s23")
    a(f"s_add_u32 s22, s22, {WA_OFF:#x}")
    for r in range(3):
        gpack(a, P0 + 4 * r, G0 + 8 * r)
        a(f"buffer_store_dwordx4 {vr(P0+4*r,4)}, v{vL16}, {WS}, s22 offen sc1")
        a(f"s_add_u32 s22, s22, {8*WCT}")
    a(f"s_cmp_ge_u32 {W}, 2")
    a("s_cbranch_scc1 L_prep_done")
    a("s_waitcnt lgkmcnt(0)")
    gpack(a, P0 + 12, G0 + 24)
    a(f"buffer_store_dwordx4 {vr(P0+12,4)}, v{vL16}, {WS}, s22 offen sc1")
    a("s_branch L_prep_done")
    a.lab("L_pb")
    a("s_mov_b32 s8, s44")
    a("s_mov_b32 s9, s45")
    a(f"s_mov_b32 s10, {576*3456}")
    a("s_sub_u32 s28, s2, 36")
    a("s_and_b32 s29, s28, 3")
    a("s_lshr_b32 s28, s28, 2")
    a(f"s_mul_i32 s22, s28, {16*3456}")
    a("s_mul_i32 s23, s29, 288")
    a("s_add_u32 s22, s22, s23")
    a(f"s_lshl_b32 s23, {W}, 10")
    a(f"s_add_u32 m0, s23, {L_PREP}")
    for r in range(2):
        a(f"v_add_u32 v4, {512*r}, v0")
        a("v_mul_u32_u24 v5, 607, v4")
        a("v_lshrrev_b32 v5, 15, v5")
        a("v_mul_u32_u24 v6, 54, v5")
        a("v_sub_u32 v4, v4, v6")
        a("v_mul_u32_u24 v6, 57, v4")
        a("v_lshrrev_b32 v6, 10, v6")
        a(f"v_mul_u32_u24 v6, {1152-288}, v6")
        a("v_lshl_add_u32 v4, v4, 4, v6")
        a("v_mul_u32_u24 v5, 3456, v5")
        a("v_add_u32 v4, v4, v5")
        a(f"buffer_load_dwordx4 v4, {AUX}, s22 offen lds")
        if r == 0: a("s_add_u32 m0, m0, 8192")
    x0_dma(a)
    a(f"v_mul_u32_u24 v10, {8*864}, v{vH}")
    a(f"s_mul_i32 s23, {W}, 36")
    a(f"s_add_u32 s23, s23, {L_PREP}")
    a("v_add_u32 v10, s23, v10")
    a(f"v_lshrrev_b32 v4, 4, v{vT}")
    a("v_mul_u32_u24 v4, 288, v4")
    a(f"v_and_b32 v5, 15, v{vT}")
    a("v_lshl_add_u32 v4, v5, 1, v4")
    a("v_add_u32 v4, v4, v10")
    gather(a, 4, 864, P0, G0)
    a("v_add_u32 v4, 576, v12")
    a(f"v_cmp_gt_u32 vcc, 18, v{vT}")
    a(f"v_bfe_u32 v5, v{vT}, 1, 1")
    a("v_mul_u32_u24 v5, 288, v5")
    a("v_cndmask_b32 v4, v11, v4, vcc")
    a(f"v_and_b32 v6, 1, v{vT}")
    a("v_lshl_add_u32 v5, v6, 1, v5")
    a(f"v_lshrrev_b32 v6, 2, v{vT}")
    a("v_cmp_eq_u32 vcc, 6, v6")
    a("v_add_u32 v5, 32, v5")
    a("s_nop 0")
    a("v_cndmask_b32 v4, v4, v5, vcc")
    a("v_add_u32 v4, v4, v10")
    gather(a, 4, 864, P0 + 4, G0 + 8)
    a("s_lshl_b32 s22, s29, 3")
    a(f"s_add_u32 s22, s22, {W}")
    a(f"s_mul_i32 s22, s22, {2*WCT}")
    a("s_lshl_b32 s23, s28, 10")
    a("s_add_u32 s22, s22, s23")
    a(f"s_add_u32 s22, s22, {WB_OFF:#x}")
    a("s_mov_b32 s100, s22")
    a(f"s_mov_b32 s101, {WCT}")
    a("s_waitcnt lgkmcnt(0)")
    gpack(a, RES, G0)
    gpack(a, RES + 4, G0 + 8)
    a("s_branch L_prep_done")
    a.lab("L_po")
    a("s_cmp_ge_u32 s2, 216")
    a("s_cselect_b32 s8, s46, s40")
    a("s_cselect_b32 s9, s47, s41")
    a("s_cselect_b32 s28, 36, 0")
    a(f"s_cselect_b32 s29, {WOB_OFF>>20}, {WOA_OFF>>20}")
    a(f"s_mov_b32 s10, {576*1152}")
    a("s_sub_u32 s28, s2, s28")
    a("s_sub_u32 s28, s28, 180")
    a(f"s_mul_i32 s22, s28, {18*1152}")
    a("s_sub_u32 s23, s28, 32")
    a(f"s_mul_i32 s23, s23, {144*1152}")
    a(f"s_add_u32 s23, s23, {16*1152}")
    a("s_cmp_ge_u32 s28, 32")
    a("s_cselect_b32 s22, s23, s22")
    a(f"s_cselect_b32 s24, {18*1152-2304}, 0")
    a(f"s_lshl_b32 s23, {W}, 10")
    a(f"s_add_u32 m0, s23, {L_PREP}")
    for r in range(3):
        if r == 2:
            a(f"s_cmp_ge_u32 {W}, 2")
            a("s_cbranch_scc1 L_po1")
        a(f"v_add_u32 v4, {512*r}, v0")
        a("v_mul_u32_u24 v5, 1821, v4")
        a("v_lshrrev_b32 v5, 18, v5")
        a("v_mul_lo_u32 v5, v5, s24")
        a("v_lshl_add_u32 v4, v4, 4, v5")
        a(f"buffer_load_dwordx4 v4, {AUX}, s22 offen lds")
        if r < 2: a("s_add_u32 m0, m0, 8192")
    a.lab("L_po1")
    x0_dma(a)
    a(f"v_mul_u32_u24 v10, {8*1152}, v{vH}")
    a(f"s_lshl_b32 s23, {W}, 6")
    a(f"s_add_u32 s23, s23, {L_PREP}")
    a("v_add3_u32 v4, v10, v12, s23")
    for r in range(3):
        gather(a, 4, 1152, P0 + 4 * r, G0 + 8 * r)
        a("v_add_u32 v4, 512, v4")
        if r == 1: a("s_waitcnt lgkmcnt(0)")
    a("s_lshl_b32 s29, s29, 20")
    a(f"s_mul_i32 s22, {W}, {WCT}")
    a("s_lshl_b32 s23, s28, 10")
    a("s_add_u32 s22, s22, s23")
    a("s_add_u32 s22, s22, s29")
    a("s_mov_b32 s100, s22")
    a(f"s_mov_b32 s101, {8*WCT}")
    a("s_waitcnt lgkmcnt(0)")
    gpack(a, RES, G0)
    gpack(a, RES + 4, G0 + 8)
    gpack(a, R, G0 + 16)
    a("s_branch L_prep_done")
    a.lab("L_pn")
    x0_dma(a)
    a.lab("L_prep_done")
    a("s_mov_b32 s8, s48")
    a("s_mov_b32 s9, s49")
    a(f"s_mov_b32 s10, {2048*1152}")
    a(f"v_mov_b32 v5, {L_FLAG}")
    a(f"s_cmp_lg_u32 {W}, 7")
    a("s_cbranch_scc1 L_pd_w")
    a("s_mov_b32 s21, 0")
    a.lab("L_pd_poll")
    a("buffer_load_dword v4, off, s[56:59], 0 sc1")
    a("s_add_u32 s21, s21, 1")
    a(f"s_cmp_gt_u32 s21, {sLIM}")
    a("s_waitcnt vmcnt(0)")
    a("s_cbranch_scc1 L_pd_got")
    a("v_cmp_eq_u32 vcc, 0, v4")
    a("s_cbranch_vccnz L_pd_poll")
    a.lab("L_pd_got")
    a("ds_write_b32 v5, v4")
    a.lab("L_pd_w")
    a("s_waitcnt vmcnt(0) lgkmcnt(0)")
    a("s_barrier")
    a(f"ds_read_b32 v{vNONCE}, v5")
    a("s_waitcnt lgkmcnt(0)")
    a(f"v_readfirstlane_b32 {sNONCE}, v{vNONCE}")
    a(f"s_cmp_lg_u32 {W}, 3")
    a("s_cbranch_scc1 L_pd_noflag")
    a("s_cmp_ge_u32 s2, 36")
    a("s_cbranch_scc1 L_pd_noflag")
    prep_flag(a)
    a.lab("L_pd_noflag")
    stamp(a, "prep_done")

def wa_role(a, skip):
    a(f"s_cmp_lt_u32 {W}, 4")
    a(f"s_cbranch_scc1 {skip}")
    a(f"s_lshr_b32 s23, {sI}, 2")
    a("s_mul_i32 s22, s23, 3")
    a(f"s_add_u32 s22, s22, {W}")
    a("s_sub_u32 s22, s22, 5")
    a(f"s_cmp_lg_u32 {W}, 4")
    l = a.nl("Lwa")
    a(f"s_cbranch_scc1 {l}")
    a("s_and_b32 s24, s23, 2")
    a("s_cmp_eq_u32 s24, 0")
    a(f"s_cbranch_scc1 {skip}")
    a("s_lshr_b32 s22, s23, 2")
    a("s_add_u32 s22, s22, 24")
    a.lab(l)

def wa_issue(a):
    a(f"s_mul_i32 s22, s22, {WCT}")
    a(f"s_add_u32 s22, s22, {WA_OFF:#x}")
    r_loads(a, WS, "s22", 0, 36)

QM = 24
QE = 28
S_ = [36, 52]
OC = 68
KM = 84
KE = 88
VA, VB = 92, 96
vKa, vKe, vVa = 8, 9, 10

FAIR = True
LSTART = 0
BPF = 36
WEARLY = 12
def body(a, cur, rdKM=None, rdKE=None, rdVa=None, rdVb=None, u=0, qk=True, pv1=True, cinit=None, ke64=True, pvwait=2,
         extra=(), fair=False, ozero=False):
    s, n = S_[cur], S_[cur ^ 1]
    e = lambda r: a(f"v_exp_f32 v{s+r}, v{s+r}")
    c = lambda p: a(f"v_cvt_pk_bf16_f32 v{s+p+(4 if p >= 4 else 0)}, v{s+2*p}, v{s+2*p+1}")
    ad = lambda x, d: (f"v{x[0]} offset:{x[1]}" if isinstance(x, tuple) else f"v{d} offset:{x}")
    if fair: a("s_setprio 1")
    e(0); e(1)
    if pv1:
        a(f"s_waitcnt lgkmcnt({pvwait})")
        a(f"v_mfma_f32_32x32x16_bf16 {vr(OC,16)}, {vr(VB,4)}, {vr(n+8,4)}, {vr(OC,16)}")
    if rdVb is not None:
        a(f"ds_read_b128 {vr(VB,4)}, {ad(rdVb, vVa)}")
    if cinit is not None:
        cinit(n)
    e(2); e(3); e(4); c(0)
    if qk:
        a("s_waitcnt lgkmcnt(2)")
        a(f"v_mfma_f32_32x32x16_bf16 {vr(n,16)}, {vr(KM,4)}, {vr(QM,4)}, {vr(n,16) if cinit is not None else 0}")
    if rdKM is not None:
        a(f"ds_read_b128 {vr(KM,4)}, {ad(rdKM, vKa)}")
    e(5); e(6); e(7); c(1); c(2)
    if qk:
        a(f"v_mfma_f32_32x32x8_bf16 {vr(n,16)}, {vr(KE,2)}, {vr(QE+2*u,2)}, {vr(n,16)}")
    if rdKE is not None:
        a(f"ds_read_b64 {vr(KE,2)}, {ad(rdKE, vKe)}" if ke64 else f"ds_read_b32 v{KE}, {ad(rdKE, vKe)}")
    for x in extra: a(x)
    if fair: a("s_setprio 0")
    c(3); e(8); e(9); e(10); e(11); c(4)
    later = (rdVb is not None) + (rdKM is not None) + (rdKE is not None)
    a(f"s_waitcnt lgkmcnt({min(later, 2)})")
    a(f"v_mfma_f32_32x32x16_bf16 {vr(OC,16)}, {vr(VA,4)}, {vr(s,4)}, {0 if ozero else vr(OC,16)}")
    if rdVa is not None:
        a(f"ds_read_b128 {vr(VA,4)}, {ad(rdVa, vVa)}")
    e(12); e(13); e(14); e(15); c(5); c(6); c(7)

def tail_pv1(a, cur):
    a("s_waitcnt lgkmcnt(0)")
    a("s_nop 0")
    a(f"v_mfma_f32_32x32x16_bf16 {vr(OC,16)}, {vr(VB,4)}, {vr(S_[cur]+8,4)}, {vr(OC,16)}")

def v_addr(a, base):
    a(f"v_mul_u32_u24 v{vVa}, 304, v{vH}")
    a(f"v_min_u32 v4, 18, v{vT}")
    a(f"v_lshl_add_u32 v{vVa}, v4, 4, v{vVa}")
    a(f"v_add_u32 v{vVa}, {base}, v{vVa}")
    a(f"v_cmp_ge_u32 vcc, 18, v{vT}")
    a(f"v_cmp_eq_u32 s[62:63], 28, v{vT}")
    a("s_or_b64 vcc, vcc, s[62:63]")
    a(f"v_mov_b32 v4, {LOOB:#x}")
    a("s_nop 0")
    a(f"v_cndmask_b32 v{vVa}, v4, v{vVa}, vcc")

def attn_finish(a, tag, sT, sHead, OO):
    a("s_nop 12")
    a(f"v_cmp_eq_u32 vcc, 0, v{vH}")
    a("s_nop 1")
    a(f"v_cndmask_b32 v4, v{OC+12}, v{OC+10}, vcc")
    a(f"v_cmp_le_f32 vcc, {f2u(2.0**-60):#x}, v4")
    a(f"v_mov_b32 v5, {f2u(2.0**60):#x}")
    a("v_cmp_le_f32 s[62:63], v4, v5")
    a("s_and_b64 vcc, vcc, s[62:63]")
    a("s_cmp_eq_u64 vcc, -1")
    a(f"s_cbranch_scc0 L_{tag}_slow")
    a.lab(f"L_{tag}_fin")
    a("v_rcp_f32 v4, v4")
    a("s_nop 0")
    for r in range(10):
        a(f"v_mul_f32 v{OC+r}, v4, v{OC+r}")
    pack(a, OC, 5)
    a(f"s_mul_i32 s24, {sT}, {XT}")
    a(f"s_add_u32 s24, s24, {OO:#x}")
    a(f"s_lshl_b32 s27, {sHead}, 10")
    a("s_add_u32 s27, s27, s24")
    a(f"s_lshr_b32 s25, {sHead}, 2")
    a("s_lshl_b32 s25, s25, 9")
    a(f"s_and_b32 s26, {sHead}, 3")
    a("s_lshl_b32 s26, s26, 2")
    a("s_add_u32 s25, s25, s26")
    a("s_add_u32 s25, s25, s24")
    a(f"s_add_u32 s25, s25, {32*1024}")
    a(f"v_lshlrev_b32 v4, 30, v{vH}")
    a(f"v_lshl_add_u32 v4, v{vT}, 4, v4")
    lstore(a, [f"buffer_store_dwordx4 {vr(OC,4)}, v{vL16}, {WS}, s27 offen",
               f"buffer_store_dword v{OC+4}, v4, {WS}, s25 offen"])

def mask_init(a, dst, diag):
    for r in range(16):
        m = f"s[{MASK+2*r}:{MASK+2*r+1}]"
        if diag: a(f"v_cndmask_b32 v{dst+r}, v11, 0, {m}")
        else:    a(f"v_cndmask_b32 v{dst+r}, 0, v11, {m}")

def slow_qk(a, u, cin):
    s = S_[0]
    a("s_waitcnt lgkmcnt(0)")
    a("s_nop 1")
    a(f"v_mfma_f32_32x32x16_bf16 {vr(s,16)}, {vr(KM,4)}, {vr(QM,4)}, {vr(s,16) if cin else 0}")
    a(f"v_mfma_f32_32x32x8_bf16 {vr(s,16)}, {vr(KE,2)}, {vr(QE+2*u,2)}, {vr(s,16)}")
    a("s_nop 12")

def slow_max(a):
    s = S_[0]
    for i in range(8):
        a(f"v_max3_f32 v7, v{s+2*i}, v{s+2*i+1}, v7")

def slow_pv(a):
    s = S_[0]
    for r in range(16):
        a(f"v_sub_f32 v{s+r}, v{s+r}, v7")
    for r in range(16):
        a(f"v_exp_f32 v{s+r}, v{s+r}")
    a("s_nop 0")
    pack(a, s, 8)
    a("s_nop 1")
    a(f"v_mfma_f32_32x32x16_bf16 {vr(OC,16)}, {vr(VA,4)}, {vr(s,4)}, {vr(OC,16)}")
    a(f"v_mfma_f32_32x32x16_bf16 {vr(OC,16)}, {vr(VB,4)}, {vr(s+4,4)}, {vr(OC,16)}")
    a("s_nop 7")

def slow_mid(a):
    a("v_mov_b32 v6, v7")
    a("s_nop 1")
    a("v_permlane32_swap_b32 v6, v7")
    a("s_nop 1")
    a("v_max_f32 v7, v6, v7")
    for r in range(16):
        a(f"v_mov_b32 v{OC+r}, 0")

def slow_end(a, tag):
    a("s_nop 12")
    a(f"v_cmp_eq_u32 vcc, 0, v{vH}")
    a("s_nop 1")
    a(f"v_cndmask_b32 v4, v{OC+12}, v{OC+10}, vcc")
    a(f"s_branch L_{tag}_fin")

def out_role(a):
    a(f"s_and_b32 s42, {sI}, 7")
    a(f"s_lshl_b32 s43, {sX}, 3")
    a("s_add_u32 s42, s42, s43")
    a(f"s_lshr_b32 s44, {sI}, 3")
    a("s_mul_i32 s43, s44, 9")
    a("s_add_u32 s43, s43, 1")
    a("s_lshr_b32 s43, s43, 1")
    a(f"s_add_u32 s43, s43, {W}")
    a("s_and_b32 s44, s44, 1")
    a("s_sub_u32 s44, 5, s44")

def gen_pha(a, slow):
    a.lab("L_it")
    stamp(a, "A_begin")
    a(f"s_and_b32 s45, {sI}, 3")
    a("s_lshl_b32 s45, s45, 1")
    a(f"s_lshl_b32 s46, {sX}, 3")
    a("s_add_u32 s45, s45, s46")
    a(f"s_lshr_b32 s46, {sI}, 2")
    a(f"s_cmp_ge_u32 {W}, 5")
    a("s_cbranch_scc1 L_A_q2")
    a(f"s_cmp_eq_u32 {W}, 4")
    a("s_cbranch_scc1 L_A_kv")
    a(f"s_cmp_ge_u32 {W}, 2")
    a("s_cbranch_scc1 L_A_st")
    a(f"s_add_u32 s22, s45, {W}")
    a(f"s_cmp_eq_u32 {sIT}, 0")
    a("s_cbranch_scc1 L_A_ld2")
    a("s_lshl_b32 s23, s22, 9")
    a(f"s_add_u32 s23, s23, {FXA:#x}")
    poll(a, IT, "s23", 4)
    stamp(a, "A_xflag")
    a(f"s_mul_i32 s22, s22, {XT}")
    a(f"s_add_u32 s22, s22, {XS:#x}")
    a(f"s_mul_i32 s23, {W}, {XT}")
    a(f"s_add_u32 m0, s23, {L_XA}")
    dma(a, WS, "s22", 36, 1024, 1024)
    a.lab("L_A_ld2")
    for n in (24, 12, 0):
        a(f"s_waitcnt vmcnt({n})")
        a("s_barrier")
        if n == 24: stamp(a, "A_bar1")
    a("s_call_b64 s[30:31], L_defer")
    a(f"s_cmp_lg_u32 {W}, 0")
    a("s_cbranch_scc1 L_A_q")
    a(f"s_lshl_b32 s23, {sX}, 11")
    a(f"s_add_u32 s23, s23, {FKAL:#x}")
    poll(a, IT, "s23", 16)
    stamp(a, "A_kvflag")
    a(f"s_mul_i32 s22, {sX}, {BLK}")
    a(f"s_add_u32 s22, s22, {KVL:#x}")
    a("s_mov_b32 m0, 0")
    dma(a, WS, "s22", 19, 1024, 1024, half_last=True)
    a("s_waitcnt vmcnt(0)")
    a("s_branch L_A_q")
    a.lab("L_A_idle")
    for n in range(3):
        a("s_barrier")
        if n == 0: a("s_call_b64 s[30:31], L_defer")
    a("s_branch L_A_q")
    a.lab("L_A_st")
    a(f"s_sub_u32 s24, {W}, 2")
    a(f"s_cmp_eq_u32 {sIT}, 0")
    a("s_cbranch_scc0 L_A_st1")
    a(f"s_mul_i32 s25, s24, {XT}")
    a(f"s_add_u32 s25, s25, {L_XA}")
    xaddr(a, 40, "s25")
    a(f"v_mov_b32 v{STR}, 0")
    a(f"v_mov_b32 v{STR+1}, 0")
    a("s_mov_b32 s25, 0")
    a.lab("L_A_st0")
    for k in range(12):
        a(f"ds_read_b128 {vr(R+4+4*k,4)}, v{40+(k&3)} offset:{(k>>2)*4096}")
    for k in range(12):
        a(f"s_waitcnt lgkmcnt({11-k})")
        for d in range(4):
            a(f"v_dot2_f32_bf16 v{STR}, v{R+4+4*k+d}, s60, v{STR}")
            a(f"v_dot2_f32_bf16 v{STR+1}, v{R+4+4*k+d}, v{R+4+4*k+d}, v{STR+1}")
    for q in range(4):
        a(f"v_add_u32 v{40+q}, {3*4096}, v{40+q}")
    a("s_add_u32 s25, s25, 1")
    a("s_cmp_lt_u32 s25, 3")
    a("s_cbranch_scc1 L_A_st0")
    a("s_barrier")
    a("s_call_b64 s[30:31], L_defer")
    a(f"v_permlane32_swap_b32 v{STR}, v{STR+1}")
    a("s_nop 1")
    a(f"v_add_f32 v{STR}, v{STR}, v{STR+1}")
    a("s_barrier")
    a("s_branch L_A_st2")
    a.lab("L_A_st1")
    a("s_add_u32 s25, s45, s24")
    a("s_barrier")
    stats_load(a, STR, "s25", STS)
    a("s_barrier")
    a("s_waitcnt vmcnt(0)")
    stats_sum(a, STR)
    a.lab("L_A_st2")
    stats_compute(a, STR, XEXT, RSTD)
    a("s_lshl_b32 s24, s24, 8")
    a(f"s_add_u32 s24, s24, {L_MISC}")
    a(f"v_lshl_add_u32 v4, v{vT}, 2, s24")
    a(f"ds_write_b32 v4, v{RSTD}")
    a(f"ds_write_b32 v4, v{XEXT} offset:128")
    a("s_waitcnt lgkmcnt(0)")
    a("s_barrier")
    a("s_branch L_A_q")
    def bar1():
        l = a.nl("Lb")
        a(f"s_cmp_eq_u32 {sIT}, 0")
        a(f"s_cbranch_scc1 {l}")
        a("s_barrier")
        a.lab(l)
    def gemm3(bases, swap, pre, staged):
        a(f"v_mov_b32 v{CS}, 0")
        a(f"v_mov_b32 v{XEXT+1}, 0")
        a(f"v_mov_b32 v{XEXT+3}, 0")
        if staged:
            bar1()
            gemm_stage(a, bases, 0, 12, swap, True, cs=True, quad=True)
            bar1()
            gemm_stage(a, bases, 12, 24, swap, False, cs=True, quad=True)
            bar1()
            gemm_stage(a, bases, 24, 36, swap, False, cs=True, pre=pre, quad=True)
        else:
            for _ in range(3): bar1()
            gemm_stage(a, bases, 0, 36, swap, True, cs=True, pre=pre, quad=True)
    def first_w():
        l, e = a.nl("Lfw"), a.nl("Lfe")
        a(f"s_cmp_eq_u32 {sIT}, 0")
        a(f"s_cbranch_scc0 {l}")
        for _ in range(3): a("s_barrier")
        a(f"s_mov_b32 s23, {FPREP:#x}")
        poll(a, WS, "s23", 36, vtmp=4, voff=13)
        stamp(a, "A_wflag")
        wa_role(a, l)
        wa_issue(a)
        a("s_call_b64 s[30:31], L_defer")
        a(f"s_branch {e}")
        a.lab(l)
        a("s_waitcnt vmcnt(0)")
        a.lab(e)
    a.lab("L_A_kv")
    a("s_and_b32 s24, s46, 2")
    a("s_cmp_eq_u32 s24, 0")
    a("s_cbranch_scc1 L_A_idle")
    a("s_and_b32 s24, s46, 1")
    a("s_add_u32 s47, s45, s24")
    a("s_lshl_b32 s27, s24, 8")
    a(f"s_add_u32 s27, s27, {L_MISC}")
    a(f"s_mul_i32 s24, s24, {XT}")
    a(f"s_add_u32 s24, s24, {L_XA}")
    xaddr(a, 40, "s24")
    a(f"v_lshl_add_u32 v6, v{vT}, 2, s27")
    a(f"v_lshl_add_u32 v5, v{vH}, 4, s27")
    a("s_lshr_b32 s28, s47, 2")
    a(f"s_mul_i32 s28, s28, {GRP}")
    a(f"s_add_u32 s28, s28, {KVA:#x}")
    a("s_and_b32 s29, s47, 3")
    a("s_setprio 3")
    first_w()
    a("s_cmp_ge_u32 s46, 4")
    a("s_cbranch_scc1 L_A_v")
    def pre_k():
        a(f"ds_read_b32 v{RSTD}, v6")
        a(f"ds_read_b32 v{XEXT}, v6 offset:128")
    gemm3([40], False, pre_k, True)
    a(f"v_mfma_f32_32x32x8_bf16 {vr(ACC,16)}, {vr(WEXT,2)}, {vr(XEXT,2)}, {vr(ACC,16)}")
    a("s_lshl_b32 s30, s29, 10")
    a("s_add_u32 s30, s30, s28")
    a(f"s_add_u32 s31, s30, {KVL-KVA:#x}")
    a("s_lshr_b32 s24, s29, 1")
    a("s_lshl_b32 s24, s24, 8")
    a("s_and_b32 s25, s29, 1")
    a("s_lshl_b32 s25, s25, 2")
    a("s_add_u32 s24, s24, s25")
    a("s_add_u32 s24, s24, s28")
    a("s_add_u32 s24, s24, 4096")
    a(f"s_add_u32 s25, s24, {KVL-KVA:#x}")
    a(f"v_lshlrev_b32 v4, 30, v{vH}")
    a(f"v_lshl_add_u32 v4, v{vT}, 3, v4")
    for r in range(10):
        a(f"v_mul_f32 v{ACC+r}, v{RSTD}, v{ACC+r}")
    pack(a, ACC, 5)
    lstore(a, [f"buffer_store_dwordx4 {vr(ACC,4)}, v{vL16}, {WS}, s31 offen", f"buffer_store_dword v{ACC+4}, v4, {WS}, s25 offen"])
    a(f"buffer_store_dwordx4 {vr(ACC,4)}, v{vL16}, {IT}, s30 offen sc1")
    a(f"buffer_store_dword v{ACC+4}, v4, {IT}, s24 offen sc1")
    a("s_mov_b32 s26, 0")
    a("s_branch L_A_kvflag")
    a.lab("L_A_v")
    def pre_v():
        a(f"ds_read_b32 v{XEXT}, v6 offset:128")
        for q in range(4):
            a(f"ds_read_b128 {vr(STR+4*q,4)}, v5 offset:{32*q}")
    gemm3([40], True, pre_v, True)
    a(f"v_mfma_f32_32x32x8_bf16 {vr(ACC,16)}, {vr(XEXT,2)}, {vr(WEXT,2)}, {vr(ACC,16)}")
    a(f"s_mul_i32 s30, s29, {VT}")
    a("s_add_u32 s30, s30, s28")
    a("s_add_u32 s30, s30, 4608")
    a(f"s_add_u32 s31, s30, {KVL-KVA:#x}")
    a(f"v_mul_u32_u24 v4, 304, v{vH}")
    a(f"v_lshl_add_u32 v4, v{vT}, 4, v4")
    a(f"v_mov_b32 v5, {OOB:#x}")
    a(f"v_cmp_ge_u32 vcc, 18, v{vT}")
    a("s_nop 1")
    a("v_cndmask_b32 v4, v5, v4, vcc")
    a("s_nop 1")
    for r in range(16):
        a(f"v_mul_f32 v{ACC+r}, v{STR+r}, v{ACC+r}")
    pack(a, ACC, 8)
    a("s_mov_b32 s24, 0x40000")
    a("s_mov_b32 s25, 0x40000")
    a("s_mov_b64 exec, s[24:25]")
    for p in range(8):
        a(f"v_mov_b32 v{ACC+p}, s60")
    a("s_mov_b64 exec, -1")
    lstore(a, [f"buffer_store_dwordx4 {vr(ACC,4)}, v4, {WS}, s31 offen", f"buffer_store_dwordx4 {vr(ACC+4,4)}, v4, {WS}, s31 offen offset:608"])
    for so in ("s30",):
        a(f"buffer_store_dwordx4 {vr(ACC,4)}, v4, {IT}, {so} offen sc1")
        a(f"buffer_store_dwordx4 {vr(ACC+4,4)}, v4, {IT}, {so} offen offset:608 sc1")
    a("s_mov_b32 s26, 128")
    a.lab("L_A_kvflag")
    stamp(a, "A_kvst")
    a("s_lshl_b32 s24, s47, 8")
    a("s_add_u32 s24, s24, s26")
    a(f"s_add_u32 s25, s24, {FKAL:#x}")
    a(f"s_add_u32 s24, s24, {FKA:#x}")
    a("s_waitcnt vmcnt(2)")
    stamp(a, "A_kvack")
    setflag(a, IT, "s25", local=True)
    a("s_waitcnt vmcnt(1)")
    setflag(a, IT, "s24")
    a("s_setprio 0")
    a("s_branch L_A_q")
    a.lab("L_A_q2")
    xaddr(a, 88, L_XA)
    for q in range(4):
        a(f"v_add_u32 v{92+q}, {XT}, v{88+q}")
    a(f"v_lshlrev_b32 v5, 2, v{vT}")
    a(f"v_add_u32 v5, {L_MISC}, v5")
    first_w()
    def pre_q():
        for t in range(2):
            a(f"ds_read_b32 v{RSTD+t}, v5 offset:{256*t}")
            a(f"ds_read_b32 v{XEXT+2*t}, v5 offset:{256*t+128}")
    gemm3([88, 92], False, pre_q, False)
    for t in range(2):
        a(f"v_mfma_f32_32x32x8_bf16 {vr(ACC+16*t,16)}, {vr(WEXT,2)}, {vr(XEXT+2*t,2)}, {vr(ACC+16*t,16)}")
    for t in range(2):
        a(f"v_mul_f32 v{RSTD+t}, {f2u(QSCALE):#x}, v{RSTD+t}")
    a(f"s_sub_u32 s24, {W}, 5")
    a(f"s_mul_i32 s24, s24, {4*1152}")
    a(f"s_add_u32 s24, s24, {L_Q}")
    a(f"v_add_u32 v4, s24, v{vL16}")
    a(f"v_mul_u32_u24 v5, {4*1152}, v{vH}")
    a(f"v_lshl_add_u32 v5, v{vT}, 2, v5")
    a(f"v_add_u32 v5, {L_Q+1024}, v5")
    a("s_nop 3")
    for t in range(2):
        for r in range(16):
            a(f"v_mul_f32 v{ACC+16*t+r}, v{RSTD+t}, v{ACC+16*t+r}")
        pack(a, ACC + 16 * t, 8)
    a(f"s_cmp_eq_u32 {W}, 7")
    a("s_cbranch_scc1 L_A_qext")
    for t in range(2):
        for hh in range(2):
            a(f"ds_write_b128 v4, {vr(ACC+16*t+4*hh,4)} offset:{(2*hh+t)*1152}")
    a("s_branch L_A_q")
    a.lab("L_A_qext")
    for t in range(2):
        for p in range(2):
            a(f"ds_write_b32 v5, v{ACC+16*t+p} offset:{(2*p+t)*1152}")
    a.lab("L_A_q")
    a("s_waitcnt vmcnt(0) lgkmcnt(0)")
    a("s_barrier")
    stamp(a, "A_attn0")
    a(f"v_lshlrev_b32 v11, 3, v{vL16}")
    a(f"s_add_u32 s47, {sX}, {W}")
    a("s_and_b32 s47, s47, 7")
    a("s_lshl_b32 s23, s47, 11")
    a(f"s_add_u32 s23, s23, {FKA:#x}")
    a(f"v_mov_b32 v12, v{vNONCE}")
    set_exec(a, 0xffff)
    poll_issue(a, IT, "s23", 16, 12, 11)
    a("s_mov_b64 exec, -1")
    a(f"s_mul_i32 s24, {W}, 1152")
    a(f"s_add_u32 s24, s24, {L_Q}")
    a(f"v_add_u32 v4, s24, v{vL16}")
    a(f"v_lshl_add_u32 v5, v{vT}, 2, s24")
    a(f"ds_read_b128 {vr(QM,4)}, v4")
    a(f"ds_read_b32 v6, v5 offset:1024")
    a(f"v_mov_b32 v{vKa}, v{vL16}")
    a(f"v_lshlrev_b32 v{vKe}, 8, v{vH}")
    a(f"v_lshl_add_u32 v{vKe}, v{vT}, 3, v{vKe}")
    a(f"ds_read_b128 {vr(KM,4)}, v{vKa}")
    a(f"ds_read_b64 {vr(KE,2)}, v{vKe} offset:4096")
    v_addr(a, 4608)
    for r in range(16):
        a(f"v_mov_b32 v{OC+r}, 0")
    a(f"v_cmp_eq_u32 vcc, 0, v{vH}")
    for r in (1, 2, 5, 6):
        a(f"v_mov_b32 v{QE+r}, 0")
    a("s_waitcnt lgkmcnt(0)")
    a(f"v_cndmask_b32 v{QE}, 0, v6, vcc")
    a(f"v_cndmask_b32 v{QE+3}, 0, v6, vcc")
    a(f"v_cndmask_b32 v{QE+4}, v6, 0, vcc")
    a(f"v_cndmask_b32 v{QE+7}, v6, 0, vcc")
    a(f"v_mfma_f32_32x32x16_bf16 {vr(S_[0],16)}, {vr(KM,4)}, {vr(QM,4)}, 0")
    a(f"v_mfma_f32_32x32x8_bf16 {vr(S_[0],16)}, {vr(KE,2)}, {vr(QE,2)}, {vr(S_[0],16)}")
    a(f"ds_read_b128 {vr(KM,4)}, v{vKa} offset:1024")
    a(f"ds_read_b128 {vr(VA,4)}, v{vVa}")
    a(f"s_and_b32 s22, {W}, 1")
    a("s_add_u32 s45, s45, s22")
    a("s_lshl_b32 s46, s46, 2")
    a(f"s_lshr_b32 s22, {W}, 1")
    a("s_add_u32 s46, s46, s22")
    out_role(a)
    a(f"s_lshl_b32 s41, {sI}, 1")
    a(f"s_add_u32 s41, s41, {W}")
    a("s_sub_u32 s41, s41, 5")
    a(f"s_mul_i32 s41, s41, {WCT}")
    a(f"s_add_u32 s41, s41, {WB_OFF:#x}")
    a(f"s_sub_u32 s22, {W}, 5")
    a("s_cmp_lt_u32 s22, 2")
    a(f"s_cselect_b32 s41, s41, {OOB:#x}")
    a(f"s_mul_i32 s22, s43, {XT}")
    a(f"s_add_u32 s22, s22, {WOA_OFF:#x}")
    a(f"s_cmp_lt_u32 {W}, s44")
    a("s_cselect_b32 s41, s22, s41")
    base = {vKa: 0, vKe: 0, vVa: 0}
    def off(reg, o):
        if o - base[reg] > 65535:
            d = 6 * GRP
            a(f"v_add_u32 v{reg}, {d}, v{reg}")
            base[reg] += d
        assert 0 <= o - base[reg] <= 65535
        return o - base[reg]
    def call_if(lo, hi, target):
        l = a.nl("Lc")
        if lo == hi:
            a(f"s_cmp_eq_u32 {W}, {lo}")
        else:
            a(f"s_sub_u32 s22, {W}, {lo}")
            a(f"s_cmp_le_u32 s22, {hi-lo}")
        a(f"s_cbranch_scc0 {l}")
        a(f"s_call_b64 s[30:31], {target}")
        a.lab(l)
    ko = lambda t: (t >> 2) * GRP + (t & 3) * 1024
    vo = lambda t: (t >> 2) * GRP + (t & 3) * VT
    for j in range(64):
        if j + 1 < 64: off(vVa, vo(j + 1))
        kw = dict(rdKM=off(vKa, ko(j + 2)) if j + 2 < 64 else None,
                  rdKE=off(vKe, ((j + 2) >> 2) * GRP + 4096) if (j + 2 < 64 and (j + 2) % 4 == 0) else None,
                  rdVa=off(vVa, vo(j + 1)) if j + 1 < 64 else None, rdVb=off(vVa, vo(j) + 608))
        ex = []
        if 22 <= j < 58:
            ks = j - 22
            if ks % 4 == 0: ex.append(f"s_add_u32 s61, s41, {(ks//4)*4096}")
            ex.append(f"buffer_load_dwordx4 {vr(R+4*ks,4)}, v{vL16}, {WS}, s61 offen offset:{(ks%4)*1024}")
        body(a, j & 1, u=(j + 1) & 3, qk=(j < 63), pv1=(j > 0), pvwait=(1 if j == 63 else 2), extra=ex, fair=FAIR, **kw)
        if j == 0: call_if(0, 0, "L_A_pflag")
        if j == 1: call_if(1, 2, "L_A_fetch")
        if j == 5:
            a("s_waitcnt vmcnt(0)")
            a("s_barrier")
            stamp(a, "A_n2b")
            call_if(3, 4, "L_A_fetch")
        if j == 9:
            call_if(5, 6, "L_A_fetch")
            call_if(0, 0, "L_A_check")
        if j == 13: call_if(7, 7, "L_A_fetch")
        if j == 21:
            a("s_waitcnt vmcnt(0)")
            a("s_barrier")
            stamp(a, "A_n4b")
            stamp(a, "A_n4b", True)
            l = a.nl("Lc")
            a(f"s_cmp_eq_u32 {sIT}, 0")
            a(f"s_cbranch_scc0 {l}")
            a("s_call_b64 s[30:31], L_A_touch")
            a.lab(l)
    tail_pv1(a, 1)
    stamp(a, "A_attn1")
    stamp(a, "A_attn1", True)
    attn_finish(a, "A", "s45", "s46", OS)
    a("s_waitcnt vmcnt(0)")
    a("s_barrier")
    a(f"s_cmp_lg_u32 {W}, 0")
    a("s_cbranch_scc1 L_A_end")
    a("s_lshr_b32 s22, s45, 1")
    a("s_lshl_b32 s22, s22, 10")
    a("s_lshl_b32 s23, s46, 5")
    a("s_add_u32 s22, s22, s23")
    a(f"s_add_u32 s22, s22, {FOA:#x}")
    setflag(a, IT, "s22", local=True)
    a.lab("L_A_end")
    stamp(a, "A_end")
    b = slow
    x0_sub(b)
    RET = "s_setpc_b64 s[30:31]"
    b.lab("L_defer")
    b(f"s_cmp_eq_u32 {sIT}, 0")
    b("s_cbranch_scc0 L_ret")
    b(f"buffer_store_dwordx4 {vr(RES,4)}, v{vL16}, {WS}, s100 offen sc1")
    b("s_add_u32 s100, s100, s101")
    b(f"buffer_store_dwordx4 {vr(RES+4,4)}, v{vL16}, {WS}, s100 offen sc1")
    b("s_cmp_lt_u32 s2, 180")
    b("s_cbranch_scc1 L_ret")
    b(f"s_cmp_ge_u32 {W}, 2")
    b("s_cbranch_scc1 L_ret")
    b("s_add_u32 s100, s100, s101")
    b(f"buffer_store_dwordx4 {vr(R,4)}, v{vL16}, {WS}, s100 offen sc1")
    b.lab("L_ret")
    b(RET)
    b.lab("L_A_pflag")
    b(f"s_cmp_eq_u32 {sIT}, 0")
    b("s_cbranch_scc0 L_ret")
    b("s_cmp_lt_u32 s2, 36")
    b("s_cbranch_scc1 L_ret")
    prep_flag(b)
    b(RET)
    b.lab("L_A_fetch")
    b("s_waitcnt vmcnt(0)")
    poll_test(b, 16, 12)
    b("s_cbranch_vccz L_A_fetch2")
    b("s_lshl_b32 s23, s47, 11")
    b(f"s_add_u32 s23, s23, {FKA:#x}")
    poll(b, IT, "s23", 16, vtmp=4, voff=11, setoff=False)
    b.lab("L_A_fetch2")
    b(f"s_mul_i32 s22, s47, {BLK}")
    b(f"s_add_u32 s22, s22, {KVA:#x}")
    b(f"s_mul_i32 m0, {W}, {BLK}")
    dma(b, IT, "s22", 19, 1024, 1024, half_last=True)
    b(RET)
    b.lab("L_A_check")
    b(f"s_cmp_eq_u32 {sIT}, 0")
    b("s_cbranch_scc0 L_ret")
    b(f"s_mov_b32 s22, {FPREP:#x}")
    poll(b, WS, "s22", 256, vtmp=4, voff=11, setoff=False)
    b(f"v_lshlrev_b32 v5, 10, v{vT}")
    b(f"s_lshl_b32 s22, {sX}, 7")
    b(f"s_add_u32 s22, s22, {FPREP:#x}")
    b(f"buffer_load_dword v4, v5, {WS}, s22 offen offset:4 sc1")
    b("s_getreg_b32 s23, hwreg(HW_REG_XCC_ID)")
    b("s_waitcnt vmcnt(0)")
    b("v_cmp_ne_u32 vcc, s23, v4")
    b("s_cmp_eq_u64 vcc, 0")
    b("s_cselect_b32 s22, 1, 0")
    if NOLOCAL: b("s_mov_b32 s22, 0")
    b("v_mov_b32 v4, s22")
    b(f"v_mov_b32 v5, {L_FLAG}")
    b("ds_write_b32 v5, v4 offset:4")
    b("s_waitcnt lgkmcnt(0)")
    b(RET)
    b.lab("L_A_touch")
    b(f"v_mov_b32 v5, {L_FLAG}")
    b("ds_read_b32 v4, v5 offset:4")
    b(f"s_mul_i32 s22, s42, {XT}")
    b("s_lshl_b32 s23, s43, 6")
    b("s_add_u32 s22, s22, s23")
    b(f"v_mul_u32_u24 v5, 1152, v{vT}")
    b(f"v_lshl_add_u32 v5, v{vH}, 4, v5")
    b(f"buffer_load_dwordx4 {vr(RES,4)}, v5, {X0}, s22 offen")
    b(f"buffer_load_dwordx4 {vr(RES+4,4)}, v5, {X0}, s22 offen offset:32")
    b("s_waitcnt lgkmcnt(0)")
    b(f"v_readfirstlane_b32 {sLOC}, v4")
    b(f"s_cmp_eq_u32 {sLOC}, 1")
    b("s_cbranch_scc0 L_ret")
    b(f"s_mul_i32 s22, s45, {XT}")
    b(f"s_add_u32 s22, s22, {OS:#x}")
    b("s_lshl_b32 s23, s46, 10")
    b("s_add_u32 s23, s23, s22")
    b(f"buffer_load_dwordx4 v[100:103], v{vL16}, {WS}, s23 offen sc1")
    b("s_lshr_b32 s23, s46, 3")
    b("s_lshl_b32 s23, s23, 10")
    b("s_add_u32 s23, s23, s22")
    b(f"s_add_u32 s23, s23, {32*1024}")
    b(f"buffer_load_dwordx4 v[100:103], v{vL16}, {WS}, s23 offen sc1")
    b(f"s_cmp_ge_u32 {W}, s44")
    b("s_cbranch_scc1 L_ret")
    b(f"s_mul_i32 s22, s42, {XT}")
    b("s_lshl_b32 s23, s43, 11")
    b("s_add_u32 s22, s22, s23")
    b(f"s_add_u32 s22, s22, {XS:#x}")
    b(f"buffer_load_dwordx4 v[100:103], v{vL16}, {WS}, s22 offen sc1")
    b(f"buffer_load_dwordx4 v[100:103], v{vL16}, {WS}, s22 offen offset:1024 sc1")
    b(f"s_mul_i32 s22, s42, {18*256}")
    b("s_lshl_b32 s23, s43, 8")
    b("s_add_u32 s22, s22, s23")
    b(f"s_add_u32 s22, s22, {STS:#x}")
    b(f"v_lshrrev_b32 v4, 2, v{vL16}")
    b(f"buffer_load_dword v100, v4, {WS}, s22 offen sc1")
    b(RET)
    b.lab("L_A_slow")
    for ps in range(2):
        b(f"v_mov_b32 v{vKa}, v{vL16}")
        b(f"v_lshlrev_b32 v{vKe}, 8, v{vH}")
        b(f"v_lshl_add_u32 v{vKe}, v{vT}, 3, v{vKe}")
        if ps == 0:
            b(f"v_mov_b32 v7, {f2u(float('-inf')):#x}")
        else:
            v_addr(b, 4608)
        b("s_mov_b32 s41, 0")
        b.lab(f"L_A_slow{ps}")
        b(f"ds_read_b64 {vr(KE,2)}, v{vKe} offset:4096")
        for u in range(4):
            b(f"ds_read_b128 {vr(KM,4)}, v{vKa} offset:{u*1024}")
            if ps:
                b(f"ds_read_b128 {vr(VA,4)}, v{vVa} offset:{u*VT}")
                b(f"ds_read_b128 {vr(VB,4)}, v{vVa} offset:{u*VT+608}")
            slow_qk(b, u, False)
            if ps: slow_pv(b)
            else: slow_max(b)
        b(f"v_add_u32 v{vKa}, {GRP}, v{vKa}")
        b(f"v_add_u32 v{vKe}, {GRP}, v{vKe}")
        b(f"v_add_u32 v{vVa}, {GRP}, v{vVa}")
        b("s_add_u32 s41, s41, 1")
        b("s_cmp_lt_u32 s41, 16")
        b(f"s_cbranch_scc1 L_A_slow{ps}")
        if ps == 0: slow_mid(b)
    slow_end(b, "A")

def gen_out(a, isB):
    tag = "OB" if isB else "OA"
    OO = OS
    a(f"s_cmp_lt_u32 {W}, s44")
    a(f"s_cbranch_scc1 L_{tag}_c")
    a(f"s_cmp_eq_u32 {W}, 7")
    a(f"s_cbranch_scc1 L_{tag}_ld")
    if not isB:
        a(f"s_cmp_eq_u32 {W}, 4")
        a(f"s_cbranch_scc1 L_{tag}_idle")
        a(f"s_sub_u32 s22, {W}, 5")
        a(f"s_mul_i32 s23, s22, {WCT}")
        a(f"s_add_u32 s23, s23, {L_WB}")
        a(f"v_add_u32 v4, s23, v{vL16}")
        a(f"v_mov_b32 v{CS}, 0")
        for ks in range(36):
            a(f"ds_write_b128 v4, {vr(R+4*ks,4)} offset:{ks*1024}")
            cs_dot(a, ks)
        cs_pack(a, 5)
        a("s_lshl_b32 s22, s22, 8")
        a(f"s_add_u32 s22, s22, {L_WBX}")
        a(f"v_lshrrev_b32 v4, 2, v{vL16}")
        a("v_add_u32 v4, s22, v4")
        a("ds_write_b32 v4, v5")
        a(f"v_mov_b32 v4, {L_FLAG+16}")
        for r in range(4): a(f"v_mov_b32 v{8+r}, 0")
        a("ds_write_b128 v4, v[8:11]")
        a("ds_write_b128 v4, v[8:11] offset:16")
        a("s_waitcnt lgkmcnt(0)")
    else:
        a(f"s_cmp_eq_u32 {sIT}, 0")
        a(f"s_cbranch_scc0 L_{tag}_idle")
        wa_role(a, f"L_{tag}_idle")
        wa_issue(a)
    a.lab(f"L_{tag}_idle")
    for n in range(3):
        a("s_barrier")
    a(f"s_branch L_{tag}_e")
    a.lab(f"L_{tag}_ld")
    if not isB:
        a("s_lshr_b32 s23, s42, 1")
        a("s_lshl_b32 s23, s23, 10")
        a(f"s_add_u32 s23, s23, {FOA:#x}")
        poll(a, IT, "s23", 8)
    else:
        a(f"s_lshl_b32 s23, {sX}, 12")
        a(f"s_add_u32 s23, s23, {FOB:#x}")
        poll(a, IT, "s23", 32)
    stamp(a, tag + "_flag")
    a(f"s_mul_i32 s22, s42, {XT}")
    a(f"s_add_u32 s22, s22, {OO:#x}")
    a("s_mov_b32 m0, 0")
    dma(a, WS, "s22", 36, 1024, 1024)
    for n in (24, 12, 0):
        a(f"s_waitcnt vmcnt({n})")
        a("s_barrier")
    stamp(a, tag + "_x")
    if isB:
        a(f"s_cmp_eq_u32 {sIT}, 0")
        a(f"s_cbranch_scc0 L_{tag}_e")
        wa_role(a, f"L_{tag}_e")
        wa_issue(a)
    a(f"s_branch L_{tag}_e")
    a.lab(f"L_{tag}_c")
    a("s_waitcnt vmcnt(0)")
    for p in range(8):
        a(f"v_lshlrev_b32 v{ACC+2*p}, 16, v{RES+p}")
        a(f"v_and_b32 v{ACC+2*p+1}, 0xffff0000, v{RES+p}")
    for st in range(3):
        a("s_barrier")
        gemm_stage(a, [vL16], 12 * st, 12 * st + 12, False, False)
    a("s_nop 12")
    pack(a, ACC, 8, RES)
    if isB:
        a(f"s_cmp_eq_u32 {sIT}, 1")
        a("s_cbranch_scc1 L_final")
        store_x_and_stats(a, RES, "s42", "s43", 4, XS, STS, WS)
    else:
        store_x_and_stats(a, RES, "s42", "s43", 4, XS, STS, WS)
    a("s_waitcnt vmcnt(0)")
    a.lab(f"L_{tag}_e")
    if isB:
        a(f"s_cmp_eq_u32 {sIT}, 1")
        a("s_cbranch_scc1 L_fin2")
    a("s_barrier")
    a(f"s_cmp_lg_u32 {W}, 0")
    a(f"s_cbranch_scc1 L_{tag}_nf")
    a("s_lshl_b32 s22, s42, 9")
    a(f"s_lshr_b32 s23, {sI}, 3")
    a("s_lshl_b32 s23, s23, 7")
    a("s_add_u32 s22, s22, s23")
    a(f"s_add_u32 s22, s22, {(ITS + FXA) if isB else FXB:#x}")
    setflag(a, IT, "s22", local=True)
    a.lab(f"L_{tag}_nf")
    stamp(a, tag + "_end")

def gen_phb(a, slow):
    a(f"s_add_u32 s48, {W}, 4")
    a(f"s_sub_u32 s22, 7, {W}")
    a(f"s_cmp_lt_u32 {W}, 4")
    a("s_cselect_b32 s48, s48, s22")
    a(f"s_lshl_b32 s45, {sX}, 3")
    a("s_add_u32 s45, s45, s48")
    a(f"s_mov_b32 s46, {sI}")
    a("s_setprio 1")
    a(f"s_cmp_lt_u32 {W}, 4")
    a("s_cbranch_scc0 L_B_pr")
    a("s_setprio 2")
    a.lab("L_B_pr")
    BX = 104
    MK = 72
    aVG, aVL, aEX, aFAC = 4, 5, 11, 13
    a("s_add_u32 s28, s48, 8")
    a(f"s_mul_i32 s28, s28, {KVT}")
    a(f"s_add_u32 s28, s28, {L_KVB}")
    a("s_lshl_b32 s49, s46, 6")
    a("s_add_u32 s49, s49, s45")
    a(f"s_mul_i32 s29, s49, {KVT}")
    a(f"s_add_u32 s29, s29, {KVB:#x}")
    a("s_lshl_b32 s49, s49, 7")
    a(f"s_add_u32 s49, s49, {FKB:#x}")
    a(f"s_lshl_b32 s27, {W}, 8")
    a(f"s_add_u32 s27, s27, {L_MISC}")
    a("s_add_u32 s47, s48, 1")
    a(f"s_cmp_eq_u32 {sX}, 0")
    a("s_cselect_b32 s47, s47, 9")
    a(f"s_mul_i32 s41, s43, {XT}")
    a(f"s_add_u32 s41, s41, {WOB_OFF:#x}")
    a(f"s_cmp_lt_u32 {W}, s44")
    a(f"s_cselect_b32 s41, s41, {OOB:#x}")
    a(f"v_lshrrev_b32 v5, 2, v{vL16}")
    a(f"v_add_u32 v4, {L_WBX}, v5")
    a(f"ds_read_b32 v106, v4")
    a(f"ds_read_b32 v108, v4 offset:256")
    a("v_mov_b32 v107, 0")
    a("v_mov_b32 v109, 0")
    a(f"s_sub_u32 s24, s28, {8*KVT}")
    a(f"v_add_u32 v{vKa}, s24, v{vL16}")
    a(f"v_lshl_add_u32 v{vKe}, v{vT}, 2, s24")
    a("s_add_u32 s24, s24, 1152")
    v_addr(a, "s24")
    a(f"v_mov_b32 v11, {NEGBIG:#x}")
    mask_init(a, MK, True)
    a("s_lshl_b32 s23, s45, 9")
    a(f"s_add_u32 s23, s23, {FXB:#x}")
    poll(a, IT, "s23", 4)
    stamp(a, "B_xflag")
    a(f"s_and_b32 s24, {W}, 3")
    a("s_lshl_b32 s24, s24, 2")
    a(f"s_add_u32 s50, s24, {L_FLAG+32}")
    a(f"s_cmp_lt_u32 {W}, 4")
    a("s_cbranch_scc1 L_B_x")
    a("s_mov_b32 s51, 1")
    a("s_call_b64 s[30:31], L_B_wait")
    a.lab("L_B_x")
    stats_load(a, STR, "s45", STS)
    a(f"s_mul_i32 s22, s45, {XT}")
    a(f"s_add_u32 s22, s22, {XS:#x}")
    PF = BPF
    r_loads(a, WS, "s22", 0, PF, LD)
    a(f"v_add_u32 v6, {L_WB}, v{vL16}")
    a(f"v_add_u32 v7, {L_WB+WCT}, v{vL16}")
    a("s_waitcnt lgkmcnt(0)")
    items = [(ks, t) for ks in range(36) for t in range(2)]
    n = len(items); depth = 4
    def rd(i):
        ks, t = items[i]
        a(f"ds_read_b128 {vr(XB_+4*(i%depth),4)}, v{6+t} offset:{ks*1024}")
    for i in range(depth - 1): rd(i)
    for i in range(n):
        ks, t = items[i]
        if i == 0:
            main_a = a; a = A()
            stats_sum(a, STR)
            stats_compute(a, STR, BX, RSTD)
            a("s_waitcnt lgkmcnt(0)")
            a(f"v_lshl_add_u32 v4, v{vT}, 2, s27")
            a(f"ds_write_b32 v4, v{RSTD}")
            a(f"v_lshl_add_u32 v4, v{vH}, 4, s27")
            a("s_waitcnt lgkmcnt(0)")
            for q in range(4):
                a(f"ds_read_b128 {vr(STR+4*q,4)}, v4 offset:{32*q}")
            a(f"v_mul_u32_u24 v{aVG}, 304, v{vH}")
            a(f"v_lshl_add_u32 v{aVG}, v{vT}, 4, v{aVG}")
            a(f"v_add_u32 v{aVL}, s28, v{aVG}")
            a(f"v_cmp_ge_u32 vcc, 18, v{vT}")
            a(f"v_mov_b32 v{aEX}, {OOB:#x}")
            a(f"v_lshrrev_b32 v{aFAC}, 1, v{vT}")
            a(f"v_cndmask_b32 v{aVG}, v{aEX}, v{aVG}, vcc")
            a(f"v_mov_b32 v{aEX}, {LOOB:#x}")
            a(f"v_cndmask_b32 v{aVL}, v{aEX}, v{aVL}, vcc")
            a(f"v_cmp_eq_u32 vcc, 12, v{aFAC}")
            a(f"v_cmp_eq_u32 s[62:63], 13, v{aFAC}")
            a("s_add_u32 s24, s27, 128")
            a("s_add_u32 s25, s28, 1024")
            a(f"v_mov_b32 v{aFAC}, s24")
            a(f"v_cndmask_b32 v{aEX}, v{aEX}, v{aFAC}, vcc")
            a(f"v_mov_b32 v{aFAC}, s25")
            a(f"v_cndmask_b32 v{aEX}, v{aEX}, v{aFAC}, s[62:63]")
            a(f"v_and_b32 v{aFAC}, 1, v{vT}")
            a(f"v_lshl_add_u32 v{aEX}, v{aFAC}, 1, v{aEX}")
            a(f"v_lshl_add_u32 v{aEX}, v{vH}, 4, v{aEX}")
            a(f"v_mov_b32 v{aFAC}, {f2u(QSCALE):#x}")
            a(f"v_cndmask_b32 v{aFAC}, 1.0, v{aFAC}, vcc")
            a("s_waitcnt lgkmcnt(0)")
            for r in range(16):
                a(f"v_mul_f32 v{STR+r}, v{aFAC}, v{STR+r}")
            a(f"v_mul_f32 v{RSTD+1}, {f2u(QSCALE):#x}, v{RSTD}")
            a(f"v_mfma_f32_32x32x8_bf16 {vr(ACC,16)}, v[106:107], {vr(BX,2)}, {vr(ACC,16)}")
            a(f"v_mfma_f32_32x32x8_bf16 {vr(ACC+16,16)}, {vr(BX,2)}, v[108:109], {vr(ACC+16,16)}")
            side = list(a.l); a = main_a
        if i + depth - 1 < n:
            rd(i + depth - 1); out = depth - 1
        else:
            out = n - 1 - i
        if t == 0:
            a(f"s_waitcnt vmcnt({min(35, ks + PF - 1) - ks}) lgkmcnt({out})")
        else:
            a(f"s_waitcnt lgkmcnt({out})")
        acc = vr(ACC + 16 * t, 16); x = vr(R + 4 * ks, 4); w = vr(XB_ + 4 * (i % depth), 4)
        c = "0" if ks == 0 else acc
        a(f"v_mfma_f32_32x32x16_bf16 {acc}, {x}, {w}, {c}" if t else f"v_mfma_f32_32x32x16_bf16 {acc}, {w}, {x}, {c}")
        if t == 0 and ks + PF < 36:
            r_loads(a, WS, "s22", ks + PF, ks + PF + 1, LD)
        if i >= 2:
            for _ in range(4):
                if side: a.l.append(side.pop(0))
        if t == 0 and ks == LSTART:
            a("v_mov_b32 v15, s50" if not STAMPS else "v_mov_b32 v111, s50")
            a(f"ds_write_b32 v15, v{vNONCE}" if not STAMPS else f"ds_write_b32 v111, v{vNONCE}")
            if STAMPS: a("v_mov_b32 v111, 0")
    assert not side
    stamp(a, "B_gemm")
    V1 = ACC + 16
    a(f"v_add_u32 v6, s28, v{vL16}")
    a(f"v_lshlrev_b32 v7, 30, v{vH}")
    a(f"v_lshl_add_u32 v7, v{vT}, 2, v7")
    a(f"v_lshl_add_u32 v56, v{vT}, 2, s24")
    a(f"v_lshl_add_u32 v57, v{vT}, 2, s25")
    a(f"s_and_b32 s24, {W}, 4")
    a(f"s_add_u32 s24, s24, {L_FLAG+16}")
    a("v_mov_b32 v58, s24")
    a("v_mov_b32 v59, 1")
    a("s_mov_b32 s24, 0x40000")
    a("s_mov_b32 s25, 0x40000")
    a("s_nop 0")
    for r in range(8, 16):
        a(f"v_mul_f32 v{ACC+r}, v{RSTD}, v{ACC+r}")
    for p in range(4):
        a(f"v_cvt_pk_bf16_f32 v{KM+p-24}, v{ACC+8+2*p}, v{ACC+9+2*p}")
    a(f"ds_write_b128 v6, v[60:63]")
    a(f"buffer_store_dwordx4 v[60:63], v{vL16}, {IT}, s29 offen sc1")
    for r in range(16):
        a(f"v_mul_f32 v{V1+r}, v{STR+r}, v{V1+r}")
        if r % 2 == 1:
            a(f"v_cvt_pk_bf16_f32 v{V1+r//2}, v{V1+r-1}, v{V1+r}")
    for r in range(16):
        op = "ds_write_b16" if r % 2 == 0 else "ds_write_b16_d16_hi"
        a(f"{op} v{aEX}, v{V1+r//2} offset:{((r&3)+8*(r>>2))*4}")
    a("s_mov_b64 exec, s[24:25]")
    for p in range(8):
        a(f"v_mov_b32 v{V1+p}, s60")
    a("s_mov_b64 exec, -1")
    a("ds_read_b32 v64, v57")
    a("ds_read_b32 v65, v56")
    a(f"ds_write_b128 v{aVL}, {vr(V1,4)} offset:1152")
    a(f"ds_write_b128 v{aVL}, {vr(V1+4,4)} offset:{1152+608}")
    a(f"buffer_store_dwordx4 {vr(V1,4)}, v{aVG}, {IT}, s29 offen offset:1152 sc1")
    a(f"buffer_store_dwordx4 {vr(V1+4,4)}, v{aVG}, {IT}, s29 offen offset:{1152+608} sc1")
    for r in range(8):
        a(f"v_mul_f32 v{ACC+r}, v{RSTD+1}, v{ACC+r}")
    pack(a, ACC, 4)
    a(f"v_cmp_eq_u32 vcc, 0, v{vH}")
    a(f"v_mov_b32 v{QE+1}, 0")
    a(f"v_mov_b32 v{KE+1}, 0")
    a(f"v_mov_b32 v11, {NEGBIG:#x}")
    a("s_waitcnt lgkmcnt(0)")
    a(f"buffer_store_dword v64, v7, {IT}, s29 offen offset:1024 sc1")
    a("s_mov_b64 exec, 1")
    a("ds_add_u32 v58, v59")
    a("s_mov_b64 exec, -1")
    a(f"v_cndmask_b32 v{QE}, 0, v65, vcc")
    a(f"v_mov_b32 v{KE}, v64")
    a(f"v_mfma_f32_32x32x16_bf16 {vr(S_[0],16)}, v[60:63], {vr(QM,4)}, {vr(MK,16)}")
    a("s_nop 0")
    a(f"v_mfma_f32_32x32x8_bf16 {vr(S_[0],16)}, {vr(KE,2)}, {vr(QE,2)}, {vr(S_[0],16)}")
    stamp(a, "B_attn0")
    to = lambda i: (8 - i) * KVT
    def wait(word, val):
        a(f"s_mov_b32 s50, {L_FLAG+16+4*word}")
        a(f"s_mov_b32 s51, {val}")
        a("s_call_b64 s[30:31], L_B_wait")
    def wait_if(tile, word, val):
        l = a.nl("Lw")
        a(f"s_cmp_eq_u32 s48, {tile}")
        a(f"s_cbranch_scc0 {l}")
        wait(word, val)
        a.lab(l)
    def first_qk(k0, masked):
        a(f"ds_read_b128 {vr(KM,4)}, v{k0[0]} offset:{k0[2]}")
        a(f"ds_read_b32 v{KE}, v{k0[1]} offset:{k0[2]+1024}")
        a("s_waitcnt lgkmcnt(0)")
        a(f"v_mfma_f32_32x32x16_bf16 {vr(S_[0],16)}, {vr(KM,4)}, {vr(QM,4)}, {vr(S_[0],16) if masked else 0}")
        a(f"v_mfma_f32_32x32x8_bf16 {vr(S_[0],16)}, {vr(KE,2)}, {vr(QE,2)}, {vr(S_[0],16)}")
    a("s_waitcnt vmcnt(0)")
    stamp(a, "B_ack")
    setflag(a, IT, "s49")
    a(f"s_cmp_eq_u32 {sX}, 0")
    a("s_cbranch_scc1 L_B_L0")
    a(f"s_cmp_ge_u32 {W}, 4")
    a("s_cbranch_scc1 L_B_L")
    a("s_setprio 0")
    for st in (1, 2, 3):
        a(f"s_cmp_ge_u32 s48, {st+4}")
        a(f"s_mov_b32 s22, {to(st)-4*KVT}")
        a(f"s_cselect_b32 s22, {to(st)}, s22")
        for q, r in enumerate((vKa, vKe, vVa)):
            a(f"v_add_u32 v{100+3*(st-1)+q}, s22, v{r}")
    a(f"s_cmp_eq_u32 {W}, 0")
    a("s_cbranch_scc0 L_B_E1")
    a("s_mov_b32 s50, 2")
    a("s_call_b64 s[30:31], L_B_fetch")
    a("s_call_b64 s[30:31], L_B_fetched")
    stamp(a, "B_rem")
    a.lab("L_B_E1")
    if WEARLY: r_loads(a, WS, "s41", 0, WEARLY)
    wsp = [WEARLY + (36 - WEARLY) * q // 8 for q in range(9)]
    def wl(k0, k1):
        ex = []
        for ks in range(k0, k1):
            if ks == k0 or ks % 4 == 0: ex.append(f"s_add_u32 s61, s41, {(ks//4)*4096}")
            ex.append(f"buffer_load_dwordx4 {vr(R+4*ks,4)}, v{vL16}, {WS}, s61 offen offset:{(ks%4)*1024}")
        return ex
    def wlg(cond, k0, k1):
        l = a.nl("Lg")
        return [cond, f"s_cbranch_scc0 {l}"] + wl(k0, k1) + [f"{l}:"]
    wait(0, 4)
    K = lambda st: (vKa, to(0)) if st == 0 else ((vKa, 0) if st == 4 else (100 + 3 * (st - 1), 0))
    E = lambda st: (vKe, to(0) + 1024) if st == 0 else ((vKe, 1024) if st == 4 else (101 + 3 * (st - 1), 1024))
    Vv = lambda st, o: (vVa, to(0) + o) if st == 0 else ((vVa, o) if st == 4 else (102 + 3 * (st - 1), o))
    a(f"ds_read_b128 {vr(KM,4)}, v{K(1)[0]} offset:{K(1)[1]}")
    a(f"ds_read_b32 v{KE}, v{E(1)[0]} offset:{E(1)[1]}")
    a(f"ds_read_b128 {vr(VA,4)}, v{vVa} offset:{to(0)}")
    for j in range(5):
        if j <= 2: wait_if(5 + j, 2, 1)
        body(a, j & 1, rdKM=K(j + 2) if j + 2 <= 4 else None, rdKE=E(j + 2) if j + 2 <= 4 else None,
             rdVa=Vv(j + 1, 0) if j + 1 <= 4 else None, rdVb=Vv(j, 608), u=0, qk=(j < 4), pv1=(j > 0),
             cinit=((lambda n: mask_init(a, n, False)) if j == 3 else None), ke64=False, pvwait=(1 if j == 4 else 2),
             ozero=(j == 0), extra=wl(wsp[j], wsp[j + 1]))
    tail_pv1(a, 0)
    a("s_sub_u32 s22, 8, s48")
    a(f"s_mul_i32 s22, s22, {KVT}")
    for q, r in enumerate((vKa, vKe, vVa)):
        a(f"v_add_u32 v{100+q}, s22, v{r}")
    for r in range(16):
        a(f"v_mov_b32 v{S_[0]+r}, 0")
    a("s_mov_b32 s40, 4")
    wait(1, 4)
    a.lab("L_B_run2")
    tb = lambda i: i * KVT
    first_qk((100, 101, tb(0)), True)
    a(f"ds_read_b128 {vr(KM,4)}, v100 offset:{tb(1)}")
    a(f"ds_read_b32 v{KE}, v101 offset:{tb(1)+1024}")
    a(f"ds_read_b128 {vr(VA,4)}, v102 offset:{tb(0)}")
    a("s_nop 8")
    for j in range(4):
        body(a, j & 1, rdKM=(100, tb(j + 2)) if j + 2 <= 3 else None, rdKE=(101, tb(j + 2) + 1024) if j + 2 <= 3 else None,
             rdVa=(102, tb(j + 1)) if j + 1 <= 3 else None, rdVb=(102, tb(j) + 608), u=0, qk=(j < 3), pv1=(j > 0),
             ke64=False, pvwait=(1 if j == 3 else 2), extra=(wlg(f"s_cmp_lt_u32 {W}, 4", wsp[5 + j], wsp[6 + j]) if j < 3 else ()))
        if j < 3:
            a(f"s_cmp_eq_u32 s40, {j+1}")
            a(f"s_cbranch_scc1 L_B_t{j&1}")
    a("s_branch L_B_t1")
    a.lab("L_B_L0")
    a(f"s_cmp_lt_u32 {W}, s44")
    a("s_cbranch_scc0 L_B_L0b")
    r_loads(a, WS, "s41", 0, 36)
    a.lab("L_B_L0b")
    wait(0, 4)
    a("s_mov_b32 s40, s47")
    a("s_mov_b32 s48, 99")
    a("s_branch L_B_L1")
    a.lab("L_B_L")
    a("s_add_u32 s40, s48, 5")
    wait(2, 1)
    a.lab("L_B_L1")
    wait(1, 4)
    a(f"s_cmp_lt_u32 {W}, s44")
    a("s_cselect_b32 s51, 77, 0")
    a(f"s_cmp_eq_u32 {sX}, 0")
    a("s_cselect_b32 s51, 0, s51")
    a(f"ds_read_b128 {vr(KM,4)}, v{vKa} offset:{to(1)}")
    a(f"ds_read_b32 v{KE}, v{vKe} offset:{to(1)+1024}")
    a(f"ds_read_b128 {vr(VA,4)}, v{vVa} offset:{to(0)}")
    for j in range(8):
        if j == 2:
            l = a.nl("Lf")
            a("s_cmp_eq_u32 s48, 0")
            a(f"s_cbranch_scc0 {l}")
            a("s_mov_b32 s50, 3")
            a("s_call_b64 s[30:31], L_B_fetch")
            a.lab(l)
        body(a, j & 1, rdKM=to(j + 2) if j + 2 <= 7 else None, rdKE=to(j + 2) + 1024 if j + 2 <= 7 else None,
             rdVa=to(j + 1) if j + 1 <= 7 else None, rdVb=to(j) + 608, u=0, qk=(j < 7), pv1=(j > 0),
             ke64=False, pvwait=(1 if j == 7 else 2), ozero=(j == 0),
             extra=(wlg("s_cmp_eq_u32 s51, 77", 36 * j // 7, 36 * (j + 1) // 7) if j < 7 else ()))
        if j < 7:
            a(f"s_cmp_eq_u32 s40, {j+1}")
            a(f"s_cbranch_scc1 L_B_u{j&1}")
    a.lab("L_B_u1")
    tail_pv1(a, 1)
    a.lab("L_B_L2")
    a(f"s_cmp_eq_u32 {sX}, 0")
    a("s_cbranch_scc1 L_B_done")
    for q, r in enumerate((vKa, vKe, vVa)):
        a(f"v_mov_b32 v{100+q}, v{r}")
    a("s_sub_u32 s40, 4, s48")
    a("s_cmp_eq_u32 s48, 0")
    a("s_cbranch_scc0 L_B_L3")
    a("s_call_b64 s[30:31], L_B_fetched")
    stamp(a, "B_rem2")
    a.lab("L_B_L3")
    a("s_nop 7")
    mask_init(a, S_[0], False)
    wait(3, 1)
    a("s_branch L_B_run2")
    a.lab("L_B_t0")
    tail_pv1(a, 0)
    a.lab("L_B_done")
    stamp(a, "B_attn1")
    attn_finish(a, "B", "s45", "s46", OS)
    a("s_waitcnt vmcnt(0)")
    a("s_barrier")
    a(f"s_cmp_lg_u32 {W}, 0")
    a("s_cbranch_scc1 L_B_end")
    a(f"s_lshl_b32 s22, {sX}, 12")
    a("s_lshl_b32 s23, s46, 7")
    a("s_add_u32 s22, s22, s23")
    a(f"s_add_u32 s22, s22, {FOB:#x}")
    setflag(a, IT, "s22", local=True)
    a.lab("L_B_end")
    a("s_setprio 0")
    stamp(a, "B_end")
    b = slow
    b.lab("L_B_t1")
    tail_pv1(b, 1)
    b("s_branch L_B_done")
    b.lab("L_B_u0")
    tail_pv1(b, 0)
    b("s_branch L_B_L2")
    RET = "s_setpc_b64 s[30:31]"
    b.lab("L_B_wait")
    b("v_mov_b32 v5, s50")
    b("s_mov_b32 s21, 0")
    b.lab("L_B_spin")
    b("ds_read_b32 v6, v5")
    b("s_add_u32 s21, s21, 1")
    b("s_cmp_gt_u32 s21, 0x400000")
    b("s_waitcnt lgkmcnt(0)")
    b("s_cbranch_scc1 L_B_spun")
    b("v_cmp_gt_u32 vcc, s51, v6")
    b("s_cbranch_vccz L_B_spun")
    b("s_sleep 1")
    b("s_branch L_B_spin")
    b.lab("L_B_spun")
    b(RET)
    b.lab("L_B_fetch")
    b("s_sub_u32 s22, s49, 1024")
    poll(b, IT, "s22", 4)
    stamp(b, "B_poll")
    b(f"s_sub_u32 s22, s29, {8*KVT}")
    b(f"s_mul_i32 s23, s48, {KVT}")
    b(f"s_add_u32 m0, s23, {L_KVB}")
    dma(b, IT, "s22", 9, 1024, 1024)
    b("s_add_u32 m0, m0, 1024")
    b("s_add_u32 s22, s22, 1024")
    set_exec(b, 0xffff)
    b(f"buffer_load_dwordx4 v{vL16}, {IT}, s22 offen sc1 lds")
    b("s_mov_b64 exec, -1")
    b(RET)
    b.lab("L_B_fetched")
    b("s_lshl_b32 s50, s50, 2")
    b(f"s_add_u32 s50, s50, {L_FLAG+16}")
    b("v_mov_b32 v5, s50")
    b("v_mov_b32 v6, 1")
    b("s_waitcnt vmcnt(0)")
    b("ds_write_b32 v5, v6")
    b("s_waitcnt lgkmcnt(0)")
    b(RET)
    b.lab("L_B_slow")
    for ps in range(2):
        if ps == 0:
            b(f"v_mov_b32 v7, {f2u(float('-inf')):#x}")
        for j in range(9):
            b(f"ds_read_b128 {vr(KM,4)}, v{vKa} offset:{to(j)}")
            b(f"ds_read_b32 v{KE}, v{vKe} offset:{to(j)+1024}")
            if ps:
                b(f"ds_read_b128 {vr(VA,4)}, v{vVa} offset:{to(j)}")
                b(f"ds_read_b128 {vr(VB,4)}, v{vVa} offset:{to(j)+608}")
            if j in (0, 8): mask_init(b, S_[0], j == 0)
            slow_qk(b, 0, j in (0, 8))
            if ps: slow_pv(b)
            else: slow_max(b)
            if j < 8:
                b(f"s_cmp_eq_u32 s47, {j+1}")
                b(f"s_cbranch_scc1 L_B_slowd{ps}")
        b.lab(f"L_B_slowd{ps}")
        if ps == 0: slow_mid(b)
    slow_end(b, "B")

def main(out):
    ref = open(f"cdna_kernels/{NAME}.s.ref").read().splitlines()
    hdr = [l for l in ref if l.startswith(";") and "@launch" not in l]
    a = A(); slow = A(); slow.n = 100000
    gen_start(a)
    gen_prep(a)
    gen_pha(a, slow)
    gen_out(a, False)
    gen_phb(a, slow)
    gen_out(a, True)
    a(f"s_mov_b32 {sIT}, 1")
    a(f"s_add_u32 s16, s16, {ITS:#x}")
    a("s_addc_u32 s17, s17, 0")
    a("s_branch L_it")
    a.lab("L_final")
    a(f"v_mul_u32_u24 v4, 1152, v{vT}")
    a(f"v_lshl_add_u32 v4, v{vH}, 4, v4")
    a(f"s_mul_i32 s24, s42, {32*1152}")
    a("s_lshl_b32 s25, s43, 6")
    a("s_add_u32 s24, s24, s25")
    for q in range(2):
        a(f"buffer_store_dwordx4 {vr(RES+4*q,4)}, v4, {AUX}, s24 offen offset:{32*q}")
    a.lab("L_fin2")
    if STAMPS:
        a("s_waitcnt vmcnt(0)")
        stamp(a, "end")
        a("v_lshlrev_b32 v4, 2, v0")
        a("s_lshl_b32 s22, s2, 11")
        a(f"s_add_u32 s22, s22, {DBG_OFF:#x}")
        a(f"buffer_store_dword v{vSTAMP}, v4, {WS}, s22 offen")
        open(out + ".stamps", "w").write("\n".join(STN))
        assert len(STN) <= 32
    a.lab("L_end")
    a("s_endpgm")
    K = NAME + "_kernel"
    txt = "\n".join(hdr) + "\n; @launch grid=(256,1,1) block=(512,1,1) lds=163840\n"
    txt += f'.amdgcn_target "amdgcn-amd-amdhsa--gfx950"\n.text\n.globl {K}\n.p2align 8\n.type {K},@function\n{K}:\n'
    txt += a.text() + slow.text()
    txt += f""".section .rodata,"a"
.p2align 6
.amdhsa_kernel {K}
  .amdhsa_next_free_vgpr 256
  .amdhsa_next_free_sgpr 102
  .amdhsa_accum_offset 256
  .amdhsa_group_segment_fixed_size 0
  .amdhsa_kernarg_size 88
  .amdhsa_user_sgpr_count 2
  .amdhsa_user_sgpr_kernarg_segment_ptr 1
  .amdhsa_system_sgpr_workgroup_id_x 1
  .amdhsa_float_denorm_mode_32 3
.end_amdhsa_kernel
"""
    open(out, "w").write(txt)

if __name__ == "__main__":
    if "stamps" in sys.argv: STAMPS = True
    if "nolocal" in sys.argv: NOLOCAL = True
    for x in sys.argv[2:]:
        if "=" in x:
            k, v = x.split("="); globals()[k] = int(v)
    main(sys.argv[1])
```

```python
import math, struct, sys

NAME = "interleave_layers__grouped_kv_mqa__sliding_block__prompt"
def f2u(x): return struct.unpack("<I", struct.pack("<f", x))[0]

FR = 1024
XT = 36 * FR
WCT = 36 * FR
KVA = 0x0
KVA2 = 0x28000
KVB = 0x60000
FL = 0x510000
ITS = 32
FKAL, FOA, FXB, FOB, FXA = FL, FL + 4, FL + 8, FL + 12, FL + 16
FKA, FKB = FL + 0x8000, FL + 0x10000
XS, OS, STS, KVL = 0x600000, 0x840000, 0xA80000, 0xAD0000
WA_OFF, WB_OFF, WOA_OFF, WOB_OFF, FPREP = 0xB00000, 0xC00000, 0xF00000, 0x1000000, 0x10C0000
DBG_OFF = 0x4000000
WS_SIZE = 0x10000000
OOB = 0x40000000
LOOB = 0x40000
GRP = 9472
KVA_SZ = 16 * GRP
BLK = 2 * GRP
VT = 1216
KVT = 2368
QSCALE = (18 ** -0.5) * math.log2(math.e)
NEGBIG = f2u(-1e30)
L_XA = 40960
L_WB = 40960
L_KVB = 118784
L_Q = 151552
L_MISC = 160768
L_FLAG = 162816
NPREP = 252
L_PREP = 114688
L_RAW = 135168
L_WBX = L_WB + 2 * WCT

STAMPS = False
FORCESLOW = 0
NOLOCAL = False
STN = []
ST = " sc1"
LD = " sc1"

class A:
    def __init__(self):
        self.l = []; self.n = 0; self.ns = 0; self.stn = []
    def __call__(self, s): self.l.append("    " + s)
    def lab(self, s): self.l.append(s + ":")
    def nl(self, p="L"):
        self.n += 1
        return f"{p}_{self.n}"
    def text(self): return "\n".join(self.l) + "\n"

def vr(a, n): return f"v[{a}:{a+n-1}]" if n > 1 else f"v{a}"

W = "s3"
WS, AUX, IT = "s[4:7]", "s[8:11]", "s[16:19]"
sX, sI, sNONCE, sIT, sLIM, sLOC = "s12", "s13", "s14", "s15", "s20", "s99"
vL16, vT, vH = 1, 2, 3
vNONCE, vSTAMP = 14, 15
RES = 16
R = 112
WEXT = 110
MASK = 64

def stamp(a, name, cyc=False):
    if not STAMPS: return
    if cyc: name = "c:" + name
    if name not in STN: STN.append(name)
    k = STN.index(name)
    a("s_memtime s[96:97]" if cyc else "s_memrealtime s[96:97]")
    a(f"s_mul_i32 s98, {sIT}, 32")
    a(f"s_add_u32 s98, s98, {k}")
    a("s_waitcnt lgkmcnt(0)")
    a(f"s_mov_b32 m0, s98")
    a(f"v_writelane_b32 v{vSTAMP}, s96, m0")

def set_exec(a, mask):
    lo, hi = mask & 0xffffffff, mask >> 32
    if mask <= 64:
        a(f"s_mov_b64 exec, {mask}")
    else:
        a(f"s_mov_b32 exec_lo, {lo:#x}" if lo != 0xffffffff else "s_mov_b32 exec_lo, -1")
        a(f"s_mov_b32 exec_hi, {hi:#x}")

def poll_issue(a, srd, soff, n, vtmp, voff):
    for q in range((n + 63) // 64):
        if q == 0:
            a(f"buffer_load_dword v{vtmp}, v{voff}, {srd}, {soff} offen sc1")
        else:
            a(f"s_add_u32 s61, {soff}, {8192*q}")
            a(f"buffer_load_dword v{vtmp+q}, v{voff}, {srd}, s61 offen sc1")

def poll_test(a, n, vtmp):
    a(f"v_cmp_ne_u32 vcc, {sNONCE}, v{vtmp}")
    for q in range(1, (n + 63) // 64):
        a(f"v_cmp_ne_u32 s[62:63], {sNONCE}, v{vtmp+q}")
        a("s_or_b64 vcc, vcc, s[62:63]")

def poll(a, srd, soff, n, vtmp=4, voff=5, setoff=True):
    l, d = a.nl("Lp"), a.nl("Lpd")
    if setoff: a(f"v_lshlrev_b32 v{voff}, 3, v{vL16}")
    if n < 64: set_exec(a, (1 << n) - 1)
    a("s_mov_b32 s21, 0")
    a.lab(l)
    poll_issue(a, srd, soff, n, vtmp, voff)
    a("s_add_u32 s21, s21, 1")
    a(f"s_cmp_gt_u32 s21, {sLIM}")
    a(f"s_cselect_b32 {sLIM}, 0, {sLIM}")
    a("s_waitcnt vmcnt(0)")
    a(f"s_cbranch_scc1 {d}")
    poll_test(a, n, vtmp)
    a(f"s_cbranch_vccnz {l}")
    a.lab(d)
    if n < 64: a("s_mov_b64 exec, -1")

def census_issue(a, v):
    a(f"v_lshlrev_b32 v{v+1}, 7, v{vT}")
    a(f"s_lshl_b32 s22, {sX}, 12")
    a(f"s_add_u32 s22, s22, {FL+20:#x}")
    a(f"buffer_load_dword v{v}, v{v+1}, {WS}, s22 offen sc1")

def census_eval(a, v, dst):
    a(f"v_cmp_ne_u32 vcc, s34, v{v}")
    a("s_cmp_eq_u64 vcc, 0")
    a(f"s_cselect_b32 {dst}, 1, 2")
    if NOLOCAL: a(f"s_mov_b32 {dst}, 2")

def lstore(a, insts):
    l, e = a.nl("Ls"), a.nl("Lse")
    a(f"s_cmp_eq_u32 {sLOC}, 1")
    a(f"s_cbranch_scc1 {l}")
    for i in insts: a(i + " sc1")
    a(f"s_branch {e}")
    a.lab(l)
    for i in insts: a(i)
    a.lab(e)

def setflag(a, srd, soff, local=False):
    a("s_mov_b64 exec, 1")
    if local: lstore(a, [f"buffer_store_dword v{vNONCE}, off, {srd}, {soff}"])
    else: a(f"buffer_store_dword v{vNONCE}, off, {srd}, {soff} sc1")
    a("s_mov_b64 exec, -1")

def dma(a, srd, sG, n, gstep, lstep, flags=LD, half_last=False):
    for r in range(n):
        if half_last and r == n - 1:
            a("s_mov_b32 exec_hi, 0")
        else:
            a("s_nop 0")
        a(f"buffer_load_dwordx4 v{vL16}, {srd}, {sG} offen{flags} lds")
        if half_last and r == n - 1:
            a("s_mov_b64 exec, -1")
        if r + 1 < n:
            a(f"s_add_u32 m0, m0, {lstep}")
            a(f"s_add_u32 {sG}, {sG}, {gstep}")

def r_loads(a, srd, sOff, k0, k1, flags=""):
    for ks in range(k0, k1):
        if ks == k0 or ks % 4 == 0:
            a(f"s_add_u32 s61, {sOff}, {(ks//4)*4096}")
        a(f"buffer_load_dwordx4 {vr(R+4*ks,4)}, v{vL16}, {srd}, s61 offen offset:{(ks%4)*1024}{flags}")

def cs_dot(a, ks):
    for d in range(4):
        a(f"v_dot2_f32_bf16 v{CS}, v{R+4*ks+d}, s60, v{CS}")

def cs_pack(a, dst):
    a("s_nop 2")
    a(f"v_cvt_pk_bf16_f32 v{dst}, v{CS}, v{CS}")
    a(f"v_lshlrev_b32 v{dst}, 16, v{dst}")
    a(f"v_sub_f32 v{CS}, v{CS}, v{dst}")
    a(f"v_cvt_pk_bf16_f32 v{dst}, v{dst}, v{CS}")

def store_x_and_stats(a, P, sT, sC, tmp, XO, SO, srd):
    a(f"s_mul_i32 s26, {sT}, {XT}")
    a(f"s_lshl_b32 s27, {sC}, 11")
    a("s_add_u32 s26, s26, s27")
    a(f"s_add_u32 s26, s26, {XO:#x}")
    lstore(a, [f"buffer_store_dwordx4 {vr(P,4)}, v{vL16}, {srd}, s26 offen",
               f"buffer_store_dwordx4 {vr(P+4,4)}, v{vL16}, {srd}, s26 offen offset:1024"])
    a(f"v_mov_b32 v{tmp}, 0")
    a(f"v_mov_b32 v{tmp+1}, 0")
    for i in range(8):
        a(f"v_dot2_f32_bf16 v{tmp}, v{P+i}, s60, v{tmp}")
        a(f"v_dot2_f32_bf16 v{tmp+1}, v{P+i}, v{P+i}, v{tmp+1}")
    a(f"v_lshrrev_b32 v{tmp+2}, 2, v{vL16}")
    a(f"s_mul_i32 s26, {sT}, {18*256}")
    a(f"s_lshl_b32 s27, {sC}, 8")
    a("s_add_u32 s26, s26, s27")
    a(f"s_add_u32 s26, s26, {SO:#x}")
    a(f"v_permlane32_swap_b32 v{tmp}, v{tmp+1}")
    a("s_nop 1")
    a(f"v_add_f32 v{tmp}, v{tmp}, v{tmp+1}")
    lstore(a, [f"buffer_store_dword v{tmp}, v{tmp+2}, {srd}, s26 offen"])

def stats_load(a, b, sT, SO):
    a(f"v_lshrrev_b32 v4, 2, v{vL16}")
    a(f"s_mul_i32 s40, {sT}, {18*256}")
    a(f"s_add_u32 s40, s40, {SO:#x}")
    for c in range(18):
        if c == 16: a("s_add_u32 s40, s40, 4096")
        a(f"buffer_load_dword v{b+c}, v4, {WS}, s40 offen offset:{(c%16)*256}{LD}")

def stats_sum(a, b):
    for i in range(9):
        a(f"v_add_f32 v{b+i}, v{b+i}, v{b+9+i}")
    for i, j in ((0, 1), (2, 3), (4, 5), (6, 7), (0, 2), (4, 6), (0, 4), (0, 8)):
        a(f"v_add_f32 v{b+i}, v{b+i}, v{b+j}")

def stats_compute(a, b, xext, rstd):
    a(f"v_mov_b32 v{b+1}, v{b}")
    a("s_nop 1")
    a(f"v_permlane32_swap_b32 v{b}, v{b+1}")
    a("s_nop 1")
    a(f"v_mul_f32 v{b}, {f2u(1.0/576):#x}, v{b}")
    a(f"v_mul_f32 v{b+1}, {f2u(1.0/576):#x}, v{b+1}")
    a(f"v_fma_f32 v{b+1}, -v{b}, v{b}, v{b+1}")
    a(f"v_max_f32 v{b+1}, 0, v{b+1}")
    a(f"v_cvt_pk_bf16_f32 v{xext}, -v{b}, -v{b}")
    a(f"v_mov_b32 v{xext+1}, 0")
    a(f"v_cvt_pk_bf16_f32 v{b+1}, v{b+1}, v{b+1}")
    a(f"v_lshlrev_b32 v{b+1}, 16, v{b+1}")
    a(f"v_add_f32 v{b+1}, {f2u(1e-5):#x}, v{b+1}")
    a(f"v_cvt_pk_bf16_f32 v{b+1}, v{b+1}, v{b+1}")
    a(f"v_lshlrev_b32 v{b+1}, 16, v{b+1}")
    a(f"v_sqrt_f32 v{b+1}, v{b+1}")
    a("s_nop 0")
    a(f"v_cvt_pk_bf16_f32 v{b+1}, v{b+1}, v{b+1}")
    a(f"v_lshlrev_b32 v{b+1}, 16, v{b+1}")
    a(f"v_rcp_f32 v{rstd}, v{b+1}")
    a("s_nop 0")

def rstd_bcast(a, rstd, dst):
    a(f"s_lshl_b32 s27, {W}, 8")
    a(f"s_add_u32 s27, s27, {L_MISC}")
    a(f"v_lshl_add_u32 v6, v{vT}, 2, s27")
    a(f"ds_write_b32 v6, v{rstd}")
    a(f"v_lshl_add_u32 v6, v{vH}, 4, s27")
    a("s_waitcnt lgkmcnt(0)")
    for q in range(4):
        a(f"ds_read_b128 {vr(dst+4*q,4)}, v6 offset:{32*q}")

ACC = 24
XB_ = 56
STR = 88
CS = 106
DEPTH = 8
XEXT = 8
RSTD = 12

def xaddr(a, dst, base):
    l, e = a.nl("Lxa"), a.nl("Lxe")
    a(f"s_cmp_eq_u32 {sIT}, 0")
    a(f"s_cbranch_scc1 {l}")
    a(f"v_add_u32 v{dst}, {base}, v{vL16}")
    for q in range(1, 4):
        a(f"v_add_u32 v{dst+q}, {1024*q}, v{dst}")
    a(f"s_branch {e}")
    a.lab(l)
    a(f"v_bfe_u32 v4, v{vT}, 1, 3")
    a(f"v_xor_b32 v4, v4, v{vH}")
    a(f"v_lshlrev_b32 v{dst+3}, 7, v{vT}")
    a(f"v_add_u32 v{dst+3}, {base}, v{dst+3}")
    for q in range(4):
        if q: a(f"v_xor_b32 v4, {(2*q) ^ (2*q-2)}, v4")
        a(f"v_lshl_add_u32 v{dst+q}, v4, 4, v{dst+3}")
    a.lab(e)

def gemm_stage(a, bases, k0, k1, swap, first_zero, cs=False, pre=None, quad=False, hooks={}):
    TT = len(bases)
    items = [(ks, t) for ks in range(k0, k1) for t in range(TT)]
    n = len(items); depth = DEPTH
    def rd(i):
        ks, t = items[i]
        if i in hooks: hooks[i]()
        if quad: a(f"ds_read_b128 {vr(XB_+4*(i%depth),4)}, v{bases[t]+(ks&3)} offset:{(ks>>2)*4096}")
        else: a(f"ds_read_b128 {vr(XB_+4*(i%depth),4)}, v{bases[t]} offset:{ks*1024}")
    if pre: pre()
    for i in range(depth - 1): rd(i)
    if cs: a(f"s_cmp_eq_u32 {sIT}, 1")
    for i in range(n):
        ks, t = items[i]
        if i + depth - 1 < n:
            rd(i + depth - 1); out = depth - 1
        else:
            out = n - 1 - i
        if cs and t == 0 and ks % 4 == 0:
            l = a.nl("Lcs")
            a(f"s_cbranch_scc1 {l}")
            if ks + 12 < 36: r_loads(a, WS, "s40", ks + 12, ks + 16)
            a(f"s_waitcnt vmcnt({min(36, ks + 16) - ks - 4})")
            for k in range(ks, ks + 4): cs_dot(a, k)
            if ks == 32: cs_pack(a, WEXT)
            a(f"s_cmp_eq_u32 {sIT}, 1")
            a.lab(l)
        a(f"s_waitcnt lgkmcnt({out})")
        acc = vr(ACC + 16 * t, 16); w = vr(R + 4 * ks, 4); x = vr(XB_ + 4 * (i % depth), 4)
        c = "0" if (first_zero and ks == 0) else acc
        a(f"v_mfma_f32_32x32x16_bf16 {acc}, {x}, {w}, {c}" if swap else f"v_mfma_f32_32x32x16_bf16 {acc}, {w}, {x}, {c}")

def pack(a, base, n=8, dst=None):
    dst = base if dst is None else dst
    for p in range(n):
        a(f"v_cvt_pk_bf16_f32 v{dst+p}, v{base+2*p}, v{base+2*p+1}")

def gen_start(a):
    a("s_cmp_ge_u32 s2, 256")
    a("s_cbranch_scc1 L_end")
    a("s_load_dwordx16 s[32:47], s[0:1], 0")
    a("s_load_dwordx4 s[48:51], s[0:1], 64")
    a("s_load_dwordx2 s[4:5], s[0:1], 80")
    a("s_memrealtime s[22:23]")
    a("v_lshrrev_b32 v4, 6, v0")
    a("v_and_b32 v5, 63, v0")
    a("v_readfirstlane_b32 s3, v4")
    a(f"v_lshlrev_b32 v{vL16}, 4, v5")
    a(f"v_and_b32 v{vT}, 31, v5")
    a(f"v_lshrrev_b32 v{vH}, 5, v5")
    a(f"s_mov_b32 s6, {WS_SIZE:#x}")
    a("s_mov_b32 s7, 0x20000")
    a("s_mov_b32 s11, 0x20000")
    a(f"s_mov_b32 s18, {WS_SIZE-2*ITS:#x}")
    a("s_mov_b32 s19, 0x20000")
    a(f"s_and_b32 {sX}, s2, 7")
    a(f"s_lshr_b32 {sI}, s2, 3")
    a(f"s_mov_b32 {sIT}, 0")
    a(f"s_mov_b32 {sLIM}, 200000")
    a(f"s_mov_b32 {sLOC}, 0")
    a(f"v_mov_b32 v{vSTAMP}, 0")
    a(f"v_mov_b32 v{WEXT+1}, 0")
    a(f"v_lshlrev_b32 v4, 2, v{vH}")
    a(f"v_sub_u32 v4, v{vT}, v4")
    for r in range(16):
        a(f"v_cmp_le_i32 s[{MASK+2*r}:{MASK+2*r+1}], {(r&3)+8*(r>>2)}, v4")
    a("s_waitcnt lgkmcnt(0)")
    a("s_mov_b32 s16, s4")
    a("s_mov_b32 s17, s5")
    a("s_mov_b32 s56, s50")
    a("s_mov_b32 s57, s51")
    a("s_mov_b32 s58, 256")
    a("s_mov_b32 s59, 0x20000")
    a("s_mov_b32 s52, s32")
    a("s_mov_b32 s53, s33")
    a(f"s_mov_b32 s54, {2048*1152}")
    a("s_mov_b32 s55, 0x20000")
    a("s_mov_b32 s60, 0x3f803f80")
    a(f"s_or_b32 s24, s2, {W}")
    a("s_cmp_lg_u32 s24, 0")
    a("s_cbranch_scc1 L_nononce")
    a("s_or_b32 s22, s22, 1")
    a("v_mov_b32 v4, s22")
    a("s_mov_b64 exec, 1")
    a("buffer_store_dword v4, off, s[56:59], 0 sc1")
    a("s_mov_b64 exec, -1")
    a.lab("L_nononce")

    stamp(a, "start")

X0 = "s[52:55]"
def gather(a, vaddr, rs, dst, tmp):
    for j in range(8):
        a(f"ds_read_u16 v{tmp+j}, v{vaddr} offset:{j*rs}")
def gpack(a, dst, tmp):
    for d in range(4):
        a(f"v_lshl_or_b32 v{dst+d}, v{tmp+2*d+1}, 16, v{tmp+2*d}")

def x0_dma(a):
    a("s_call_b64 s[30:31], L_x0")

def x0_sub(a):
    a.lab("L_x0")
    a(f"s_and_b32 s24, {sI}, 8")
    a("s_cmp_eq_u32 s24, 0")
    a("s_cbranch_scc1 L_x0b")
    a(f"s_cmp_lt_u32 {sI}, 16")
    a("s_cselect_b32 s24, s36, s38")
    a("s_cselect_b32 s25, s37, s39")
    a(f"s_mov_b32 s26, {576*36}")
    a("s_mov_b32 s27, 0x20000")
    a(f"s_lshl_b32 s21, {W}, 10")
    a(f"s_add_u32 m0, s21, {L_RAW}")
    dma(a, "s[24:27]", "s21", 3, 8192, 8192, flags="")
    a.lab("L_x0b")
    a(f"s_and_b32 s24, {sI}, 3")
    a("s_lshl_b32 s24, s24, 1")
    a(f"s_lshl_b32 s25, {sX}, 3")
    a("s_add_u32 s24, s24, s25")
    a(f"s_mul_i32 s24, s24, {XT}")
    a(f"s_mul_i32 s25, {W}, {8*1152}")
    a("s_add_u32 s24, s24, s25")
    a(f"s_lshr_b32 s25, {W}, 2")
    a(f"s_mul_i32 s25, s25, {XT}")
    a(f"s_and_b32 s26, {W}, 3")
    a("s_lshl_b32 s27, s26, 10")
    a("s_add_u32 s25, s25, s27")
    a(f"s_add_u32 m0, s25, {L_XA}")
    a("s_and_b32 s26, s26, 1")
    a("s_lshl_b32 s26, s26, 2")
    a(f"v_lshrrev_b32 v13, 7, v{vL16}")
    a("v_lshrrev_b32 v9, 1, v13")
    a("v_add_u32 v9, s26, v9")
    a(f"v_bfe_u32 v8, v{vL16}, 4, 3")
    a("v_xor_b32 v9, v8, v9")
    a("v_mul_u32_u24 v13, 1152, v13")
    a("v_lshl_add_u32 v13, v9, 4, v13")
    for kq in range(9):
        a(f"buffer_load_dwordx4 v13, {X0}, s24 offen lds")
        if kq < 8:
            a("s_add_u32 m0, m0, 4096")
            a("s_add_u32 s24, s24, 128")
    a("s_waitcnt vmcnt(9)")
    a("s_barrier")
    a("s_setpc_b64 s[30:31]")

def prep_flag(a):
    a("s_lshl_b32 s22, s2, 7")
    a(f"s_add_u32 s22, s22, {FPREP:#x}")
    setflag(a, WS, "s22")

def gen_prep(a):
    G0, P0 = 24, 64
    a(f"v_and_b32 v4, 0x13, v{vT}")
    a(f"v_and_b32 v5, 4, v{vT}")
    a("v_lshl_or_b32 v4, v5, 1, v4")
    a(f"v_and_b32 v5, 8, v{vT}")
    a("v_lshrrev_b32 v5, 1, v5")
    a("v_or_b32 v12, v4, v5")
    a("v_lshlrev_b32 v12, 1, v12")
    a(f"v_mov_b32 v11, {LOOB:#x}")
    a(f"s_mov_b32 s100, {OOB:#x}")
    a("s_mov_b32 s101, 0")
    a(f"s_cmp_ge_u32 s2, {NPREP}")
    a("s_cbranch_scc1 L_pn")
    a("s_cmp_ge_u32 s2, 180")
    a("s_cbranch_scc1 L_po")
    a("s_cmp_ge_u32 s2, 36")
    a("s_cbranch_scc1 L_pb")
    a("s_mov_b32 s8, s34")
    a("s_mov_b32 s9, s35")
    a(f"s_mov_b32 s10, {576*1152}")
    a(f"s_mul_i32 s22, s2, {16*1152}")
    a(f"s_lshl_b32 s23, {W}, 10")
    a("s_add_u32 s22, s22, s23")
    a(f"s_add_u32 m0, s23, {L_PREP}")
    dma(a, AUX, "s22", 2, 8192, 8192, flags="")
    a(f"s_cmp_ge_u32 {W}, 4")
    a("s_cbranch_scc1 L_pa1")
    a(f"s_cmp_ge_u32 {W}, 2")
    a("s_cbranch_scc1 L_pa0")
    a("s_add_u32 m0, m0, 8192")
    a("s_add_u32 s22, s22, 8192")
    dma(a, AUX, "s22", 1, 0, 0, flags="")
    a("s_branch L_pa1")
    a.lab("L_pa0")
    a(f"s_cmp_eq_u32 {W}, 2")
    a("s_cselect_b32 s8, s36, s38")
    a("s_cselect_b32 s9, s37, s39")
    a(f"s_mov_b32 s10, {576*36}")
    a("s_mul_i32 s22, s2, 576")
    a("s_add_u32 m0, m0, 8192")
    dma(a, AUX, "s22", 1, 0, 0, flags="")
    a.lab("L_pa1")
    x0_dma(a)
    a(f"v_mul_u32_u24 v10, {8*1152}, v{vH}")
    a(f"v_add_u32 v10, {L_PREP}, v10")
    for r in range(3):
        a(f"s_add_u32 s22, {W}, {8*r}")
        a("s_mul_i32 s23, s22, 86")
        a("s_lshr_b32 s23, s23, 8")
        a("s_mul_i32 s24, s23, 3")
        a("s_sub_u32 s24, s22, s24")
        a("s_mul_i32 s23, s23, 144")
        a("s_mul_i32 s25, s24, 72")
        a("s_cmp_eq_u32 s24, 2")
        a("s_cselect_b32 s25, 32, s25")
        a("s_cselect_b32 s26, 1, 4")
        a("s_cselect_b32 s27, 1, 15")
        a("s_cselect_b32 s28, 8, 32")
        a("s_add_u32 s23, s23, s25")
        a(f"v_lshrrev_b32 v4, s26, v{vT}")
        a("v_mul_u32_u24 v4, 36, v4")
        a(f"v_and_b32 v5, s27, v{vT}")
        a("v_lshl_add_u32 v4, v5, 1, v4")
        a("v_add3_u32 v4, v4, v10, s23")
        a(f"v_cmp_gt_u32 vcc, s28, v{vT}")
        a("s_nop 1")
        a("v_cndmask_b32 v4, v11, v4, vcc")
        gather(a, 4, 1152, P0 + 4 * r, G0 + 8 * r)
    a(f"v_lshlrev_b32 v4, 1, v{vT}")
    a(f"s_cmp_eq_u32 {W}, 1")
    a("s_cselect_b64 vcc, -1, 0")
    a(f"s_lshl_b32 s23, {W}, 10")
    a(f"s_add_u32 s23, s23, {L_PREP+18432}")
    a("v_cndmask_b32 v4, v4, v12, vcc")
    a(f"v_mul_u32_u24 v5, {8*36}, v{vH}")
    a("v_add3_u32 v4, v4, v5, s23")
    a(f"v_cmp_gt_u32 vcc, 18, v{vT}")
    a("s_nop 1")
    a("v_cndmask_b32 v4, v11, v4, vcc")
    a("s_waitcnt lgkmcnt(0)")
    gather(a, 4, 36, P0 + 12, G0 + 24)
    a(f"s_mul_i32 s22, {W}, {WCT}")
    a("s_lshl_b32 s23, s2, 10")
    a("s_add_u32 s22, s22, s23")
    a(f"s_add_u32 s22, s22, {WA_OFF:#x}")
    for r in range(3):
        gpack(a, P0 + 4 * r, G0 + 8 * r)
        a(f"buffer_store_dwordx4 {vr(P0+4*r,4)}, v{vL16}, {WS}, s22 offen sc1")
        a(f"s_add_u32 s22, s22, {8*WCT}")
    a(f"s_cmp_ge_u32 {W}, 2")
    a("s_cbranch_scc1 L_prep_done")
    a("s_waitcnt lgkmcnt(0)")
    gpack(a, P0 + 12, G0 + 24)
    a(f"buffer_store_dwordx4 {vr(P0+12,4)}, v{vL16}, {WS}, s22 offen sc1")
    a("s_branch L_prep_done")
    a.lab("L_pb")
    a("s_mov_b32 s8, s44")
    a("s_mov_b32 s9, s45")
    a(f"s_mov_b32 s10, {576*3456}")
    a("s_sub_u32 s28, s2, 36")
    a("s_and_b32 s29, s28, 3")
    a("s_lshr_b32 s28, s28, 2")
    a(f"s_mul_i32 s22, s28, {16*3456}")
    a("s_mul_i32 s23, s29, 288")
    a("s_add_u32 s22, s22, s23")
    a(f"s_lshl_b32 s23, {W}, 10")
    a(f"s_add_u32 m0, s23, {L_PREP}")
    for r in range(2):
        a(f"v_add_u32 v4, {512*r}, v0")
        a("v_mul_u32_u24 v5, 607, v4")
        a("v_lshrrev_b32 v5, 15, v5")
        a("v_mul_u32_u24 v6, 54, v5")
        a("v_sub_u32 v4, v4, v6")
        a("v_mul_u32_u24 v6, 57, v4")
        a("v_lshrrev_b32 v6, 10, v6")
        a(f"v_mul_u32_u24 v6, {1152-288}, v6")
        a("v_lshl_add_u32 v4, v4, 4, v6")
        a("v_mul_u32_u24 v5, 3456, v5")
        a("v_add_u32 v4, v4, v5")
        a(f"buffer_load_dwordx4 v4, {AUX}, s22 offen lds")
        if r == 0: a("s_add_u32 m0, m0, 8192")
    x0_dma(a)
    a(f"v_mul_u32_u24 v10, {8*864}, v{vH}")
    a(f"s_mul_i32 s23, {W}, 36")
    a(f"s_add_u32 s23, s23, {L_PREP}")
    a("v_add_u32 v10, s23, v10")
    a(f"v_lshrrev_b32 v4, 4, v{vT}")
    a("v_mul_u32_u24 v4, 288, v4")
    a(f"v_and_b32 v5, 15, v{vT}")
    a("v_lshl_add_u32 v4, v5, 1, v4")
    a("v_add_u32 v4, v4, v10")
    gather(a, 4, 864, P0, G0)
    a("v_add_u32 v4, 576, v12")
    a(f"v_cmp_gt_u32 vcc, 18, v{vT}")
    a(f"v_bfe_u32 v5, v{vT}, 1, 1")
    a("v_mul_u32_u24 v5, 288, v5")
    a("v_cndmask_b32 v4, v11, v4, vcc")
    a(f"v_and_b32 v6, 1, v{vT}")
    a("v_lshl_add_u32 v5, v6, 1, v5")
    a(f"v_lshrrev_b32 v6, 2, v{vT}")
    a("v_cmp_eq_u32 vcc, 6, v6")
    a("v_add_u32 v5, 32, v5")
    a("s_nop 0")
    a("v_cndmask_b32 v4, v4, v5, vcc")
    a("v_add_u32 v4, v4, v10")
    gather(a, 4, 864, P0 + 4, G0 + 8)
    a("s_lshl_b32 s22, s29, 3")
    a(f"s_add_u32 s22, s22, {W}")
    a(f"s_mul_i32 s22, s22, {2*WCT}")
    a("s_lshl_b32 s23, s28, 10")
    a("s_add_u32 s22, s22, s23")
    a(f"s_add_u32 s22, s22, {WB_OFF:#x}")
    a("s_mov_b32 s100, s22")
    a(f"s_mov_b32 s101, {WCT}")
    a("s_waitcnt lgkmcnt(0)")
    gpack(a, RES, G0)
    gpack(a, RES + 4, G0 + 8)
    a("s_branch L_prep_done")
    a.lab("L_po")
    a("s_cmp_ge_u32 s2, 216")
    a("s_cselect_b32 s8, s46, s40")
    a("s_cselect_b32 s9, s47, s41")
    a("s_cselect_b32 s28, 36, 0")
    a(f"s_cselect_b32 s29, {WOB_OFF>>20}, {WOA_OFF>>20}")
    a(f"s_mov_b32 s10, {576*1152}")
    a("s_sub_u32 s28, s2, s28")
    a("s_sub_u32 s28, s28, 180")
    a(f"s_mul_i32 s22, s28, {18*1152}")
    a("s_sub_u32 s23, s28, 32")
    a(f"s_mul_i32 s23, s23, {144*1152}")
    a(f"s_add_u32 s23, s23, {16*1152}")
    a("s_cmp_ge_u32 s28, 32")
    a("s_cselect_b32 s22, s23, s22")
    a(f"s_cselect_b32 s24, {18*1152-2304}, 0")
    a(f"s_lshl_b32 s23, {W}, 10")
    a(f"s_add_u32 m0, s23, {L_PREP}")
    for r in range(3):
        if r == 2:
            a(f"s_cmp_ge_u32 {W}, 2")
            a("s_cbranch_scc1 L_po1")
        a(f"v_add_u32 v4, {512*r}, v0")
        a("v_mul_u32_u24 v5, 1821, v4")
        a("v_lshrrev_b32 v5, 18, v5")
        a("v_mul_lo_u32 v5, v5, s24")
        a("v_lshl_add_u32 v4, v4, 4, v5")
        a(f"buffer_load_dwordx4 v4, {AUX}, s22 offen lds")
        if r < 2: a("s_add_u32 m0, m0, 8192")
    a.lab("L_po1")
    x0_dma(a)
    a(f"v_mul_u32_u24 v10, {8*1152}, v{vH}")
    a(f"s_lshl_b32 s23, {W}, 6")
    a(f"s_add_u32 s23, s23, {L_PREP}")
    a("v_add3_u32 v4, v10, v12, s23")
    for r in range(3):
        gather(a, 4, 1152, P0 + 4 * r, G0 + 8 * r)
        a("v_add_u32 v4, 512, v4")
        if r == 1: a("s_waitcnt lgkmcnt(0)")
    a("s_lshl_b32 s29, s29, 20")
    a(f"s_mul_i32 s22, {W}, {WCT}")
    a("s_lshl_b32 s23, s28, 10")
    a("s_add_u32 s22, s22, s23")
    a("s_add_u32 s22, s22, s29")
    a("s_mov_b32 s100, s22")
    a(f"s_mov_b32 s101, {8*WCT}")
    a("s_waitcnt lgkmcnt(0)")
    gpack(a, RES, G0)
    gpack(a, RES + 4, G0 + 8)
    gpack(a, R, G0 + 16)
    a("s_branch L_prep_done")
    a.lab("L_pn")
    x0_dma(a)
    a.lab("L_prep_done")
    a(f"s_and_b32 s24, {sI}, 8")
    a("s_cmp_eq_u32 s24, 0")
    a("s_cbranch_scc1 L_pd_nokv")
    a(f"v_lshlrev_b32 v4, 1, v{vT}")
    a(f"s_cmp_ge_u32 {sI}, 16")
    a("s_cselect_b64 vcc, -1, 0")
    a(f"s_mul_i32 s23, {W}, 576")
    a(f"s_add_u32 s23, s23, {L_RAW}")
    a("v_cndmask_b32 v4, v4, v12, vcc")
    a(f"v_mul_u32_u24 v5, {8*36}, v{vH}")
    a("v_add3_u32 v4, v4, v5, s23")
    a(f"v_cmp_gt_u32 vcc, 18, v{vT}")
    a(f"s_lshl_b32 s23, {W}, 10")
    a(f"v_add_u32 v5, s23, v{vL16}")
    a("v_cndmask_b32 v4, v11, v4, vcc")
    for r in range(5):
        for j in range(8):
            a(f"ds_read_u16 v{G0+8*r+j}, v4 offset:{r*8*576+j*36}")
        if r % 2 == 1: a("s_waitcnt lgkmcnt(0)")
    a("s_waitcnt lgkmcnt(0)")
    for r in range(5):
        gpack(a, G0 + 8 * r, G0 + 8 * r)
        a(f"ds_write_b128 v5, {vr(G0+8*r,4)} offset:{r*8192}")
    a.lab("L_pd_nokv")
    a("s_mov_b32 s8, s48")
    a("s_mov_b32 s9, s49")
    a(f"s_mov_b32 s10, {2048*1152}")
    a(f"v_mov_b32 v5, {L_FLAG}")
    a(f"s_cmp_lg_u32 {W}, 7")
    a("s_cbranch_scc1 L_pd_w")
    a("s_mov_b32 s21, 0")
    a.lab("L_pd_poll")
    a("buffer_load_dword v4, off, s[56:59], 0 sc1")
    a("s_add_u32 s21, s21, 1")
    a(f"s_cmp_gt_u32 s21, {sLIM}")
    a("s_waitcnt vmcnt(0)")
    a("s_cbranch_scc1 L_pd_got")
    a("v_cmp_eq_u32 vcc, 0, v4")
    a("s_cbranch_vccnz L_pd_poll")
    a.lab("L_pd_got")
    a("ds_write_b32 v5, v4")
    a("v_mov_b32 v4, 0")
    a("ds_write_b32 v5, v4 offset:4")
    a.lab("L_pd_w")
    a("s_waitcnt vmcnt(0) lgkmcnt(0)")
    a("s_barrier")
    a("s_mov_b32 s33, 0")
    a(f"ds_read_b32 v{vNONCE}, v5")
    a("s_waitcnt lgkmcnt(0)")
    a(f"v_readfirstlane_b32 {sNONCE}, v{vNONCE}")
    a("s_getreg_b32 s34, hwreg(HW_REG_XCC_ID)")
    a("s_lshl_b32 s34, s34, 1")
    a(f"s_add_u32 s34, s34, {sNONCE}")
    a(f"s_cmp_lg_u32 {W}, 1")
    a("s_cbranch_scc1 L_nocensus")
    a("v_mov_b32 v5, s34")
    a(f"v_lshlrev_b32 v4, 3, v{vL16}")
    a(f"s_lshl_b32 s22, {sX}, 12")
    a(f"s_lshl_b32 s23, {sI}, 7")
    a("s_add_u32 s22, s22, s23")
    a(f"s_add_u32 s22, s22, {FL+20:#x}")
    a("s_mov_b64 exec, 1")
    a(f"buffer_store_dword v5, off, {WS}, s22 sc1")
    a(f"s_mul_i32 s22, {sX}, {BLK}")
    a(f"s_mul_i32 s23, {sI}, 640")
    a("s_add_u32 s22, s22, s23")
    a(f"s_add_u32 s22, s22, {KVL:#x}")
    a("s_mov_b64 exec, 31")
    a(f"buffer_load_dword v100, v4, {WS}, s22 offen sc1")
    a("s_mov_b64 exec, -1")
    a.lab("L_nocensus")
    a(f"s_cmp_lg_u32 {W}, 3")
    a("s_cbranch_scc1 L_pd_noflag")
    a("s_cmp_ge_u32 s2, 36")
    a("s_cbranch_scc1 L_pd_noflag")
    prep_flag(a)
    a.lab("L_pd_noflag")
    stamp(a, "prep_done")

def wa_role(a, skip):
    a(f"s_cmp_lt_u32 {W}, 4")
    a(f"s_cbranch_scc1 {skip}")
    a(f"s_lshr_b32 s23, {sI}, 2")
    a("s_mul_i32 s22, s23, 3")
    a(f"s_add_u32 s22, s22, {W}")
    a("s_sub_u32 s22, s22, 5")
    a(f"s_cmp_lg_u32 {W}, 4")
    l = a.nl("Lwa")
    a(f"s_cbranch_scc1 {l}")
    a("s_and_b32 s24, s23, 2")
    a("s_cmp_eq_u32 s24, 0")
    a(f"s_cbranch_scc1 {skip}")
    a("s_lshr_b32 s22, s23, 2")
    a("s_add_u32 s22, s22, 24")
    a.lab(l)

def wa_issue(a):
    a(f"s_mul_i32 s22, s22, {WCT}")
    a(f"s_add_u32 s22, s22, {WA_OFF:#x}")
    r_loads(a, WS, "s22", 0, 36)

QM = 24
QE = 28
S_ = [36, 52]
OC = 68
KM = 84
KE = 88
VA, VB = 92, 96
vKa, vKe, vVa = 8, 9, 10

FAIR = True
LSTART = 0
BPF = 36
WEARLY = 12
def body(a, cur, rdKM=None, rdKE=None, rdVa=None, rdVb=None, u=0, qk=True, pv1=True, cinit=None, ke64=True, pvwait=2,
         extra=(), fair=False, ozero=False):
    s, n = S_[cur], S_[cur ^ 1]
    e = lambda r: a(f"v_exp_f32 v{s+r}, v{s+r}")
    c = lambda p: a(f"v_cvt_pk_bf16_f32 v{s+p+(4 if p >= 4 else 0)}, v{s+2*p}, v{s+2*p+1}")
    ad = lambda x, d: (f"v{x[0]} offset:{x[1]}" if isinstance(x, tuple) else f"v{d} offset:{x}")
    if fair: a("s_setprio 1")
    e(0); e(1)
    if pv1:
        a(f"s_waitcnt lgkmcnt({pvwait})")
        a(f"v_mfma_f32_32x32x16_bf16 {vr(OC,16)}, {vr(VB,4)}, {vr(n+8,4)}, {vr(OC,16)}")
    if rdVb is not None:
        a(f"ds_read_b128 {vr(VB,4)}, {ad(rdVb, vVa)}")
    if cinit is not None:
        cinit(n)
    e(2); e(3); e(4); c(0)
    if qk:
        a("s_waitcnt lgkmcnt(2)")
        a(f"v_mfma_f32_32x32x16_bf16 {vr(n,16)}, {vr(KM,4)}, {vr(QM,4)}, {vr(n,16) if cinit is not None else 0}")
    if rdKM is not None:
        a(f"ds_read_b128 {vr(KM,4)}, {ad(rdKM, vKa)}")
    e(5); e(6); e(7); c(1); c(2)
    if qk:
        a(f"v_mfma_f32_32x32x8_bf16 {vr(n,16)}, {vr(KE,2)}, {vr(QE+2*u,2)}, {vr(n,16)}")
    if rdKE is not None:
        a(f"ds_read_b64 {vr(KE,2)}, {ad(rdKE, vKe)}" if ke64 else f"ds_read_b32 v{KE}, {ad(rdKE, vKe)}")
    for x in extra: a(x)
    if fair: a("s_setprio 0")
    c(3); e(8); e(9); e(10); e(11); c(4)
    later = (rdVb is not None) + (rdKM is not None) + (rdKE is not None)
    a(f"s_waitcnt lgkmcnt({min(later, 2)})")
    a(f"v_mfma_f32_32x32x16_bf16 {vr(OC,16)}, {vr(VA,4)}, {vr(s,4)}, {0 if ozero else vr(OC,16)}")
    if rdVa is not None:
        a(f"ds_read_b128 {vr(VA,4)}, {ad(rdVa, vVa)}")
    e(12); e(13); e(14); e(15); c(5); c(6); c(7)

def tail_pv1(a, cur):
    a("s_waitcnt lgkmcnt(0)")
    a("s_nop 0")
    a(f"v_mfma_f32_32x32x16_bf16 {vr(OC,16)}, {vr(VB,4)}, {vr(S_[cur]+8,4)}, {vr(OC,16)}")

def v_addr(a, base):
    a(f"v_mul_u32_u24 v{vVa}, 304, v{vH}")
    a(f"v_min_u32 v4, 18, v{vT}")
    a(f"v_lshl_add_u32 v{vVa}, v4, 4, v{vVa}")
    a(f"v_add_u32 v{vVa}, {base}, v{vVa}")
    a(f"v_cmp_ge_u32 vcc, 18, v{vT}")
    a(f"v_cmp_eq_u32 s[62:63], 28, v{vT}")
    a("s_or_b64 vcc, vcc, s[62:63]")
    a(f"v_mov_b32 v4, {LOOB:#x}")
    a("s_nop 0")
    a(f"v_cndmask_b32 v{vVa}, v4, v{vVa}, vcc")

def attn_finish(a, tag, sT, sHead, OO):
    a("s_nop 12")
    a(f"v_cmp_eq_u32 vcc, 0, v{vH}")
    a("s_nop 1")
    a(f"v_cndmask_b32 v4, v{OC+12}, v{OC+10}, vcc")
    a(f"v_cmp_le_f32 vcc, {f2u(2.0**-60):#x}, v4")
    a(f"v_mov_b32 v5, {f2u(2.0**60):#x}")
    a("v_cmp_le_f32 s[62:63], v4, v5")
    a("s_and_b64 vcc, vcc, s[62:63]")
    a("s_cmp_eq_u64 vcc, -1")
    a(f"s_cbranch_scc0 L_{tag}_slow")
    if FORCESLOW: a(f"s_branch L_{tag}_slow")
    a.lab(f"L_{tag}_fin")
    a("v_rcp_f32 v4, v4")
    a("s_nop 0")
    for r in range(10):
        a(f"v_mul_f32 v{OC+r}, v4, v{OC+r}")
    pack(a, OC, 5)
    a(f"s_mul_i32 s24, {sT}, {XT}")
    a(f"s_add_u32 s24, s24, {OO:#x}")
    a(f"s_lshl_b32 s27, {sHead}, 10")
    a("s_add_u32 s27, s27, s24")
    a(f"s_lshr_b32 s25, {sHead}, 2")
    a("s_lshl_b32 s25, s25, 9")
    a(f"s_and_b32 s26, {sHead}, 3")
    a("s_lshl_b32 s26, s26, 2")
    a("s_add_u32 s25, s25, s26")
    a("s_add_u32 s25, s25, s24")
    a(f"s_add_u32 s25, s25, {32*1024}")
    a(f"v_lshlrev_b32 v4, 30, v{vH}")
    a(f"v_lshl_add_u32 v4, v{vT}, 4, v4")
    lstore(a, [f"buffer_store_dwordx4 {vr(OC,4)}, v{vL16}, {WS}, s27 offen",
               f"buffer_store_dword v{OC+4}, v4, {WS}, s25 offen"])

def mask_init(a, dst, diag):
    for r in range(16):
        m = f"s[{MASK+2*r}:{MASK+2*r+1}]"
        if diag: a(f"v_cndmask_b32 v{dst+r}, v11, 0, {m}")
        else:    a(f"v_cndmask_b32 v{dst+r}, 0, v11, {m}")

def slow_qk(a, u, cin):
    s = S_[0]
    a("s_waitcnt lgkmcnt(0)")
    a("s_nop 1")
    a(f"v_mfma_f32_32x32x16_bf16 {vr(s,16)}, {vr(KM,4)}, {vr(QM,4)}, {vr(s,16) if cin else 0}")
    a(f"v_mfma_f32_32x32x8_bf16 {vr(s,16)}, {vr(KE,2)}, {vr(QE+2*u,2)}, {vr(s,16)}")
    a("s_nop 12")

def slow_max(a):
    s = S_[0]
    for i in range(8):
        a(f"v_max3_f32 v7, v{s+2*i}, v{s+2*i+1}, v7")

def slow_pv(a):
    s = S_[0]
    for r in range(16):
        a(f"v_sub_f32 v{s+r}, v{s+r}, v7")
    for r in range(16):
        a(f"v_exp_f32 v{s+r}, v{s+r}")
    a("s_nop 0")
    pack(a, s, 8)
    a("s_nop 1")
    a(f"v_mfma_f32_32x32x16_bf16 {vr(OC,16)}, {vr(VA,4)}, {vr(s,4)}, {vr(OC,16)}")
    a(f"v_mfma_f32_32x32x16_bf16 {vr(OC,16)}, {vr(VB,4)}, {vr(s+4,4)}, {vr(OC,16)}")
    a("s_nop 7")

def slow_mid(a):
    a("v_mov_b32 v6, v7")
    a("s_nop 1")
    a("v_permlane32_swap_b32 v6, v7")
    a("s_nop 1")
    a("v_max_f32 v7, v6, v7")
    for r in range(16):
        a(f"v_mov_b32 v{OC+r}, 0")

def slow_end(a, tag):
    a("s_nop 12")
    a(f"v_cmp_eq_u32 vcc, 0, v{vH}")
    a("s_nop 1")
    a(f"v_cndmask_b32 v4, v{OC+12}, v{OC+10}, vcc")
    a(f"s_branch L_{tag}_fin")

def out_role(a):
    a(f"s_and_b32 s42, {sI}, 7")
    a(f"s_lshl_b32 s43, {sX}, 3")
    a("s_add_u32 s42, s42, s43")
    a(f"s_lshr_b32 s44, {sI}, 3")
    a("s_mul_i32 s43, s44, 9")
    a("s_add_u32 s43, s43, 1")
    a("s_lshr_b32 s43, s43, 1")
    a(f"s_add_u32 s43, s43, {W}")
    a("s_and_b32 s44, s44, 1")
    a("s_sub_u32 s44, 5, s44")

def gen_pha(a, slow):
    a.lab("L_it")
    stamp(a, "A_begin")
    a(f"s_and_b32 s45, {sI}, 3")
    a("s_lshl_b32 s45, s45, 1")
    a(f"s_lshl_b32 s46, {sX}, 3")
    a("s_add_u32 s45, s45, s46")
    a(f"s_lshr_b32 s46, {sI}, 2")
    a(f"s_cmp_ge_u32 {W}, 5")
    a("s_cbranch_scc1 L_A_q2")
    a(f"s_cmp_eq_u32 {W}, 4")
    a("s_cbranch_scc1 L_A_kv")
    a(f"s_cmp_ge_u32 {W}, 2")
    a("s_cbranch_scc1 L_A_st")
    a(f"s_add_u32 s22, s45, {W}")
    a(f"s_cmp_eq_u32 {sIT}, 0")
    a("s_cbranch_scc1 L_A_ld0")
    a("s_lshl_b32 s23, s22, 9")
    a(f"s_add_u32 s23, s23, {FXA:#x}")
    poll(a, IT, "s23", 4)
    stamp(a, "A_xflag")
    a(f"s_mul_i32 s22, s22, {XT}")
    a(f"s_add_u32 s22, s22, {XS:#x}")
    a(f"s_mul_i32 s23, {W}, {XT}")
    a(f"s_add_u32 m0, s23, {L_XA}")
    dma(a, WS, "s22", 36, 1024, 1024)
    a.lab("L_A_ld2")
    for n in (24, 12, 0):
        a(f"s_waitcnt vmcnt({n})")
        a("s_barrier")
        if n == 24: stamp(a, "A_bar1")
    a.lab("L_A_ld3")
    a(f"s_cmp_lg_u32 {W}, 0")
    a("s_cbranch_scc1 L_A_q")
    a(f"s_lshl_b32 s23, {sX}, 12")
    a(f"s_add_u32 s23, s23, {FKAL:#x}")
    poll(a, IT, "s23", 16)
    stamp(a, "A_kvflag")
    a(f"s_mul_i32 s22, {sX}, {BLK}")
    a(f"s_add_u32 s22, s22, {KVL:#x}")
    a("s_mov_b32 m0, 0")
    dma(a, WS, "s22", 19, 1024, 1024, half_last=True)
    a("s_waitcnt vmcnt(0)")
    a("s_branch L_A_q")
    a.lab("L_A_ld0")
    for n in range(3):
        a("s_barrier")
        if n == 0: stamp(a, "A_bar1")
    a("s_branch L_A_ld3")
    a.lab("L_A_idle")
    for n in range(3):
        a("s_barrier")
    a("s_branch L_A_q")
    a.lab("L_A_st")
    a(f"s_sub_u32 s24, {W}, 2")
    a(f"s_cmp_eq_u32 {sIT}, 0")
    a("s_cbranch_scc0 L_A_st1")
    a(f"s_mul_i32 s25, s24, {XT}")
    a(f"s_add_u32 s25, s25, {L_XA}")
    xaddr(a, 40, "s25")
    a(f"v_mov_b32 v{STR}, 0")
    a(f"v_mov_b32 v{STR+1}, 0")
    a("s_mov_b32 s25, 0")
    a.lab("L_A_st0")
    for k in range(12):
        a(f"ds_read_b128 {vr(R+4+4*k,4)}, v{40+(k&3)} offset:{(k>>2)*4096}")
    for k in range(12):
        a(f"s_waitcnt lgkmcnt({11-k})")
        for d in range(4):
            a(f"v_dot2_f32_bf16 v{STR}, v{R+4+4*k+d}, s60, v{STR}")
            a(f"v_dot2_f32_bf16 v{STR+1}, v{R+4+4*k+d}, v{R+4+4*k+d}, v{STR+1}")
    for q in range(4):
        a(f"v_add_u32 v{40+q}, {3*4096}, v{40+q}")
    a("s_add_u32 s25, s25, 1")
    a("s_cmp_lt_u32 s25, 3")
    a("s_cbranch_scc1 L_A_st0")
    a("s_barrier")
    a(f"v_permlane32_swap_b32 v{STR}, v{STR+1}")
    a("s_nop 1")
    a(f"v_add_f32 v{STR}, v{STR}, v{STR+1}")
    a("s_barrier")
    a("s_branch L_A_st2")
    a.lab("L_A_st1")
    a("s_add_u32 s25, s45, s24")
    a("s_barrier")
    stats_load(a, STR, "s25", STS)
    a("s_barrier")
    a("s_waitcnt vmcnt(0)")
    stats_sum(a, STR)
    a.lab("L_A_st2")
    stats_compute(a, STR, XEXT, RSTD)
    a("s_lshl_b32 s24, s24, 8")
    a(f"s_add_u32 s24, s24, {L_MISC}")
    a(f"v_lshl_add_u32 v4, v{vT}, 2, s24")
    a(f"ds_write_b32 v4, v{RSTD}")
    a(f"ds_write_b32 v4, v{XEXT} offset:128")
    a("s_waitcnt lgkmcnt(0)")
    a("s_barrier")
    a("s_branch L_A_q")
    def bar1():
        l = a.nl("Lb")
        a(f"s_cmp_eq_u32 {sIT}, 0")
        a(f"s_cbranch_scc1 {l}")
        a("s_barrier")
        a.lab(l)
    def gemm3(bases, swap, pre, staged):
        a(f"v_mov_b32 v{CS}, 0")
        a(f"v_mov_b32 v{XEXT+1}, 0")
        a(f"v_mov_b32 v{XEXT+3}, 0")
        if staged:
            def h2():
                bar1(); pre()
            gemm_stage(a, bases, 0, 36, swap, True, quad=True, hooks={0: bar1, 12: bar1, 20: (lambda: census_issue(a, 44)), 24: h2})
        else:
            for _ in range(3): bar1()
            gemm_stage(a, bases, 0, 36, swap, True, cs=True, pre=pre, quad=True)
    def first_w():
        l, e = a.nl("Lfw"), a.nl("Lfe")
        a(f"s_cmp_eq_u32 {sIT}, 0")
        a(f"s_cbranch_scc0 {l}")
        for _ in range(3): a("s_barrier")
        a(f"s_mov_b32 s23, {FPREP:#x}")
        poll(a, WS, "s23", 36, vtmp=4, voff=13)
        stamp(a, "A_wflag")
        wa_role(a, l)
        a(f"s_mul_i32 s40, s22, {WCT}")
        a(f"s_add_u32 s40, s40, {WA_OFF:#x}")
        r_loads(a, WS, "s40", 0, 12)
        a(f"s_branch {e}")
        a.lab(l)
        a("s_waitcnt vmcnt(0)")
        a.lab(e)
    a.lab("L_A_kv")
    a("s_and_b32 s24, s46, 2")
    a("s_cmp_eq_u32 s24, 0")
    a("s_cbranch_scc1 L_A_idle")
    a("s_and_b32 s24, s46, 1")
    a("s_add_u32 s47, s45, s24")
    a("s_lshl_b32 s27, s24, 8")
    a(f"s_add_u32 s27, s27, {L_MISC}")
    a(f"s_mul_i32 s24, s24, {XT}")
    a(f"s_add_u32 s24, s24, {L_XA}")
    xaddr(a, 40, "s24")
    a(f"v_lshl_add_u32 v6, v{vT}, 2, s27")
    a(f"v_lshl_add_u32 v5, v{vH}, 4, s27")
    a("s_lshr_b32 s28, s47, 2")
    a(f"s_mul_i32 s28, s28, {GRP}")
    a(f"s_add_u32 s28, s28, {KVA:#x}")
    a("s_and_b32 s29, s47, 3")
    a("s_setprio 3")
    a("s_waitcnt vmcnt(0)")
    a(f"s_cmp_eq_u32 {sIT}, 0")
    a("s_cbranch_scc0 L_A_kv1")
    a(f"v_mov_b32 v{CS}, 0")
    for k0 in range(0, 36, 12):
        for ks in range(k0, k0 + 12):
            a(f"ds_read_b128 {vr(R+4*ks,4)}, v{vL16} offset:{ks*1024}")
        for ks in range(k0, k0 + 12):
            a(f"s_waitcnt lgkmcnt({k0 + 11 - ks})")
            cs_dot(a, ks)
    cs_pack(a, WEXT)
    for _ in range(3): a("s_barrier")
    a.lab("L_A_kv1")
    a("s_cmp_ge_u32 s46, 4")
    a("s_cbranch_scc1 L_A_v")
    def pre_k():
        a(f"ds_read_b32 v{RSTD}, v6")
        a(f"ds_read_b32 v{XEXT}, v6 offset:128")
    gemm3([40], False, pre_k, True)
    a(f"v_mfma_f32_32x32x8_bf16 {vr(ACC,16)}, {vr(WEXT,2)}, {vr(XEXT,2)}, {vr(ACC,16)}")
    a("s_lshl_b32 s30, s29, 10")
    a("s_add_u32 s30, s30, s28")
    a(f"s_add_u32 s31, s30, {KVL-KVA:#x}")
    a("s_lshr_b32 s24, s29, 1")
    a("s_lshl_b32 s24, s24, 8")
    a("s_and_b32 s25, s29, 1")
    a("s_lshl_b32 s25, s25, 2")
    a("s_add_u32 s24, s24, s25")
    a("s_add_u32 s24, s24, s28")
    a("s_add_u32 s24, s24, 4096")
    a(f"s_add_u32 s25, s24, {KVL-KVA:#x}")
    a(f"v_lshlrev_b32 v4, 30, v{vH}")
    a(f"v_lshl_add_u32 v4, v{vT}, 3, v4")
    for r in range(10):
        a(f"v_mul_f32 v{ACC+r}, v{RSTD}, v{ACC+r}")
    pack(a, ACC, 5)
    a("s_waitcnt vmcnt(0)")
    census_eval(a, 44, sLOC)
    lstore(a, [f"buffer_store_dwordx4 {vr(ACC,4)}, v{vL16}, {WS}, s31 offen", f"buffer_store_dword v{ACC+4}, v4, {WS}, s25 offen"])
    a("s_add_u32 s30, s30, s33")
    a("s_add_u32 s24, s24, s33")
    a(f"buffer_store_dwordx4 {vr(ACC,4)}, v{vL16}, {IT}, s30 offen sc1")
    a(f"buffer_store_dword v{ACC+4}, v4, {IT}, s24 offen sc1")
    a("s_mov_b32 s26, 0")
    a("s_branch L_A_kvflag")
    a.lab("L_A_v")
    def pre_v():
        a(f"ds_read_b32 v{XEXT}, v6 offset:128")
        for q in range(4):
            a(f"ds_read_b128 {vr(STR+4*q,4)}, v5 offset:{32*q}")
    gemm3([40], True, pre_v, True)
    a(f"v_mfma_f32_32x32x8_bf16 {vr(ACC,16)}, {vr(XEXT,2)}, {vr(WEXT,2)}, {vr(ACC,16)}")
    a(f"s_mul_i32 s30, s29, {VT}")
    a("s_add_u32 s30, s30, s28")
    a("s_add_u32 s30, s30, 4608")
    a(f"s_add_u32 s31, s30, {KVL-KVA:#x}")
    a(f"v_mul_u32_u24 v4, 304, v{vH}")
    a(f"v_lshl_add_u32 v4, v{vT}, 4, v4")
    a(f"v_mov_b32 v5, {OOB:#x}")
    a(f"v_cmp_ge_u32 vcc, 18, v{vT}")
    a("s_nop 1")
    a("v_cndmask_b32 v4, v5, v4, vcc")
    a("s_nop 1")
    for r in range(16):
        a(f"v_mul_f32 v{ACC+r}, v{STR+r}, v{ACC+r}")
    pack(a, ACC, 8)
    a("s_mov_b32 s24, 0x40000")
    a("s_mov_b32 s25, 0x40000")
    a("s_mov_b64 exec, s[24:25]")
    for p in range(8):
        a(f"v_mov_b32 v{ACC+p}, s60")
    a("s_mov_b64 exec, -1")
    a("s_waitcnt vmcnt(0)")
    census_eval(a, 44, sLOC)
    lstore(a, [f"buffer_store_dwordx4 {vr(ACC,4)}, v4, {WS}, s31 offen", f"buffer_store_dwordx4 {vr(ACC+4,4)}, v4, {WS}, s31 offen offset:608"])
    a("s_add_u32 s30, s30, s33")
    for so in ("s30",):
        a(f"buffer_store_dwordx4 {vr(ACC,4)}, v4, {IT}, {so} offen sc1")
        a(f"buffer_store_dwordx4 {vr(ACC+4,4)}, v4, {IT}, {so} offen offset:608 sc1")
    a("s_mov_b32 s26, 128")
    a.lab("L_A_kvflag")
    stamp(a, "A_kvst")
    a("s_lshl_b32 s24, s47, 8")
    a("s_add_u32 s24, s24, s26")
    a(f"s_lshl_b32 s25, {sX}, 11")
    a("s_add_u32 s25, s25, s24")
    a(f"s_add_u32 s25, s25, {FKAL:#x}")
    a(f"s_add_u32 s24, s24, {FKA:#x}")
    a("s_waitcnt vmcnt(2)")
    stamp(a, "A_kvack")
    setflag(a, IT, "s25", local=True)
    a("s_waitcnt vmcnt(1)")
    setflag(a, IT, "s24")
    a("s_setprio 0")
    a("s_branch L_A_q")
    a.lab("L_A_q2")
    xaddr(a, 88, L_XA)
    for q in range(4):
        a(f"v_add_u32 v{92+q}, {XT}, v{88+q}")
    a(f"v_lshlrev_b32 v5, 2, v{vT}")
    a(f"v_add_u32 v5, {L_MISC}, v5")
    first_w()
    def pre_q():
        for t in range(2):
            a(f"ds_read_b32 v{RSTD+t}, v5 offset:{256*t}")
            a(f"ds_read_b32 v{XEXT+2*t}, v5 offset:{256*t+128}")
    gemm3([88, 92], False, pre_q, False)
    for t in range(2):
        a(f"v_mfma_f32_32x32x8_bf16 {vr(ACC+16*t,16)}, {vr(WEXT,2)}, {vr(XEXT+2*t,2)}, {vr(ACC+16*t,16)}")
    for t in range(2):
        a(f"v_mul_f32 v{RSTD+t}, {f2u(QSCALE):#x}, v{RSTD+t}")
    a(f"s_sub_u32 s24, {W}, 5")
    a(f"s_mul_i32 s24, s24, {4*1152}")
    a(f"s_add_u32 s24, s24, {L_Q}")
    a(f"v_add_u32 v4, s24, v{vL16}")
    a(f"v_mul_u32_u24 v5, {4*1152}, v{vH}")
    a(f"v_lshl_add_u32 v5, v{vT}, 2, v5")
    a(f"v_add_u32 v5, {L_Q+1024}, v5")
    a("s_nop 3")
    for t in range(2):
        for r in range(16):
            a(f"v_mul_f32 v{ACC+16*t+r}, v{RSTD+t}, v{ACC+16*t+r}")
        pack(a, ACC + 16 * t, 8)
    a(f"s_cmp_eq_u32 {W}, 7")
    a("s_cbranch_scc1 L_A_qext")
    for t in range(2):
        for hh in range(2):
            a(f"ds_write_b128 v4, {vr(ACC+16*t+4*hh,4)} offset:{(2*hh+t)*1152}")
    a("s_branch L_A_q")
    a.lab("L_A_qext")
    for t in range(2):
        for p in range(2):
            a(f"ds_write_b32 v5, v{ACC+16*t+p} offset:{(2*p+t)*1152}")
    a.lab("L_A_q")
    a("s_waitcnt vmcnt(0) lgkmcnt(0)")
    a("s_barrier")
    stamp(a, "A_attn0")
    a(f"v_lshlrev_b32 v11, 3, v{vL16}")
    a(f"s_add_u32 s47, {sX}, {W}")
    a("s_and_b32 s47, s47, 7")
    a("s_lshl_b32 s23, s47, 11")
    a(f"s_add_u32 s23, s23, {FKA:#x}")
    a(f"v_mov_b32 v12, v{vNONCE}")
    set_exec(a, 0xffff)
    poll_issue(a, IT, "s23", 16, 12, 11)
    a("s_mov_b64 exec, -1")
    a(f"s_mul_i32 s24, {W}, 1152")
    a(f"s_add_u32 s24, s24, {L_Q}")
    a(f"v_add_u32 v4, s24, v{vL16}")
    a(f"v_lshl_add_u32 v5, v{vT}, 2, s24")
    a(f"ds_read_b128 {vr(QM,4)}, v4")
    a(f"ds_read_b32 v6, v5 offset:1024")
    a(f"v_mov_b32 v{vKa}, v{vL16}")
    a(f"v_lshlrev_b32 v{vKe}, 8, v{vH}")
    a(f"v_lshl_add_u32 v{vKe}, v{vT}, 3, v{vKe}")
    a(f"ds_read_b128 {vr(KM,4)}, v{vKa}")
    a(f"ds_read_b64 {vr(KE,2)}, v{vKe} offset:4096")
    v_addr(a, 4608)
    a(f"v_cmp_eq_u32 vcc, 0, v{vH}")
    for r in (1, 2, 5, 6):
        a(f"v_mov_b32 v{QE+r}, 0")
    a("s_waitcnt lgkmcnt(0)")
    a(f"v_cndmask_b32 v{QE}, 0, v6, vcc")
    a(f"v_cndmask_b32 v{QE+3}, 0, v6, vcc")
    a(f"v_cndmask_b32 v{QE+4}, v6, 0, vcc")
    a(f"v_cndmask_b32 v{QE+7}, v6, 0, vcc")
    a(f"v_mfma_f32_32x32x16_bf16 {vr(S_[0],16)}, {vr(KM,4)}, {vr(QM,4)}, 0")
    a(f"v_mfma_f32_32x32x8_bf16 {vr(S_[0],16)}, {vr(KE,2)}, {vr(QE,2)}, {vr(S_[0],16)}")
    a(f"ds_read_b128 {vr(KM,4)}, v{vKa} offset:1024")
    a(f"ds_read_b128 {vr(VA,4)}, v{vVa}")
    a(f"s_and_b32 s22, {W}, 1")
    a("s_add_u32 s45, s45, s22")
    a("s_lshl_b32 s46, s46, 2")
    a(f"s_lshr_b32 s22, {W}, 1")
    a("s_add_u32 s46, s46, s22")
    out_role(a)
    a(f"s_lshl_b32 s41, {sI}, 1")
    a(f"s_add_u32 s41, s41, {W}")
    a("s_sub_u32 s41, s41, 5")
    a(f"s_mul_i32 s41, s41, {WCT}")
    a(f"s_add_u32 s41, s41, {WB_OFF:#x}")
    a(f"s_sub_u32 s22, {W}, 5")
    a("s_cmp_lt_u32 s22, 2")
    a(f"s_cselect_b32 s41, s41, {OOB:#x}")
    a(f"s_mul_i32 s22, s43, {XT}")
    a(f"s_add_u32 s22, s22, {WOA_OFF:#x}")
    a(f"s_cmp_lt_u32 {W}, s44")
    a("s_cselect_b32 s41, s22, s41")
    base = {vKa: 0, vKe: 0, vVa: 0}
    def off(reg, o):
        if o - base[reg] > 65535:
            d = 6 * GRP
            a(f"v_add_u32 v{reg}, {d}, v{reg}")
            base[reg] += d
        assert 0 <= o - base[reg] <= 65535
        return o - base[reg]
    def call_if(lo, hi, target):
        l = a.nl("Lc")
        if lo == hi:
            a(f"s_cmp_eq_u32 {W}, {lo}")
        else:
            a(f"s_sub_u32 s22, {W}, {lo}")
            a(f"s_cmp_le_u32 s22, {hi-lo}")
        a(f"s_cbranch_scc0 {l}")
        a(f"s_call_b64 s[30:31], {target}")
        a.lab(l)
    ko = lambda t: (t >> 2) * GRP + (t & 3) * 1024
    vo = lambda t: (t >> 2) * GRP + (t & 3) * VT
    for j in range(64):
        if j + 1 < 64: off(vVa, vo(j + 1))
        kw = dict(rdKM=off(vKa, ko(j + 2)) if j + 2 < 64 else None,
                  rdKE=off(vKe, ((j + 2) >> 2) * GRP + 4096) if (j + 2 < 64 and (j + 2) % 4 == 0) else None,
                  rdVa=off(vVa, vo(j + 1)) if j + 1 < 64 else None, rdVb=off(vVa, vo(j) + 608))
        ex = []
        if 38 <= j < 56:
            for ks in (2 * (j - 38), 2 * (j - 38) + 1):
                if ks % 4 == 0: ex.append(f"s_add_u32 s61, s41, {(ks//4)*4096}")
                ex.append(f"buffer_load_dwordx4 {vr(R+4*ks,4)}, v{vL16}, {WS}, s61 offen offset:{(ks%4)*1024}")
        body(a, j & 1, u=(j + 1) & 3, qk=(j < 63), pv1=(j > 0), pvwait=(1 if j == 63 else 2), extra=ex, fair=FAIR, ozero=(j == 0), **kw)
        if j == 0: call_if(0, 0, "L_A_touch0")
        if j == 1: call_if(1, 2, "L_A_fetch")
        if j == 5:
            a("s_waitcnt vmcnt(0)")
            a("s_barrier")
            stamp(a, "A_n2b")
            call_if(3, 4, "L_A_fetch")
            call_if(0, 2, "L_defer")
        if j == 9: call_if(5, 6, "L_A_fetch")
        if j == 13: call_if(7, 7, "L_A_fetch")
        if j == 21:
            a("s_waitcnt vmcnt(0)")
            a("s_barrier")
            stamp(a, "A_n4b")
            stamp(a, "A_n4b", True)
            call_if(1, 1, "L_A_pflag")
        if j == 22: call_if(1, 3, "L_A_touch")
        if j == 26: call_if(4, 7, "L_A_touch")
        if j == 34: call_if(0, 0, "L_A_touch")
        if j == 28: call_if(0, 0, "L_A_check0")
        if j == 33: call_if(0, 0, "L_A_check")
        if j == 37:
            l = a.nl("Lc")
            a(f"s_cmp_eq_u32 {sIT}, 0")
            a(f"s_cbranch_scc0 {l}")
            a(f"s_mov_b32 s50, {L_FLAG+4}")
            a("s_mov_b32 s51, 1")
            a("s_call_b64 s[30:31], L_B_wait")
            a(f"v_readfirstlane_b32 {sLOC}, v6")
            a.lab(l)
    tail_pv1(a, 1)
    stamp(a, "A_attn1")
    stamp(a, "A_attn1", True)
    attn_finish(a, "A", "s45", "s46", OS)
    a("s_waitcnt vmcnt(0)")
    a("s_barrier")
    a(f"s_cmp_lg_u32 {W}, 0")
    a("s_cbranch_scc1 L_A_end")
    a("s_lshr_b32 s22, s45, 1")
    a("s_lshl_b32 s22, s22, 10")
    a("s_lshl_b32 s23, s46, 5")
    a("s_add_u32 s22, s22, s23")
    a(f"s_add_u32 s22, s22, {FOA:#x}")
    setflag(a, IT, "s22", local=True)
    a.lab("L_A_end")
    stamp(a, "A_end")
    b = slow
    x0_sub(b)
    RET = "s_setpc_b64 s[30:31]"
    b.lab("L_defer")
    b(f"s_cmp_eq_u32 {sIT}, 0")
    b("s_cbranch_scc0 L_ret")
    b(f"buffer_store_dwordx4 {vr(RES,4)}, v{vL16}, {WS}, s100 offen sc1")
    b("s_add_u32 s100, s100, s101")
    b(f"buffer_store_dwordx4 {vr(RES+4,4)}, v{vL16}, {WS}, s100 offen sc1")
    b("s_cmp_lt_u32 s2, 180")
    b("s_cbranch_scc1 L_ret")
    b(f"s_cmp_ge_u32 {W}, 2")
    b("s_cbranch_scc1 L_ret")
    b("s_add_u32 s100, s100, s101")
    b(f"buffer_store_dwordx4 {vr(R,4)}, v{vL16}, {WS}, s100 offen sc1")
    b.lab("L_ret")
    b(RET)
    b.lab("L_A_pflag")
    b(f"s_cmp_eq_u32 {sIT}, 0")
    b("s_cbranch_scc0 L_ret")
    b("s_cmp_lt_u32 s2, 36")
    b("s_cbranch_scc1 L_ret")
    prep_flag(b)
    b(RET)
    b.lab("L_A_fetch")
    b("s_waitcnt vmcnt(0)")
    poll_test(b, 16, 12)
    b("s_cbranch_vccz L_A_fetch2")
    b("s_lshl_b32 s23, s47, 11")
    b(f"s_add_u32 s23, s23, {FKA:#x}")
    poll(b, IT, "s23", 16, vtmp=4, voff=11, setoff=False)
    b.lab("L_A_fetch2")
    b(f"s_mul_i32 s22, s47, {BLK}")
    b("s_add_u32 s22, s22, s33")
    b(f"s_mul_i32 m0, {W}, {BLK}")
    dma(b, IT, "s22", 19, 1024, 1024, half_last=True)
    b(f"s_cmp_ge_u32 {W}, 3")
    b("s_cbranch_scc1 L_defer")
    b(RET)
    b.lab("L_A_check0")
    b(f"s_cmp_eq_u32 {sIT}, 0")
    b("s_cbranch_scc0 L_ret")
    b(f"s_mov_b32 s22, {FPREP:#x}")
    poll_issue(b, WS, "s22", 256, 104, 11)
    census_issue(b, 108)
    b(RET)
    b.lab("L_A_check")
    b(f"s_cmp_eq_u32 {sIT}, 0")
    b("s_cbranch_scc0 L_ret")
    b("s_waitcnt vmcnt(0)")
    poll_test(b, 256, 104)
    b("s_cbranch_vccz L_A_check2")
    b(f"s_mov_b32 s22, {FPREP:#x}")
    poll(b, WS, "s22", 256, vtmp=4, voff=11, setoff=False)
    b.lab("L_A_check2")
    census_eval(b, 108, "s22")
    b("v_mov_b32 v4, s22")
    b(f"v_mov_b32 v5, {L_FLAG}")
    b("ds_write_b32 v5, v4 offset:4")
    b("s_waitcnt lgkmcnt(0)")
    b(RET)
    b.lab("L_A_touch0")
    b(f"s_cmp_eq_u32 {sIT}, 0")
    b("s_cbranch_scc0 L_ret")
    b(f"s_mov_b32 s22, {FPREP:#x}")
    poll_issue(b, WS, "s22", 256, 100, 11)
    b(RET)
    b.lab("L_A_touch")
    b(f"s_cmp_eq_u32 {sIT}, 0")
    b("s_cbranch_scc0 L_ret")
    b(f"s_mul_i32 s22, s42, {XT}")
    b("s_lshl_b32 s23, s43, 6")
    b("s_add_u32 s22, s22, s23")
    b(f"v_mul_u32_u24 v5, 1152, v{vT}")
    b(f"v_lshl_add_u32 v5, v{vH}, 4, v5")
    b(f"buffer_load_dwordx4 {vr(RES,4)}, v5, {X0}, s22 offen")
    b(f"buffer_load_dwordx4 {vr(RES+4,4)}, v5, {X0}, s22 offen offset:32")
    b(f"s_lshl_b32 s22, {sI}, 6")
    b(f"s_lshl_b32 s23, {sX}, 3")
    b("s_add_u32 s22, s22, s23")
    b(f"s_add_u32 s22, s22, {W}")
    b("s_lshl_b32 s23, s22, 7")
    b(f"s_add_u32 s23, s23, {FKB:#x}")
    b(f"s_mul_i32 s22, s22, {KVT}")
    b(f"s_add_u32 s22, s22, {KVB:#x}")
    set_exec(b, (1 << 20) - 1)
    b(f"buffer_load_dword v100, v11, {IT}, s22 offen sc1")
    b("s_mov_b64 exec, 1")
    b(f"buffer_load_dword v100, off, {IT}, s23 sc1")
    b("s_mov_b64 exec, -1")
    b(f"s_mul_i32 s22, s45, {XT}")
    b(f"s_add_u32 s22, s22, {OS:#x}")
    b("s_lshl_b32 s23, s46, 10")
    b("s_add_u32 s23, s23, s22")
    b(f"buffer_load_dwordx4 v[100:103], v{vL16}, {WS}, s23 offen sc1")
    b("s_lshr_b32 s23, s46, 3")
    b("s_lshl_b32 s23, s23, 10")
    b("s_add_u32 s23, s23, s22")
    b(f"s_add_u32 s23, s23, {32*1024}")
    b(f"buffer_load_dwordx4 v[100:103], v{vL16}, {WS}, s23 offen sc1")
    b(f"s_cmp_ge_u32 {W}, s44")
    b("s_cbranch_scc1 L_ret")
    b(f"s_mul_i32 s22, s42, {XT}")
    b("s_lshl_b32 s23, s43, 11")
    b("s_add_u32 s22, s22, s23")
    b(f"s_add_u32 s22, s22, {XS:#x}")
    b(f"buffer_load_dwordx4 v[100:103], v{vL16}, {WS}, s22 offen sc1")
    b(f"buffer_load_dwordx4 v[100:103], v{vL16}, {WS}, s22 offen offset:1024 sc1")
    b(f"s_mul_i32 s22, s42, {18*256}")
    b("s_lshl_b32 s23, s43, 8")
    b("s_add_u32 s22, s22, s23")
    b(f"s_add_u32 s22, s22, {STS:#x}")
    b(f"v_lshrrev_b32 v4, 2, v{vL16}")
    b(f"buffer_load_dword v100, v4, {WS}, s22 offen sc1")
    b(RET)
    b.lab("L_A_slow")
    for ps in range(2):
        b(f"v_mov_b32 v{vKa}, v{vL16}")
        b(f"v_lshlrev_b32 v{vKe}, 8, v{vH}")
        b(f"v_lshl_add_u32 v{vKe}, v{vT}, 3, v{vKe}")
        if ps == 0:
            b(f"v_mov_b32 v7, {f2u(float('-inf')):#x}")
        else:
            v_addr(b, 4608)
        b("s_mov_b32 s41, 0")
        b.lab(f"L_A_slow{ps}")
        b(f"ds_read_b64 {vr(KE,2)}, v{vKe} offset:4096")
        for u in range(4):
            b(f"ds_read_b128 {vr(KM,4)}, v{vKa} offset:{u*1024}")
            if ps:
                b(f"ds_read_b128 {vr(VA,4)}, v{vVa} offset:{u*VT}")
                b(f"ds_read_b128 {vr(VB,4)}, v{vVa} offset:{u*VT+608}")
            slow_qk(b, u, False)
            if ps: slow_pv(b)
            else: slow_max(b)
        b(f"v_add_u32 v{vKa}, {GRP}, v{vKa}")
        b(f"v_add_u32 v{vKe}, {GRP}, v{vKe}")
        b(f"v_add_u32 v{vVa}, {GRP}, v{vVa}")
        b("s_add_u32 s41, s41, 1")
        b("s_cmp_lt_u32 s41, 16")
        b(f"s_cbranch_scc1 L_A_slow{ps}")
        if ps == 0: slow_mid(b)
    slow_end(b, "A")

def gen_out(a, isB):
    tag = "OB" if isB else "OA"
    OO = OS
    a(f"s_cmp_lt_u32 {W}, s44")
    a(f"s_cbranch_scc1 L_{tag}_c")
    a(f"s_cmp_eq_u32 {W}, 7")
    a(f"s_cbranch_scc1 L_{tag}_ld")
    if not isB:
        a(f"s_cmp_eq_u32 {W}, 4")
        a(f"s_cbranch_scc1 L_{tag}_idle")
        a(f"s_sub_u32 s22, {W}, 5")
        a(f"s_mul_i32 s23, s22, {WCT}")
        a(f"s_add_u32 s23, s23, {L_WB}")
        a(f"v_add_u32 v4, s23, v{vL16}")
        a(f"v_mov_b32 v{CS}, 0")
        for ks in range(36):
            a(f"ds_write_b128 v4, {vr(R+4*ks,4)} offset:{ks*1024}")
        for _ in range(3): a("s_barrier")
        a(f"s_cmp_eq_u32 {sIT}, 0")
        a("s_cbranch_scc0 L_OA_cs")
        for ks in range(36):
            cs_dot(a, ks)
        cs_pack(a, RES)
        a.lab("L_OA_cs")
        a("s_lshl_b32 s22, s22, 8")
        a(f"s_add_u32 s22, s22, {L_WBX}")
        a(f"v_lshrrev_b32 v4, 2, v{vL16}")
        a("v_add_u32 v4, s22, v4")
        a(f"ds_write_b32 v4, v{RES}")
        a(f"v_mov_b32 v4, {L_FLAG+16}")
        for r in range(4): a(f"v_mov_b32 v{8+r}, 0")
        a("ds_write_b128 v4, v[8:11]")
        a("ds_write_b128 v4, v[8:11] offset:16")
        a("s_waitcnt lgkmcnt(0)")
        a(f"s_branch L_{tag}_e")
    else:
        a(f"s_cmp_eq_u32 {sIT}, 0")
        a(f"s_cbranch_scc0 L_{tag}_idle")
        wa_role(a, f"L_{tag}_idle")
        wa_issue(a)
    a.lab(f"L_{tag}_idle")
    for n in range(3):
        a("s_barrier")
    a(f"s_branch L_{tag}_e")
    a.lab(f"L_{tag}_ld")
    if not isB:
        a("s_lshr_b32 s23, s42, 1")
        a("s_lshl_b32 s23, s23, 10")
        a(f"s_add_u32 s23, s23, {FOA:#x}")
        poll(a, IT, "s23", 8)
    else:
        a(f"s_lshl_b32 s23, {sX}, 12")
        a(f"s_add_u32 s23, s23, {FOB:#x}")
        poll(a, IT, "s23", 32)
    stamp(a, tag + "_flag")
    a(f"s_mul_i32 s22, s42, {XT}")
    a(f"s_add_u32 s22, s22, {OO:#x}")
    a("s_mov_b32 m0, 0")
    dma(a, WS, "s22", 36, 1024, 1024)
    for n in (24, 12, 0):
        a(f"s_waitcnt vmcnt({n})")
        a("s_barrier")
    stamp(a, tag + "_x")
    if isB:
        a(f"s_cmp_eq_u32 {sIT}, 0")
        a(f"s_cbranch_scc0 L_{tag}_e")
        wa_role(a, f"L_{tag}_e")
        wa_issue(a)
    a(f"s_branch L_{tag}_e")
    a.lab(f"L_{tag}_c")
    a("s_waitcnt vmcnt(0)")
    for p in range(8):
        a(f"v_lshlrev_b32 v{ACC+2*p}, 16, v{RES+p}")
        a(f"v_and_b32 v{ACC+2*p+1}, 0xffff0000, v{RES+p}")
    hb = lambda: a("s_barrier")
    gemm_stage(a, [vL16], 0, 36, False, False, hooks={0: hb, 12: hb, 24: hb})
    a("s_nop 12")
    pack(a, ACC, 8, RES)
    if isB:
        a(f"s_cmp_eq_u32 {sIT}, 1")
        a("s_cbranch_scc1 L_final")
        store_x_and_stats(a, RES, "s42", "s43", 4, XS, STS, WS)
    else:
        store_x_and_stats(a, RES, "s42", "s43", 4, XS, STS, WS)
    a("s_waitcnt vmcnt(0)")
    a.lab(f"L_{tag}_e")
    if isB:
        a(f"s_cmp_eq_u32 {sIT}, 1")
        a("s_cbranch_scc1 L_fin2")
    a("s_barrier")
    a(f"s_cmp_lg_u32 {W}, 0")
    a(f"s_cbranch_scc1 L_{tag}_nf")
    a("s_lshl_b32 s22, s42, 9")
    a(f"s_lshr_b32 s23, {sI}, 3")
    a("s_lshl_b32 s23, s23, 7")
    a("s_add_u32 s22, s22, s23")
    a(f"s_add_u32 s22, s22, {(ITS + FXA) if isB else FXB:#x}")
    setflag(a, IT, "s22", local=True)
    a.lab(f"L_{tag}_nf")
    stamp(a, tag + "_end")

def gen_phb(a, slow):
    a(f"s_add_u32 s48, {W}, 4")
    a(f"s_sub_u32 s22, 7, {W}")
    a(f"s_cmp_lt_u32 {W}, 4")
    a("s_cselect_b32 s48, s48, s22")
    a(f"s_lshl_b32 s45, {sX}, 3")
    a("s_add_u32 s45, s45, s48")
    a(f"s_mov_b32 s46, {sI}")
    a("s_setprio 1")
    a(f"s_cmp_lt_u32 {W}, 4")
    a("s_cbranch_scc0 L_B_pr")
    a("s_setprio 2")
    a.lab("L_B_pr")
    BX = 104
    MK = 72
    aVG, aVL, aEX, aFAC = 4, 5, 11, 13
    a("s_add_u32 s28, s48, 8")
    a(f"s_mul_i32 s28, s28, {KVT}")
    a(f"s_add_u32 s28, s28, {L_KVB}")
    a("s_lshl_b32 s49, s46, 6")
    a("s_add_u32 s49, s49, s45")
    a(f"s_mul_i32 s29, s49, {KVT}")
    a(f"s_add_u32 s29, s29, {KVB:#x}")
    a("s_lshl_b32 s49, s49, 7")
    a(f"s_add_u32 s49, s49, {FKB:#x}")
    a(f"s_lshl_b32 s27, {W}, 8")
    a(f"s_add_u32 s27, s27, {L_MISC}")
    a("s_add_u32 s47, s48, 1")
    a(f"s_cmp_eq_u32 {sX}, 0")
    a("s_cselect_b32 s47, s47, 9")
    a(f"s_mul_i32 s41, s43, {XT}")
    a(f"s_add_u32 s41, s41, {WOB_OFF:#x}")
    a(f"s_cmp_lt_u32 {W}, s44")
    a(f"s_cselect_b32 s41, s41, {OOB:#x}")
    a(f"v_lshrrev_b32 v5, 2, v{vL16}")
    a(f"v_add_u32 v4, {L_WBX}, v5")
    a(f"ds_read_b32 v106, v4")
    a(f"ds_read_b32 v108, v4 offset:256")
    a("v_mov_b32 v107, 0")
    a("v_mov_b32 v109, 0")
    a(f"s_sub_u32 s24, s28, {8*KVT}")
    a(f"v_add_u32 v{vKa}, s24, v{vL16}")
    a(f"v_lshl_add_u32 v{vKe}, v{vT}, 2, s24")
    a("s_add_u32 s24, s24, 1152")
    v_addr(a, "s24")
    a(f"v_mov_b32 v11, {NEGBIG:#x}")
    mask_init(a, MK, True)
    a("s_lshl_b32 s23, s45, 9")
    a(f"s_add_u32 s23, s23, {FXB:#x}")
    poll(a, IT, "s23", 4)
    stamp(a, "B_xflag")
    a(f"s_and_b32 s24, {W}, 3")
    a("s_lshl_b32 s24, s24, 2")
    a(f"s_add_u32 s50, s24, {L_FLAG+32}")
    a(f"s_cmp_lt_u32 {W}, 4")
    a("s_cbranch_scc1 L_B_x")
    a("s_mov_b32 s51, 1")
    a("s_call_b64 s[30:31], L_B_wait")
    a.lab("L_B_x")
    stats_load(a, STR, "s45", STS)
    a(f"s_mul_i32 s22, s45, {XT}")
    a(f"s_add_u32 s22, s22, {XS:#x}")
    PF = BPF
    r_loads(a, WS, "s22", 0, PF, LD)
    a(f"v_add_u32 v6, {L_WB}, v{vL16}")
    a(f"v_add_u32 v7, {L_WB+WCT}, v{vL16}")
    a("s_waitcnt lgkmcnt(0)")
    items = [(ks, t) for ks in range(36) for t in range(2)]
    n = len(items); depth = 4
    def rd(i):
        ks, t = items[i]
        a(f"ds_read_b128 {vr(XB_+4*(i%depth),4)}, v{6+t} offset:{ks*1024}")
    for i in range(depth - 1): rd(i)
    for i in range(n):
        ks, t = items[i]
        if i == 0:
            main_a = a; a = A()
            stats_sum(a, STR)
            stats_compute(a, STR, BX, RSTD)
            a("s_waitcnt lgkmcnt(0)")
            a(f"v_lshl_add_u32 v4, v{vT}, 2, s27")
            a(f"ds_write_b32 v4, v{RSTD}")
            a(f"v_lshl_add_u32 v4, v{vH}, 4, s27")
            a("s_waitcnt lgkmcnt(0)")
            for q in range(4):
                a(f"ds_read_b128 {vr(STR+4*q,4)}, v4 offset:{32*q}")
            a(f"v_mul_u32_u24 v{aVG}, 304, v{vH}")
            a(f"v_lshl_add_u32 v{aVG}, v{vT}, 4, v{aVG}")
            a(f"v_add_u32 v{aVL}, s28, v{aVG}")
            a(f"v_cmp_ge_u32 vcc, 18, v{vT}")
            a(f"v_mov_b32 v{aEX}, {OOB:#x}")
            a(f"v_lshrrev_b32 v{aFAC}, 1, v{vT}")
            a(f"v_cndmask_b32 v{aVG}, v{aEX}, v{aVG}, vcc")
            a(f"v_mov_b32 v{aEX}, {LOOB:#x}")
            a(f"v_cndmask_b32 v{aVL}, v{aEX}, v{aVL}, vcc")
            a(f"v_cmp_eq_u32 vcc, 12, v{aFAC}")
            a(f"v_cmp_eq_u32 s[62:63], 13, v{aFAC}")
            a("s_add_u32 s24, s27, 128")
            a("s_add_u32 s25, s28, 1024")
            a(f"v_mov_b32 v{aFAC}, s24")
            a(f"v_cndmask_b32 v{aEX}, v{aEX}, v{aFAC}, vcc")
            a(f"v_mov_b32 v{aFAC}, s25")
            a(f"v_cndmask_b32 v{aEX}, v{aEX}, v{aFAC}, s[62:63]")
            a(f"v_and_b32 v{aFAC}, 1, v{vT}")
            a(f"v_lshl_add_u32 v{aEX}, v{aFAC}, 1, v{aEX}")
            a(f"v_lshl_add_u32 v{aEX}, v{vH}, 4, v{aEX}")
            a(f"v_mov_b32 v{aFAC}, {f2u(QSCALE):#x}")
            a(f"v_cndmask_b32 v{aFAC}, 1.0, v{aFAC}, vcc")
            a("s_waitcnt lgkmcnt(0)")
            for r in range(16):
                a(f"v_mul_f32 v{STR+r}, v{aFAC}, v{STR+r}")
            a(f"v_mul_f32 v{RSTD+1}, {f2u(QSCALE):#x}, v{RSTD}")
            a(f"v_mfma_f32_32x32x8_bf16 {vr(ACC,16)}, v[106:107], {vr(BX,2)}, {vr(ACC,16)}")
            a(f"v_mfma_f32_32x32x8_bf16 {vr(ACC+16,16)}, {vr(BX,2)}, v[108:109], {vr(ACC+16,16)}")
            side = list(a.l); a = main_a
        if i + depth - 1 < n:
            rd(i + depth - 1); out = depth - 1
        else:
            out = n - 1 - i
        if t == 0:
            a(f"s_waitcnt vmcnt({min(35, ks + PF - 1) - ks}) lgkmcnt({out})")
        else:
            a(f"s_waitcnt lgkmcnt({out})")
        acc = vr(ACC + 16 * t, 16); x = vr(R + 4 * ks, 4); w = vr(XB_ + 4 * (i % depth), 4)
        c = "0" if ks == 0 else acc
        a(f"v_mfma_f32_32x32x16_bf16 {acc}, {x}, {w}, {c}" if t else f"v_mfma_f32_32x32x16_bf16 {acc}, {w}, {x}, {c}")
        if t == 0 and ks + PF < 36:
            r_loads(a, WS, "s22", ks + PF, ks + PF + 1, LD)
        if i >= 2:
            for _ in range(4):
                if side: a.l.append(side.pop(0))
        if t == 0 and ks == LSTART:
            a("v_mov_b32 v15, s50" if not STAMPS else "v_mov_b32 v111, s50")
            a(f"ds_write_b32 v15, v{vNONCE}" if not STAMPS else f"ds_write_b32 v111, v{vNONCE}")
            if STAMPS: a("v_mov_b32 v111, 0")
    assert not side
    stamp(a, "B_gemm")
    V1 = ACC + 16
    a(f"v_add_u32 v6, s28, v{vL16}")
    a(f"v_lshlrev_b32 v7, 30, v{vH}")
    a(f"v_lshl_add_u32 v7, v{vT}, 2, v7")
    a(f"v_lshl_add_u32 v56, v{vT}, 2, s24")
    a(f"v_lshl_add_u32 v57, v{vT}, 2, s25")
    a(f"s_and_b32 s24, {W}, 4")
    a(f"s_add_u32 s24, s24, {L_FLAG+16}")
    a("v_mov_b32 v58, s24")
    a("v_mov_b32 v59, 1")
    a("s_mov_b32 s24, 0x40000")
    a("s_mov_b32 s25, 0x40000")
    a("s_nop 0")
    for r in range(8, 16):
        a(f"v_mul_f32 v{ACC+r}, v{RSTD}, v{ACC+r}")
    for p in range(4):
        a(f"v_cvt_pk_bf16_f32 v{KM+p-24}, v{ACC+8+2*p}, v{ACC+9+2*p}")
    a(f"ds_write_b128 v6, v[60:63]")
    a(f"buffer_store_dwordx4 v[60:63], v{vL16}, {IT}, s29 offen sc1")
    for r in range(16):
        a(f"v_mul_f32 v{V1+r}, v{STR+r}, v{V1+r}")
        if r % 2 == 1:
            a(f"v_cvt_pk_bf16_f32 v{V1+r//2}, v{V1+r-1}, v{V1+r}")
    for r in range(16):
        op = "ds_write_b16" if r % 2 == 0 else "ds_write_b16_d16_hi"
        a(f"{op} v{aEX}, v{V1+r//2} offset:{((r&3)+8*(r>>2))*4}")
    a("s_mov_b64 exec, s[24:25]")
    for p in range(8):
        a(f"v_mov_b32 v{V1+p}, s60")
    a("s_mov_b64 exec, -1")
    a("ds_read_b32 v64, v57")
    a("ds_read_b32 v65, v56")
    a(f"ds_write_b128 v{aVL}, {vr(V1,4)} offset:1152")
    a(f"ds_write_b128 v{aVL}, {vr(V1+4,4)} offset:{1152+608}")
    a(f"buffer_store_dwordx4 {vr(V1,4)}, v{aVG}, {IT}, s29 offen offset:1152 sc1")
    a(f"buffer_store_dwordx4 {vr(V1+4,4)}, v{aVG}, {IT}, s29 offen offset:{1152+608} sc1")
    for r in range(8):
        a(f"v_mul_f32 v{ACC+r}, v{RSTD+1}, v{ACC+r}")
    pack(a, ACC, 4)
    a(f"v_cmp_eq_u32 vcc, 0, v{vH}")
    a(f"v_mov_b32 v{QE+1}, 0")
    a(f"v_mov_b32 v{KE+1}, 0")
    a(f"v_mov_b32 v11, {NEGBIG:#x}")
    a("s_waitcnt lgkmcnt(0)")
    a(f"buffer_store_dword v64, v7, {IT}, s29 offen offset:1024 sc1")
    a("s_mov_b64 exec, 1")
    a("ds_add_u32 v58, v59")
    a("s_mov_b64 exec, -1")
    a(f"v_cndmask_b32 v{QE}, 0, v65, vcc")
    a(f"v_mov_b32 v{KE}, v64")
    a(f"v_mfma_f32_32x32x16_bf16 {vr(S_[0],16)}, v[60:63], {vr(QM,4)}, {vr(MK,16)}")
    a("s_nop 0")
    a(f"v_mfma_f32_32x32x8_bf16 {vr(S_[0],16)}, {vr(KE,2)}, {vr(QE,2)}, {vr(S_[0],16)}")
    stamp(a, "B_attn0")
    to = lambda i: (8 - i) * KVT
    def wait(word, val):
        a(f"s_mov_b32 s50, {L_FLAG+16+4*word}")
        a(f"s_mov_b32 s51, {val}")
        a("s_call_b64 s[30:31], L_B_wait")
    def wait_if(tile, word, val):
        l = a.nl("Lw")
        a(f"s_cmp_eq_u32 s48, {tile}")
        a(f"s_cbranch_scc0 {l}")
        wait(word, val)
        a.lab(l)
    def first_qk(k0, masked):
        a(f"ds_read_b128 {vr(KM,4)}, v{k0[0]} offset:{k0[2]}")
        a(f"ds_read_b32 v{KE}, v{k0[1]} offset:{k0[2]+1024}")
        a("s_waitcnt lgkmcnt(0)")
        a(f"v_mfma_f32_32x32x16_bf16 {vr(S_[0],16)}, {vr(KM,4)}, {vr(QM,4)}, {vr(S_[0],16) if masked else 0}")
        a(f"v_mfma_f32_32x32x8_bf16 {vr(S_[0],16)}, {vr(KE,2)}, {vr(QE,2)}, {vr(S_[0],16)}")
    a("s_waitcnt vmcnt(0)")
    stamp(a, "B_ack")
    setflag(a, IT, "s49")
    a(f"s_cmp_eq_u32 {sX}, 0")
    a("s_cbranch_scc1 L_B_L0")
    a(f"s_cmp_ge_u32 {W}, 4")
    a("s_cbranch_scc1 L_B_L")
    a("s_setprio 0")
    for st in (1, 2, 3):
        a(f"s_cmp_ge_u32 s48, {st+4}")
        a(f"s_mov_b32 s22, {to(st)-4*KVT}")
        a(f"s_cselect_b32 s22, {to(st)}, s22")
        for q, r in enumerate((vKa, vKe, vVa)):
            a(f"v_add_u32 v{100+3*(st-1)+q}, s22, v{r}")
    a(f"s_cmp_eq_u32 {W}, 0")
    a("s_cbranch_scc0 L_B_E1")
    a("s_mov_b32 s50, 2")
    a("s_call_b64 s[30:31], L_B_fetch")
    a("s_call_b64 s[30:31], L_B_fetched")
    stamp(a, "B_rem")
    a.lab("L_B_E1")
    if WEARLY: r_loads(a, WS, "s41", 0, WEARLY)
    wsp = [WEARLY + (36 - WEARLY) * q // 8 for q in range(9)]
    def wl(k0, k1):
        ex = []
        for ks in range(k0, k1):
            if ks == k0 or ks % 4 == 0: ex.append(f"s_add_u32 s61, s41, {(ks//4)*4096}")
            ex.append(f"buffer_load_dwordx4 {vr(R+4*ks,4)}, v{vL16}, {WS}, s61 offen offset:{(ks%4)*1024}")
        return ex
    def wlg(cond, k0, k1):
        l = a.nl("Lg")
        return [cond, f"s_cbranch_scc0 {l}"] + wl(k0, k1) + [f"{l}:"]
    wait(0, 4)
    K = lambda st: (vKa, to(0)) if st == 0 else ((vKa, 0) if st == 4 else (100 + 3 * (st - 1), 0))
    E = lambda st: (vKe, to(0) + 1024) if st == 0 else ((vKe, 1024) if st == 4 else (101 + 3 * (st - 1), 1024))
    Vv = lambda st, o: (vVa, to(0) + o) if st == 0 else ((vVa, o) if st == 4 else (102 + 3 * (st - 1), o))
    a(f"ds_read_b128 {vr(KM,4)}, v{K(1)[0]} offset:{K(1)[1]}")
    a(f"ds_read_b32 v{KE}, v{E(1)[0]} offset:{E(1)[1]}")
    a(f"ds_read_b128 {vr(VA,4)}, v{vVa} offset:{to(0)}")
    for j in range(5):
        if j <= 2: wait_if(5 + j, 2, 1)
        body(a, j & 1, rdKM=K(j + 2) if j + 2 <= 4 else None, rdKE=E(j + 2) if j + 2 <= 4 else None,
             rdVa=Vv(j + 1, 0) if j + 1 <= 4 else None, rdVb=Vv(j, 608), u=0, qk=(j < 4), pv1=(j > 0),
             cinit=((lambda n: mask_init(a, n, False)) if j == 3 else None), ke64=False, pvwait=(1 if j == 4 else 2),
             ozero=(j == 0), extra=wl(wsp[j], wsp[j + 1]))
    tail_pv1(a, 0)
    a("s_sub_u32 s22, 8, s48")
    a(f"s_mul_i32 s22, s22, {KVT}")
    for q, r in enumerate((vKa, vKe, vVa)):
        a(f"v_add_u32 v{100+q}, s22, v{r}")
    for r in range(16):
        a(f"v_mov_b32 v{S_[0]+r}, 0")
    a("s_mov_b32 s40, 4")
    wait(1, 4)
    a.lab("L_B_run2")
    tb = lambda i: i * KVT
    first_qk((100, 101, tb(0)), True)
    a(f"ds_read_b128 {vr(KM,4)}, v100 offset:{tb(1)}")
    a(f"ds_read_b32 v{KE}, v101 offset:{tb(1)+1024}")
    a(f"ds_read_b128 {vr(VA,4)}, v102 offset:{tb(0)}")
    a("s_nop 8")
    for j in range(4):
        body(a, j & 1, rdKM=(100, tb(j + 2)) if j + 2 <= 3 else None, rdKE=(101, tb(j + 2) + 1024) if j + 2 <= 3 else None,
             rdVa=(102, tb(j + 1)) if j + 1 <= 3 else None, rdVb=(102, tb(j) + 608), u=0, qk=(j < 3), pv1=(j > 0),
             ke64=False, pvwait=(1 if j == 3 else 2), extra=(wlg(f"s_cmp_lt_u32 {W}, 4", wsp[5 + j], wsp[6 + j]) if j < 3 else ()))
        if j < 3:
            a(f"s_cmp_eq_u32 s40, {j+1}")
            a(f"s_cbranch_scc1 L_B_t{j&1}")
    a("s_branch L_B_t1")
    a.lab("L_B_L0")
    a(f"s_cmp_lt_u32 {W}, s44")
    a("s_cbranch_scc0 L_B_L0b")
    r_loads(a, WS, "s41", 0, 36)
    a.lab("L_B_L0b")
    wait(0, 4)
    a("s_mov_b32 s40, s47")
    a("s_mov_b32 s48, 99")
    a("s_branch L_B_L1")
    a.lab("L_B_L")
    a("s_add_u32 s40, s48, 5")
    wait(2, 1)
    a.lab("L_B_L1")
    wait(1, 4)
    a(f"s_cmp_lt_u32 {W}, s44")
    a("s_cselect_b32 s51, 77, 0")
    a(f"s_cmp_eq_u32 {sX}, 0")
    a("s_cselect_b32 s51, 0, s51")
    a(f"ds_read_b128 {vr(KM,4)}, v{vKa} offset:{to(1)}")
    a(f"ds_read_b32 v{KE}, v{vKe} offset:{to(1)+1024}")
    a(f"ds_read_b128 {vr(VA,4)}, v{vVa} offset:{to(0)}")
    for j in range(8):
        if j == 2:
            l = a.nl("Lf")
            a("s_cmp_eq_u32 s48, 0")
            a(f"s_cbranch_scc0 {l}")
            a("s_mov_b32 s50, 3")
            a("s_call_b64 s[30:31], L_B_fetch")
            a.lab(l)
        body(a, j & 1, rdKM=to(j + 2) if j + 2 <= 7 else None, rdKE=to(j + 2) + 1024 if j + 2 <= 7 else None,
             rdVa=to(j + 1) if j + 1 <= 7 else None, rdVb=to(j) + 608, u=0, qk=(j < 7), pv1=(j > 0),
             ke64=False, pvwait=(1 if j == 7 else 2), ozero=(j == 0),
             extra=(wlg("s_cmp_eq_u32 s51, 77", 36 * j // 7, 36 * (j + 1) // 7) if j < 7 else ()))
        if j < 7:
            a(f"s_cmp_eq_u32 s40, {j+1}")
            a(f"s_cbranch_scc1 L_B_u{j&1}")
    a.lab("L_B_u1")
    tail_pv1(a, 1)
    a.lab("L_B_L2")
    a(f"s_cmp_eq_u32 {sX}, 0")
    a("s_cbranch_scc1 L_B_done")
    for q, r in enumerate((vKa, vKe, vVa)):
        a(f"v_mov_b32 v{100+q}, v{r}")
    a("s_sub_u32 s40, 4, s48")
    a("s_cmp_eq_u32 s48, 0")
    a("s_cbranch_scc0 L_B_L3")
    a("s_call_b64 s[30:31], L_B_fetched")
    stamp(a, "B_rem2")
    a.lab("L_B_L3")
    a("s_nop 7")
    mask_init(a, S_[0], False)
    wait(3, 1)
    a("s_branch L_B_run2")
    a.lab("L_B_t0")
    tail_pv1(a, 0)
    a.lab("L_B_done")
    stamp(a, "B_attn1")
    attn_finish(a, "B", "s45", "s46", OS)
    a("s_waitcnt vmcnt(0)")
    a("s_barrier")
    a(f"s_cmp_lg_u32 {W}, 0")
    a("s_cbranch_scc1 L_B_end")
    a(f"s_lshl_b32 s22, {sX}, 12")
    a("s_lshl_b32 s23, s46, 7")
    a("s_add_u32 s22, s22, s23")
    a(f"s_add_u32 s22, s22, {FOB:#x}")
    setflag(a, IT, "s22", local=True)
    a.lab("L_B_end")
    a("s_setprio 0")
    stamp(a, "B_end")
    b = slow
    b.lab("L_B_t1")
    tail_pv1(b, 1)
    b("s_branch L_B_done")
    b.lab("L_B_u0")
    tail_pv1(b, 0)
    b("s_branch L_B_L2")
    RET = "s_setpc_b64 s[30:31]"
    b.lab("L_B_wait")
    b("v_mov_b32 v5, s50")
    b("s_mov_b32 s21, 0")
    b.lab("L_B_spin")
    b("ds_read_b32 v6, v5")
    b("s_add_u32 s21, s21, 1")
    b("s_cmp_gt_u32 s21, 0x400000")
    b("s_waitcnt lgkmcnt(0)")
    b("s_cbranch_scc1 L_B_spun")
    b("v_cmp_gt_u32 vcc, s51, v6")
    b("s_cbranch_vccz L_B_spun")
    b("s_sleep 1")
    b("s_branch L_B_spin")
    b.lab("L_B_spun")
    b(RET)
    b.lab("L_B_fetch")
    b("s_sub_u32 s22, s49, 1024")
    poll(b, IT, "s22", 4)
    stamp(b, "B_poll")
    b(f"s_sub_u32 s22, s29, {8*KVT}")
    b(f"s_mul_i32 s23, s48, {KVT}")
    b(f"s_add_u32 m0, s23, {L_KVB}")
    dma(b, IT, "s22", 9, 1024, 1024)
    b("s_add_u32 m0, m0, 1024")
    b("s_add_u32 s22, s22, 1024")
    set_exec(b, 0xffff)
    b(f"buffer_load_dwordx4 v{vL16}, {IT}, s22 offen sc1 lds")
    b("s_mov_b64 exec, -1")
    b(RET)
    b.lab("L_B_fetched")
    b("s_lshl_b32 s50, s50, 2")
    b(f"s_add_u32 s50, s50, {L_FLAG+16}")
    b("v_mov_b32 v5, s50")
    b("v_mov_b32 v6, 1")
    b("s_waitcnt vmcnt(0)")
    b("ds_write_b32 v5, v6")
    b("s_waitcnt lgkmcnt(0)")
    b(RET)
    b.lab("L_B_slow")
    for ps in range(2):
        if ps == 0:
            b(f"v_mov_b32 v7, {f2u(float('-inf')):#x}")
        for j in range(9):
            b(f"ds_read_b128 {vr(KM,4)}, v{vKa} offset:{to(j)}")
            b(f"ds_read_b32 v{KE}, v{vKe} offset:{to(j)+1024}")
            if ps:
                b(f"ds_read_b128 {vr(VA,4)}, v{vVa} offset:{to(j)}")
                b(f"ds_read_b128 {vr(VB,4)}, v{vVa} offset:{to(j)+608}")
            if j in (0, 8): mask_init(b, S_[0], j == 0)
            slow_qk(b, 0, j in (0, 8))
            if ps: slow_pv(b)
            else: slow_max(b)
            if j < 8:
                b(f"s_cmp_eq_u32 s47, {j+1}")
                b(f"s_cbranch_scc1 L_B_slowd{ps}")
        b.lab(f"L_B_slowd{ps}")
        if ps == 0: slow_mid(b)
    slow_end(b, "B")

def main(out):
    ref = open(f"cdna_kernels/{NAME}.s.ref").read().splitlines()
    hdr = [l for l in ref if l.startswith(";") and "@launch" not in l]
    a = A(); slow = A(); slow.n = 100000
    gen_start(a)
    gen_prep(a)
    gen_pha(a, slow)
    gen_out(a, False)
    gen_phb(a, slow)
    gen_out(a, True)
    a(f"s_mov_b32 {sIT}, 1")
    a(f"s_mov_b32 s33, {KVA2-ITS:#x}")
    a(f"s_add_u32 s16, s16, {ITS:#x}")
    a("s_addc_u32 s17, s17, 0")
    a("s_branch L_it")
    a.lab("L_final")
    a(f"v_mul_u32_u24 v4, 1152, v{vT}")
    a(f"v_lshl_add_u32 v4, v{vH}, 4, v4")
    a(f"s_mul_i32 s24, s42, {32*1152}")
    a("s_lshl_b32 s25, s43, 6")
    a("s_add_u32 s24, s24, s25")
    for q in range(2):
        a(f"buffer_store_dwordx4 {vr(RES+4*q,4)}, v4, {AUX}, s24 offen offset:{32*q}")
    a.lab("L_fin2")
    if STAMPS:
        a("s_waitcnt vmcnt(0)")
        stamp(a, "end")
        a("v_lshlrev_b32 v4, 2, v0")
        a("s_lshl_b32 s22, s2, 11")
        a(f"s_add_u32 s22, s22, {DBG_OFF:#x}")
        a(f"buffer_store_dword v{vSTAMP}, v4, {WS}, s22 offen")
        open(out + ".stamps", "w").write("\n".join(STN))
        assert len(STN) <= 32
    a.lab("L_end")
    a("s_endpgm")
    K = NAME + "_kernel"
    txt = "\n".join(hdr) + "\n; @launch grid=(256,1,1) block=(512,1,1) lds=163840\n"
    txt += f'.amdgcn_target "amdgcn-amd-amdhsa--gfx950"\n.text\n.globl {K}\n.p2align 8\n.type {K},@function\n{K}:\n'
    txt += a.text() + slow.text()
    txt += f""".section .rodata,"a"
.p2align 6
.amdhsa_kernel {K}
  .amdhsa_next_free_vgpr 256
  .amdhsa_next_free_sgpr 102
  .amdhsa_accum_offset 256
  .amdhsa_group_segment_fixed_size 0
  .amdhsa_kernarg_size 88
  .amdhsa_user_sgpr_count 2
  .amdhsa_user_sgpr_kernarg_segment_ptr 1
  .amdhsa_system_sgpr_workgroup_id_x 1
  .amdhsa_float_denorm_mode_32 3
.end_amdhsa_kernel
"""
    open(out, "w").write(txt)

if __name__ == "__main__":
    if "stamps" in sys.argv: STAMPS = True
    if "nolocal" in sys.argv: NOLOCAL = True
    for x in sys.argv[2:]:
        if "=" in x:
            k, v = x.split("="); globals()[k] = int(v)
    main(sys.argv[1])
```

```python
import math, struct, sys

NAME = "interleave_layers__grouped_kv_mqa__sliding_block__prompt"
def f2u(x): return struct.unpack("<I", struct.pack("<f", x))[0]

FR = 1024
XT = 36 * FR
WCT = 36 * FR
KVA = 0x0
KVA2 = 0x28000
KVB = 0x60000
FL = 0x510000
ITS = 32
FKAL, FOA, FXB, FOB, FXA = FL, FL + 4, FL + 8, FL + 12, FL + 16
FKA, FKB = FL + 0x8000, FL + 0x10000
XS, OS, STS, KVL = 0x600000, 0x840000, 0xA80000, 0xAD0000
WA_OFF, WB_OFF, WOA_OFF, WOB_OFF, FPREP = 0xB00000, 0xC00000, 0xF00000, 0x1000000, 0x10C0000
DBG_OFF = 0x4000000
WS_SIZE = 0x10000000
OOB = 0x40000000
LOOB = 0x40000
GRP = 9472
KVA_SZ = 16 * GRP
BLK = 2 * GRP
VT = 1216
KVT = 2368
QSCALE = (18 ** -0.5) * math.log2(math.e)
NEGBIG = f2u(-1e30)
L_XA = 40960
L_WB = 40960
L_KVB = 118784
L_Q = 151552
L_MISC = 160768
L_FLAG = 162816
NPREP = 252
L_PREP = 114688
L_RAW = 135168
L_WBX = L_WB + 2 * WCT

STAMPS = False
FORCESLOW = 0
NOLOCAL = False
STN = []
ST = " sc1"
LD = " sc1"

class A:
    def __init__(self):
        self.l = []; self.n = 0; self.ns = 0; self.stn = []
    def __call__(self, s): self.l.append("    " + s)
    def lab(self, s): self.l.append(s + ":")
    def nl(self, p="L"):
        self.n += 1
        return f"{p}_{self.n}"
    def text(self): return "\n".join(self.l) + "\n"

def vr(a, n): return f"v[{a}:{a+n-1}]" if n > 1 else f"v{a}"

W = "s3"
WS, AUX, IT = "s[4:7]", "s[8:11]", "s[16:19]"
sX, sI, sNONCE, sIT, sLIM, sLOC = "s12", "s13", "s14", "s15", "s20", "s99"
vL16, vT, vH = 1, 2, 3
vNONCE, vSTAMP = 14, 15
RES = 16
R = 112
WEXT = 110
MASK = 64

def stamp(a, name, cyc=False):
    if not STAMPS: return
    if cyc: name = "c:" + name
    if name not in STN: STN.append(name)
    k = STN.index(name)
    a("s_memtime s[96:97]" if cyc else "s_memrealtime s[96:97]")
    a(f"s_mul_i32 s98, {sIT}, 32")
    a(f"s_add_u32 s98, s98, {k}")
    a("s_waitcnt lgkmcnt(0)")
    a(f"s_mov_b32 m0, s98")
    a(f"v_writelane_b32 v{vSTAMP}, s96, m0")

def set_exec(a, mask):
    lo, hi = mask & 0xffffffff, mask >> 32
    if mask <= 64:
        a(f"s_mov_b64 exec, {mask}")
    else:
        a(f"s_mov_b32 exec_lo, {lo:#x}" if lo != 0xffffffff else "s_mov_b32 exec_lo, -1")
        a(f"s_mov_b32 exec_hi, {hi:#x}")

def poll_issue(a, srd, soff, n, vtmp, voff):
    for q in range((n + 63) // 64):
        if q == 0:
            a(f"buffer_load_dword v{vtmp}, v{voff}, {srd}, {soff} offen sc1")
        else:
            a(f"s_add_u32 s61, {soff}, {8192*q}")
            a(f"buffer_load_dword v{vtmp+q}, v{voff}, {srd}, s61 offen sc1")

def poll_test(a, n, vtmp):
    a(f"v_cmp_ne_u32 vcc, {sNONCE}, v{vtmp}")
    for q in range(1, (n + 63) // 64):
        a(f"v_cmp_ne_u32 s[62:63], {sNONCE}, v{vtmp+q}")
        a("s_or_b64 vcc, vcc, s[62:63]")

def poll(a, srd, soff, n, vtmp=4, voff=5, setoff=True):
    l, d = a.nl("Lp"), a.nl("Lpd")
    if setoff: a(f"v_lshlrev_b32 v{voff}, 3, v{vL16}")
    if n < 64: set_exec(a, (1 << n) - 1)
    a("s_mov_b32 s21, 0")
    a.lab(l)
    poll_issue(a, srd, soff, n, vtmp, voff)
    a("s_add_u32 s21, s21, 1")
    a(f"s_cmp_gt_u32 s21, {sLIM}")
    a(f"s_cselect_b32 {sLIM}, 0, {sLIM}")
    a("s_waitcnt vmcnt(0)")
    a(f"s_cbranch_scc1 {d}")
    poll_test(a, n, vtmp)
    a(f"s_cbranch_vccnz {l}")
    a.lab(d)
    if n < 64: a("s_mov_b64 exec, -1")

def census_issue(a, v):
    a(f"v_lshlrev_b32 v{v+1}, 7, v{vT}")
    a(f"s_lshl_b32 s22, {sX}, 12")
    a(f"s_add_u32 s22, s22, {FL+20:#x}")
    a(f"buffer_load_dword v{v}, v{v+1}, {WS}, s22 offen sc1")

def census_eval(a, v, dst):
    a(f"v_cmp_ne_u32 vcc, s34, v{v}")
    a("s_cmp_eq_u64 vcc, 0")
    a(f"s_cselect_b32 {dst}, 1, 2")
    if NOLOCAL: a(f"s_mov_b32 {dst}, 2")

def lstore(a, insts):
    l, e = a.nl("Ls"), a.nl("Lse")
    a(f"s_cmp_eq_u32 {sLOC}, 1")
    a(f"s_cbranch_scc1 {l}")
    for i in insts: a(i + " sc1")
    a(f"s_branch {e}")
    a.lab(l)
    for i in insts: a(i)
    a.lab(e)

def setflag(a, srd, soff, local=False):
    a("s_mov_b64 exec, 1")
    if local: lstore(a, [f"buffer_store_dword v{vNONCE}, off, {srd}, {soff}"])
    else: a(f"buffer_store_dword v{vNONCE}, off, {srd}, {soff} sc1")
    a("s_mov_b64 exec, -1")

def dma(a, srd, sG, n, gstep, lstep, flags=LD, half_last=False):
    for r in range(n):
        if half_last and r == n - 1:
            a("s_mov_b32 exec_hi, 0")
        else:
            a("s_nop 0")
        a(f"buffer_load_dwordx4 v{vL16}, {srd}, {sG} offen{flags} lds")
        if half_last and r == n - 1:
            a("s_mov_b64 exec, -1")
        if r + 1 < n:
            a(f"s_add_u32 m0, m0, {lstep}")
            a(f"s_add_u32 {sG}, {sG}, {gstep}")

def r_loads(a, srd, sOff, k0, k1, flags=""):
    for ks in range(k0, k1):
        if ks == k0 or ks % 4 == 0:
            a(f"s_add_u32 s61, {sOff}, {(ks//4)*4096}")
        a(f"buffer_load_dwordx4 {vr(R+4*ks,4)}, v{vL16}, {srd}, s61 offen offset:{(ks%4)*1024}{flags}")

def cs_dot(a, ks):
    for d in range(4):
        a(f"v_dot2_f32_bf16 v{CS}, v{R+4*ks+d}, s60, v{CS}")

def cs_pack(a, dst):
    a("s_nop 2")
    a(f"v_cvt_pk_bf16_f32 v{dst}, v{CS}, v{CS}")
    a(f"v_lshlrev_b32 v{dst}, 16, v{dst}")
    a(f"v_sub_f32 v{CS}, v{CS}, v{dst}")
    a(f"v_cvt_pk_bf16_f32 v{dst}, v{dst}, v{CS}")

def store_x_and_stats(a, P, sT, sC, tmp, XO, SO, srd):
    a(f"s_mul_i32 s26, {sT}, {XT}")
    a(f"s_lshl_b32 s27, {sC}, 11")
    a("s_add_u32 s26, s26, s27")
    a(f"s_add_u32 s26, s26, {XO:#x}")
    lstore(a, [f"buffer_store_dwordx4 {vr(P,4)}, v{vL16}, {srd}, s26 offen",
               f"buffer_store_dwordx4 {vr(P+4,4)}, v{vL16}, {srd}, s26 offen offset:1024"])
    a(f"v_mov_b32 v{tmp}, 0")
    a(f"v_mov_b32 v{tmp+1}, 0")
    for i in range(8):
        a(f"v_dot2_f32_bf16 v{tmp}, v{P+i}, s60, v{tmp}")
        a(f"v_dot2_f32_bf16 v{tmp+1}, v{P+i}, v{P+i}, v{tmp+1}")
    a(f"v_lshrrev_b32 v{tmp+2}, 2, v{vL16}")
    a(f"s_mul_i32 s26, {sT}, {18*256}")
    a(f"s_lshl_b32 s27, {sC}, 8")
    a("s_add_u32 s26, s26, s27")
    a(f"s_add_u32 s26, s26, {SO:#x}")
    a(f"v_permlane32_swap_b32 v{tmp}, v{tmp+1}")
    a("s_nop 1")
    a(f"v_add_f32 v{tmp}, v{tmp}, v{tmp+1}")
    lstore(a, [f"buffer_store_dword v{tmp}, v{tmp+2}, {srd}, s26 offen"])

def stats_load(a, b, sT, SO):
    a(f"v_lshrrev_b32 v4, 2, v{vL16}")
    a(f"s_mul_i32 s40, {sT}, {18*256}")
    a(f"s_add_u32 s40, s40, {SO:#x}")
    for c in range(18):
        if c == 16: a("s_add_u32 s40, s40, 4096")
        a(f"buffer_load_dword v{b+c}, v4, {WS}, s40 offen offset:{(c%16)*256}{LD}")

def stats_sum(a, b):
    for i in range(9):
        a(f"v_add_f32 v{b+i}, v{b+i}, v{b+9+i}")
    for i, j in ((0, 1), (2, 3), (4, 5), (6, 7), (0, 2), (4, 6), (0, 4), (0, 8)):
        a(f"v_add_f32 v{b+i}, v{b+i}, v{b+j}")

def stats_compute(a, b, xext, rstd):
    a(f"v_mov_b32 v{b+1}, v{b}")
    a("s_nop 1")
    a(f"v_permlane32_swap_b32 v{b}, v{b+1}")
    a("s_nop 1")
    a(f"v_mul_f32 v{b}, {f2u(1.0/576):#x}, v{b}")
    a(f"v_mul_f32 v{b+1}, {f2u(1.0/576):#x}, v{b+1}")
    a(f"v_fma_f32 v{b+1}, -v{b}, v{b}, v{b+1}")
    a(f"v_max_f32 v{b+1}, 0, v{b+1}")
    a(f"v_cvt_pk_bf16_f32 v{xext}, -v{b}, -v{b}")
    a(f"v_mov_b32 v{xext+1}, 0")
    a(f"v_cvt_pk_bf16_f32 v{b+1}, v{b+1}, v{b+1}")
    a(f"v_lshlrev_b32 v{b+1}, 16, v{b+1}")
    a(f"v_add_f32 v{b+1}, {f2u(1e-5):#x}, v{b+1}")
    a(f"v_cvt_pk_bf16_f32 v{b+1}, v{b+1}, v{b+1}")
    a(f"v_lshlrev_b32 v{b+1}, 16, v{b+1}")
    a(f"v_sqrt_f32 v{b+1}, v{b+1}")
    a("s_nop 0")
    a(f"v_cvt_pk_bf16_f32 v{b+1}, v{b+1}, v{b+1}")
    a(f"v_lshlrev_b32 v{b+1}, 16, v{b+1}")
    a(f"v_rcp_f32 v{rstd}, v{b+1}")
    a("s_nop 0")

def rstd_bcast(a, rstd, dst):
    a(f"s_lshl_b32 s27, {W}, 8")
    a(f"s_add_u32 s27, s27, {L_MISC}")
    a(f"v_lshl_add_u32 v6, v{vT}, 2, s27")
    a(f"ds_write_b32 v6, v{rstd}")
    a(f"v_lshl_add_u32 v6, v{vH}, 4, s27")
    a("s_waitcnt lgkmcnt(0)")
    for q in range(4):
        a(f"ds_read_b128 {vr(dst+4*q,4)}, v6 offset:{32*q}")

ACC = 24
XB_ = 56
STR = 88
CS = 106
DEPTH = 8
XEXT = 8
RSTD = 12

def xaddr(a, dst, base):
    l, e = a.nl("Lxa"), a.nl("Lxe")
    a(f"s_cmp_eq_u32 {sIT}, 0")
    a(f"s_cbranch_scc1 {l}")
    a(f"v_add_u32 v{dst}, {base}, v{vL16}")
    for q in range(1, 4):
        a(f"v_add_u32 v{dst+q}, {1024*q}, v{dst}")
    a(f"s_branch {e}")
    a.lab(l)
    a(f"v_bfe_u32 v4, v{vT}, 1, 3")
    a(f"v_xor_b32 v4, v4, v{vH}")
    a(f"v_lshlrev_b32 v{dst+3}, 7, v{vT}")
    a(f"v_add_u32 v{dst+3}, {base}, v{dst+3}")
    for q in range(4):
        if q: a(f"v_xor_b32 v4, {(2*q) ^ (2*q-2)}, v4")
        a(f"v_lshl_add_u32 v{dst+q}, v4, 4, v{dst+3}")
    a.lab(e)

def gemm_stage(a, bases, k0, k1, swap, first_zero, cs=False, pre=None, quad=False, hooks={}):
    TT = len(bases)
    items = [(ks, t) for ks in range(k0, k1) for t in range(TT)]
    n = len(items); depth = DEPTH
    def rd(i):
        ks, t = items[i]
        if i in hooks: hooks[i]()
        if quad: a(f"ds_read_b128 {vr(XB_+4*(i%depth),4)}, v{bases[t]+(ks&3)} offset:{(ks>>2)*4096}")
        else: a(f"ds_read_b128 {vr(XB_+4*(i%depth),4)}, v{bases[t]} offset:{ks*1024}")
    if pre: pre()
    for i in range(depth - 1): rd(i)
    if cs: a(f"s_cmp_eq_u32 {sIT}, 1")
    for i in range(n):
        ks, t = items[i]
        if i + depth - 1 < n:
            rd(i + depth - 1); out = depth - 1
        else:
            out = n - 1 - i
        if cs and t == 0 and ks % 4 == 0:
            l = a.nl("Lcs")
            a(f"s_cbranch_scc1 {l}")
            if ks + 12 < 36: r_loads(a, WS, "s40", ks + 12, ks + 16)
            a(f"s_waitcnt vmcnt({min(36, ks + 16) - ks - 4})")
            for k in range(ks, ks + 4): cs_dot(a, k)
            if ks == 32: cs_pack(a, WEXT)
            a(f"s_cmp_eq_u32 {sIT}, 1")
            a.lab(l)
        a(f"s_waitcnt lgkmcnt({out})")
        acc = vr(ACC + 16 * t, 16); w = vr(R + 4 * ks, 4); x = vr(XB_ + 4 * (i % depth), 4)
        c = "0" if (first_zero and ks == 0) else acc
        a(f"v_mfma_f32_32x32x16_bf16 {acc}, {x}, {w}, {c}" if swap else f"v_mfma_f32_32x32x16_bf16 {acc}, {w}, {x}, {c}")

def pack(a, base, n=8, dst=None):
    dst = base if dst is None else dst
    for p in range(n):
        a(f"v_cvt_pk_bf16_f32 v{dst+p}, v{base+2*p}, v{base+2*p+1}")

def gen_start(a):
    a("s_cmp_ge_u32 s2, 256")
    a("s_cbranch_scc1 L_end")
    a("s_load_dwordx16 s[32:47], s[0:1], 0")
    a("s_load_dwordx4 s[48:51], s[0:1], 64")
    a("s_load_dwordx2 s[4:5], s[0:1], 80")
    a("s_memrealtime s[22:23]")
    a("v_lshrrev_b32 v4, 6, v0")
    a("v_and_b32 v5, 63, v0")
    a("v_readfirstlane_b32 s3, v4")
    a(f"v_lshlrev_b32 v{vL16}, 4, v5")
    a(f"v_and_b32 v{vT}, 31, v5")
    a(f"v_lshrrev_b32 v{vH}, 5, v5")
    a(f"s_mov_b32 s6, {WS_SIZE:#x}")
    a("s_mov_b32 s7, 0x20000")
    a("s_mov_b32 s11, 0x20000")
    a(f"s_mov_b32 s18, {WS_SIZE-2*ITS:#x}")
    a("s_mov_b32 s19, 0x20000")
    a(f"s_and_b32 {sX}, s2, 7")
    a(f"s_lshr_b32 {sI}, s2, 3")
    a(f"s_mov_b32 {sIT}, 0")
    a(f"s_mov_b32 {sLIM}, 200000")
    a(f"s_mov_b32 {sLOC}, 0")
    a(f"v_mov_b32 v{vSTAMP}, 0")
    a(f"v_mov_b32 v{WEXT+1}, 0")
    if CODEPF:
        a(f"s_cmp_lg_u32 {W}, 5")
        a("s_cbranch_scc1 L_nocodepf")
        a("s_getpc_b64 s[26:27]")
        a(f"s_lshl_b32 s24, {sI}, 11")
        a(f"s_cmp_ge_u32 s24, CODE_END - L_nocodepf - 2048")
        a("s_cbranch_scc1 L_nocodepf")
        a("s_add_u32 s26, s26, s24")
        a("s_addc_u32 s27, s27, 0")
        a(f"v_lshlrev_b32 v4, 1, v{vL16}")
        a("v_mov_b32 v5, s27")
        a("v_add_co_u32 v4, vcc, s26, v4")
        a("s_nop 1")
        a("v_addc_co_u32 v5, vcc, 0, v5, vcc")
        a("global_load_dword v100, v[4:5], off")
        a.lab("L_nocodepf")
    a(f"v_lshlrev_b32 v4, 2, v{vH}")
    a(f"v_sub_u32 v4, v{vT}, v4")
    for r in range(16):
        a(f"v_cmp_le_i32 s[{MASK+2*r}:{MASK+2*r+1}], {(r&3)+8*(r>>2)}, v4")
    a("s_waitcnt lgkmcnt(0)")
    a("s_mov_b32 s16, s4")
    a("s_mov_b32 s17, s5")
    a("s_mov_b32 s56, s50")
    a("s_mov_b32 s57, s51")
    a("s_mov_b32 s58, 256")
    a("s_mov_b32 s59, 0x20000")
    a("s_mov_b32 s52, s32")
    a("s_mov_b32 s53, s33")
    a(f"s_mov_b32 s54, {2048*1152}")
    a("s_mov_b32 s55, 0x20000")
    a("s_mov_b32 s60, 0x3f803f80")
    a(f"s_or_b32 s24, s2, {W}")
    a("s_cmp_lg_u32 s24, 0")
    a("s_cbranch_scc1 L_nononce")
    a("s_or_b32 s22, s22, 1")
    a("v_mov_b32 v4, s22")
    a("s_mov_b64 exec, 1")
    a("buffer_store_dword v4, off, s[56:59], 0 sc1")
    a("s_mov_b64 exec, -1")
    a.lab("L_nononce")

    stamp(a, "start")

X0 = "s[52:55]"
def gather(a, vaddr, rs, dst, tmp):
    for j in range(8):
        a(f"ds_read_u16 v{tmp+j}, v{vaddr} offset:{j*rs}")
def gpack(a, dst, tmp):
    for d in range(4):
        a(f"v_lshl_or_b32 v{dst+d}, v{tmp+2*d+1}, 16, v{tmp+2*d}")

def x0_dma(a):
    a("s_call_b64 s[30:31], L_x0")

def x0_sub(a):
    a.lab("L_x0")
    a(f"s_and_b32 s24, {sI}, 8")
    a("s_cmp_eq_u32 s24, 0")
    a("s_cbranch_scc1 L_x0b")
    a(f"s_cmp_lt_u32 {sI}, 16")
    a("s_cselect_b32 s24, s36, s38")
    a("s_cselect_b32 s25, s37, s39")
    a(f"s_mov_b32 s26, {576*36}")
    a("s_mov_b32 s27, 0x20000")
    a(f"s_lshl_b32 s21, {W}, 10")
    a(f"s_add_u32 m0, s21, {L_RAW}")
    dma(a, "s[24:27]", "s21", 3, 8192, 8192, flags="")
    a.lab("L_x0b")
    a(f"s_and_b32 s24, {sI}, 3")
    a("s_lshl_b32 s24, s24, 1")
    a(f"s_lshl_b32 s25, {sX}, 3")
    a("s_add_u32 s24, s24, s25")
    a(f"s_mul_i32 s24, s24, {XT}")
    a(f"s_mul_i32 s25, {W}, {8*1152}")
    a("s_add_u32 s24, s24, s25")
    a(f"s_lshr_b32 s25, {W}, 2")
    a(f"s_mul_i32 s25, s25, {XT}")
    a(f"s_and_b32 s26, {W}, 3")
    a("s_lshl_b32 s27, s26, 10")
    a("s_add_u32 s25, s25, s27")
    a(f"s_add_u32 m0, s25, {L_XA}")
    a("s_and_b32 s26, s26, 1")
    a("s_lshl_b32 s26, s26, 2")
    a(f"v_lshrrev_b32 v13, 7, v{vL16}")
    a("v_lshrrev_b32 v9, 1, v13")
    a("v_add_u32 v9, s26, v9")
    a(f"v_bfe_u32 v8, v{vL16}, 4, 3")
    a("v_xor_b32 v9, v8, v9")
    a("v_mul_u32_u24 v13, 1152, v13")
    a("v_lshl_add_u32 v13, v9, 4, v13")
    for kq in range(9):
        a(f"buffer_load_dwordx4 v13, {X0}, s24 offen lds")
        if kq < 8:
            a("s_add_u32 m0, m0, 4096")
            a("s_add_u32 s24, s24, 128")
    a("s_waitcnt vmcnt(9)")
    a("s_barrier")
    a("s_setpc_b64 s[30:31]")

def prep_flag(a):
    a("s_lshl_b32 s22, s2, 7")
    a(f"s_add_u32 s22, s22, {FPREP:#x}")
    setflag(a, WS, "s22")

def gen_prep(a):
    G0, P0 = 24, 64
    a(f"v_and_b32 v4, 0x13, v{vT}")
    a(f"v_and_b32 v5, 4, v{vT}")
    a("v_lshl_or_b32 v4, v5, 1, v4")
    a(f"v_and_b32 v5, 8, v{vT}")
    a("v_lshrrev_b32 v5, 1, v5")
    a("v_or_b32 v12, v4, v5")
    a("v_lshlrev_b32 v12, 1, v12")
    a(f"v_mov_b32 v11, {LOOB:#x}")
    a(f"s_mov_b32 s100, {OOB:#x}")
    a("s_mov_b32 s101, 0")
    a(f"s_cmp_ge_u32 s2, {NPREP}")
    a("s_cbranch_scc1 L_pn")
    a("s_cmp_ge_u32 s2, 180")
    a("s_cbranch_scc1 L_po")
    a("s_cmp_ge_u32 s2, 36")
    a("s_cbranch_scc1 L_pb")
    a("s_mov_b32 s8, s34")
    a("s_mov_b32 s9, s35")
    a(f"s_mov_b32 s10, {576*1152}")
    a(f"s_mul_i32 s22, s2, {16*1152}")
    a(f"s_lshl_b32 s23, {W}, 10")
    a("s_add_u32 s22, s22, s23")
    a(f"s_add_u32 m0, s23, {L_PREP}")
    dma(a, AUX, "s22", 2, 8192, 8192, flags="")
    a(f"s_cmp_ge_u32 {W}, 4")
    a("s_cbranch_scc1 L_pa1")
    a(f"s_cmp_ge_u32 {W}, 2")
    a("s_cbranch_scc1 L_pa0")
    a("s_add_u32 m0, m0, 8192")
    a("s_add_u32 s22, s22, 8192")
    dma(a, AUX, "s22", 1, 0, 0, flags="")
    a("s_branch L_pa1")
    a.lab("L_pa0")
    a(f"s_cmp_eq_u32 {W}, 2")
    a("s_cselect_b32 s8, s36, s38")
    a("s_cselect_b32 s9, s37, s39")
    a(f"s_mov_b32 s10, {576*36}")
    a("s_mul_i32 s22, s2, 576")
    a("s_add_u32 m0, m0, 8192")
    dma(a, AUX, "s22", 1, 0, 0, flags="")
    a.lab("L_pa1")
    x0_dma(a)
    a(f"v_mul_u32_u24 v10, {8*1152}, v{vH}")
    a(f"v_add_u32 v10, {L_PREP}, v10")
    for r in range(3):
        a(f"s_add_u32 s22, {W}, {8*r}")
        a("s_mul_i32 s23, s22, 86")
        a("s_lshr_b32 s23, s23, 8")
        a("s_mul_i32 s24, s23, 3")
        a("s_sub_u32 s24, s22, s24")
        a("s_mul_i32 s23, s23, 144")
        a("s_mul_i32 s25, s24, 72")
        a("s_cmp_eq_u32 s24, 2")
        a("s_cselect_b32 s25, 32, s25")
        a("s_cselect_b32 s26, 1, 4")
        a("s_cselect_b32 s27, 1, 15")
        a("s_cselect_b32 s28, 8, 32")
        a("s_add_u32 s23, s23, s25")
        a(f"v_lshrrev_b32 v4, s26, v{vT}")
        a("v_mul_u32_u24 v4, 36, v4")
        a(f"v_and_b32 v5, s27, v{vT}")
        a("v_lshl_add_u32 v4, v5, 1, v4")
        a("v_add3_u32 v4, v4, v10, s23")
        a(f"v_cmp_gt_u32 vcc, s28, v{vT}")
        a("s_nop 1")
        a("v_cndmask_b32 v4, v11, v4, vcc")
        gather(a, 4, 1152, P0 + 4 * r, G0 + 8 * r)
    a(f"v_lshlrev_b32 v4, 1, v{vT}")
    a(f"s_cmp_eq_u32 {W}, 1")
    a("s_cselect_b64 vcc, -1, 0")
    a(f"s_lshl_b32 s23, {W}, 10")
    a(f"s_add_u32 s23, s23, {L_PREP+18432}")
    a("v_cndmask_b32 v4, v4, v12, vcc")
    a(f"v_mul_u32_u24 v5, {8*36}, v{vH}")
    a("v_add3_u32 v4, v4, v5, s23")
    a(f"v_cmp_gt_u32 vcc, 18, v{vT}")
    a("s_nop 1")
    a("v_cndmask_b32 v4, v11, v4, vcc")
    a("s_waitcnt lgkmcnt(0)")
    gather(a, 4, 36, P0 + 12, G0 + 24)
    a(f"s_mul_i32 s22, {W}, {WCT}")
    a("s_lshl_b32 s23, s2, 10")
    a("s_add_u32 s22, s22, s23")
    a(f"s_add_u32 s22, s22, {WA_OFF:#x}")
    for r in range(3):
        gpack(a, P0 + 4 * r, G0 + 8 * r)
        a(f"buffer_store_dwordx4 {vr(P0+4*r,4)}, v{vL16}, {WS}, s22 offen sc1")
        a(f"s_add_u32 s22, s22, {8*WCT}")
    a(f"s_cmp_ge_u32 {W}, 2")
    a("s_cbranch_scc1 L_prep_done")
    a("s_waitcnt lgkmcnt(0)")
    gpack(a, P0 + 12, G0 + 24)
    a(f"buffer_store_dwordx4 {vr(P0+12,4)}, v{vL16}, {WS}, s22 offen sc1")
    a("s_branch L_prep_done")
    x0_sub(a)
    a.lab("L_pb")
    a("s_mov_b32 s8, s44")
    a("s_mov_b32 s9, s45")
    a(f"s_mov_b32 s10, {576*3456}")
    a("s_sub_u32 s28, s2, 36")
    a("s_and_b32 s29, s28, 3")
    a("s_lshr_b32 s28, s28, 2")
    a(f"s_mul_i32 s22, s28, {16*3456}")
    a("s_mul_i32 s23, s29, 288")
    a("s_add_u32 s22, s22, s23")
    a(f"s_lshl_b32 s23, {W}, 10")
    a(f"s_add_u32 m0, s23, {L_PREP}")
    for r in range(2):
        a(f"v_add_u32 v4, {512*r}, v0")
        a("v_mul_u32_u24 v5, 607, v4")
        a("v_lshrrev_b32 v5, 15, v5")
        a("v_mul_u32_u24 v6, 54, v5")
        a("v_sub_u32 v4, v4, v6")
        a("v_mul_u32_u24 v6, 57, v4")
        a("v_lshrrev_b32 v6, 10, v6")
        a(f"v_mul_u32_u24 v6, {1152-288}, v6")
        a("v_lshl_add_u32 v4, v4, 4, v6")
        a("v_mul_u32_u24 v5, 3456, v5")
        a("v_add_u32 v4, v4, v5")
        a(f"buffer_load_dwordx4 v4, {AUX}, s22 offen lds")
        if r == 0: a("s_add_u32 m0, m0, 8192")
    x0_dma(a)
    a(f"v_mul_u32_u24 v10, {8*864}, v{vH}")
    a(f"s_mul_i32 s23, {W}, 36")
    a(f"s_add_u32 s23, s23, {L_PREP}")
    a("v_add_u32 v10, s23, v10")
    a(f"v_lshrrev_b32 v4, 4, v{vT}")
    a("v_mul_u32_u24 v4, 288, v4")
    a(f"v_and_b32 v5, 15, v{vT}")
    a("v_lshl_add_u32 v4, v5, 1, v4")
    a("v_add_u32 v4, v4, v10")
    gather(a, 4, 864, P0, G0)
    a("v_add_u32 v4, 576, v12")
    a(f"v_cmp_gt_u32 vcc, 18, v{vT}")
    a(f"v_bfe_u32 v5, v{vT}, 1, 1")
    a("v_mul_u32_u24 v5, 288, v5")
    a("v_cndmask_b32 v4, v11, v4, vcc")
    a(f"v_and_b32 v6, 1, v{vT}")
    a("v_lshl_add_u32 v5, v6, 1, v5")
    a(f"v_lshrrev_b32 v6, 2, v{vT}")
    a("v_cmp_eq_u32 vcc, 6, v6")
    a("v_add_u32 v5, 32, v5")
    a("s_nop 0")
    a("v_cndmask_b32 v4, v4, v5, vcc")
    a("v_add_u32 v4, v4, v10")
    gather(a, 4, 864, P0 + 4, G0 + 8)
    a("s_lshl_b32 s22, s29, 3")
    a(f"s_add_u32 s22, s22, {W}")
    a(f"s_mul_i32 s22, s22, {2*WCT}")
    a("s_lshl_b32 s23, s28, 10")
    a("s_add_u32 s22, s22, s23")
    a(f"s_add_u32 s22, s22, {WB_OFF:#x}")
    a("s_mov_b32 s100, s22")
    a(f"s_mov_b32 s101, {WCT}")
    a("s_waitcnt lgkmcnt(0)")
    gpack(a, RES, G0)
    gpack(a, RES + 4, G0 + 8)
    a("s_branch L_prep_done")
    a.lab("L_po")
    a("s_cmp_ge_u32 s2, 216")
    a("s_cselect_b32 s8, s46, s40")
    a("s_cselect_b32 s9, s47, s41")
    a("s_cselect_b32 s28, 36, 0")
    a(f"s_cselect_b32 s29, {WOB_OFF>>20}, {WOA_OFF>>20}")
    a(f"s_mov_b32 s10, {576*1152}")
    a("s_sub_u32 s28, s2, s28")
    a("s_sub_u32 s28, s28, 180")
    a(f"s_mul_i32 s22, s28, {18*1152}")
    a("s_sub_u32 s23, s28, 32")
    a(f"s_mul_i32 s23, s23, {144*1152}")
    a(f"s_add_u32 s23, s23, {16*1152}")
    a("s_cmp_ge_u32 s28, 32")
    a("s_cselect_b32 s22, s23, s22")
    a(f"s_cselect_b32 s24, {18*1152-2304}, 0")
    a(f"s_lshl_b32 s23, {W}, 10")
    a(f"s_add_u32 m0, s23, {L_PREP}")
    for r in range(3):
        if r == 2:
            a(f"s_cmp_ge_u32 {W}, 2")
            a("s_cbranch_scc1 L_po1")
        a(f"v_add_u32 v4, {512*r}, v0")
        a("v_mul_u32_u24 v5, 1821, v4")
        a("v_lshrrev_b32 v5, 18, v5")
        a("v_mul_lo_u32 v5, v5, s24")
        a("v_lshl_add_u32 v4, v4, 4, v5")
        a(f"buffer_load_dwordx4 v4, {AUX}, s22 offen lds")
        if r < 2: a("s_add_u32 m0, m0, 8192")
    a.lab("L_po1")
    x0_dma(a)
    a(f"v_mul_u32_u24 v10, {8*1152}, v{vH}")
    a(f"s_lshl_b32 s23, {W}, 6")
    a(f"s_add_u32 s23, s23, {L_PREP}")
    a("v_add3_u32 v4, v10, v12, s23")
    for r in range(3):
        gather(a, 4, 1152, P0 + 4 * r, G0 + 8 * r)
        a("v_add_u32 v4, 512, v4")
        if r == 1: a("s_waitcnt lgkmcnt(0)")
    a("s_lshl_b32 s29, s29, 20")
    a(f"s_mul_i32 s22, {W}, {WCT}")
    a("s_lshl_b32 s23, s28, 10")
    a("s_add_u32 s22, s22, s23")
    a("s_add_u32 s22, s22, s29")
    a("s_mov_b32 s100, s22")
    a(f"s_mov_b32 s101, {8*WCT}")
    a("s_waitcnt lgkmcnt(0)")
    gpack(a, RES, G0)
    gpack(a, RES + 4, G0 + 8)
    gpack(a, R, G0 + 16)
    a("s_branch L_prep_done")
    a.lab("L_pn")
    x0_dma(a)
    a.lab("L_prep_done")
    a(f"s_and_b32 s24, {sI}, 8")
    a("s_cmp_eq_u32 s24, 0")
    a("s_cbranch_scc1 L_pd_nokv")
    a(f"v_lshlrev_b32 v4, 1, v{vT}")
    a(f"s_cmp_ge_u32 {sI}, 16")
    a("s_cselect_b64 vcc, -1, 0")
    a(f"s_mul_i32 s23, {W}, 576")
    a(f"s_add_u32 s23, s23, {L_RAW}")
    a("v_cndmask_b32 v4, v4, v12, vcc")
    a(f"v_mul_u32_u24 v5, {8*36}, v{vH}")
    a("v_add3_u32 v4, v4, v5, s23")
    a(f"v_cmp_gt_u32 vcc, 18, v{vT}")
    a(f"s_lshl_b32 s23, {W}, 10")
    a(f"v_add_u32 v5, s23, v{vL16}")
    a("v_cndmask_b32 v4, v11, v4, vcc")
    for r in range(5):
        for j in range(8):
            a(f"ds_read_u16 v{G0+8*r+j}, v4 offset:{r*8*576+j*36}")
        if r % 2 == 1: a("s_waitcnt lgkmcnt(0)")
    a("s_waitcnt lgkmcnt(0)")
    for r in range(5):
        gpack(a, G0 + 8 * r, G0 + 8 * r)
        a(f"ds_write_b128 v5, {vr(G0+8*r,4)} offset:{r*8192}")
    a.lab("L_pd_nokv")
    a("s_mov_b32 s8, s48")
    a("s_mov_b32 s9, s49")
    a(f"s_mov_b32 s10, {2048*1152}")
    a(f"v_mov_b32 v5, {L_FLAG}")
    a(f"s_cmp_lg_u32 {W}, 7")
    a("s_cbranch_scc1 L_pd_w")
    a("s_mov_b32 s21, 0")
    a.lab("L_pd_poll")
    a("buffer_load_dword v4, off, s[56:59], 0 sc1")
    a("s_add_u32 s21, s21, 1")
    a(f"s_cmp_gt_u32 s21, {sLIM}")
    a("s_waitcnt vmcnt(0)")
    a("s_cbranch_scc1 L_pd_got")
    a("v_cmp_eq_u32 vcc, 0, v4")
    a("s_cbranch_vccnz L_pd_poll")
    a.lab("L_pd_got")
    a("ds_write_b32 v5, v4")
    a("v_mov_b32 v4, 0")
    a("ds_write_b32 v5, v4 offset:4")
    a.lab("L_pd_w")
    a("s_waitcnt vmcnt(0) lgkmcnt(0)")
    a("s_barrier")
    a("s_mov_b32 s33, 0")
    a(f"ds_read_b32 v{vNONCE}, v5")
    a("s_waitcnt lgkmcnt(0)")
    a(f"v_readfirstlane_b32 {sNONCE}, v{vNONCE}")
    a("s_getreg_b32 s34, hwreg(HW_REG_XCC_ID)")
    a("s_lshl_b32 s34, s34, 1")
    a(f"s_add_u32 s34, s34, {sNONCE}")
    a(f"s_cmp_lg_u32 {W}, 1")
    a("s_cbranch_scc1 L_nocensus")
    a("v_mov_b32 v5, s34")
    a(f"v_lshlrev_b32 v4, 3, v{vL16}")
    a(f"s_lshl_b32 s22, {sX}, 12")
    a(f"s_lshl_b32 s23, {sI}, 7")
    a("s_add_u32 s22, s22, s23")
    a(f"s_add_u32 s22, s22, {FL+20:#x}")
    a("s_mov_b64 exec, 1")
    a(f"buffer_store_dword v5, off, {WS}, s22 sc1")
    a(f"s_mul_i32 s22, {sX}, {BLK}")
    a(f"s_mul_i32 s23, {sI}, 640")
    a("s_add_u32 s22, s22, s23")
    a(f"s_add_u32 s22, s22, {KVL:#x}")
    a("s_mov_b64 exec, 31")
    a(f"buffer_load_dword v100, v4, {WS}, s22 offen sc1")
    a("s_mov_b64 exec, -1")
    a.lab("L_nocensus")

    a(f"s_cmp_lg_u32 {W}, 3")
    a("s_cbranch_scc1 L_pd_noflag")
    a("s_cmp_ge_u32 s2, 36")
    a("s_cbranch_scc1 L_pd_noflag")
    prep_flag(a)
    a.lab("L_pd_noflag")
    stamp(a, "prep_done")

def wa_role(a, skip):
    a(f"s_cmp_lt_u32 {W}, 4")
    a(f"s_cbranch_scc1 {skip}")
    a(f"s_lshr_b32 s23, {sI}, 2")
    a("s_mul_i32 s22, s23, 3")
    a(f"s_add_u32 s22, s22, {W}")
    a("s_sub_u32 s22, s22, 5")
    a(f"s_cmp_lg_u32 {W}, 4")
    l = a.nl("Lwa")
    a(f"s_cbranch_scc1 {l}")
    a("s_and_b32 s24, s23, 2")
    a("s_cmp_eq_u32 s24, 0")
    a(f"s_cbranch_scc1 {skip}")
    a("s_lshr_b32 s22, s23, 2")
    a("s_add_u32 s22, s22, 24")
    a.lab(l)

def wa_issue(a):
    a(f"s_mul_i32 s22, s22, {WCT}")
    a(f"s_add_u32 s22, s22, {WA_OFF:#x}")
    r_loads(a, WS, "s22", 0, 36)

QM = 24
QE = 28
S_ = [36, 52]
OC = 68
KM = 84
KE = 88
VA, VB = 92, 96
vKa, vKe, vVa = 8, 9, 10

FAIR = 3
CODEPF = 1
LSTART = 0
BPF = 36
WEARLY = 12
def body(a, cur, rdKM=None, rdKE=None, rdVa=None, rdVb=None, u=0, qk=True, pv1=True, cinit=None, ke64=True, pvwait=2,
         extra=(), fair=None, ozero=False):
    s, n = S_[cur], S_[cur ^ 1]
    e = lambda r: a(f"v_exp_f32 v{s+r}, v{s+r}")
    c = lambda p: a(f"v_cvt_pk_bf16_f32 v{s+p+(4 if p >= 4 else 0)}, v{s+2*p}, v{s+2*p+1}")
    ad = lambda x, d: (f"v{x[0]} offset:{x[1]}" if isinstance(x, tuple) else f"v{d} offset:{x}")
    if fair is not None: a(f"s_setprio {fair[0]}")
    e(0); e(1)
    if pv1:
        a(f"s_waitcnt lgkmcnt({pvwait})")
        a(f"v_mfma_f32_32x32x16_bf16 {vr(OC,16)}, {vr(VB,4)}, {vr(n+8,4)}, {vr(OC,16)}")
    if rdVb is not None:
        a(f"ds_read_b128 {vr(VB,4)}, {ad(rdVb, vVa)}")
    if cinit is not None:
        cinit(n)
    e(2); e(3); e(4); c(0)
    if qk:
        a("s_waitcnt lgkmcnt(2)")
        a(f"v_mfma_f32_32x32x16_bf16 {vr(n,16)}, {vr(KM,4)}, {vr(QM,4)}, {vr(n,16) if cinit is not None else 0}")
    if rdKM is not None:
        a(f"ds_read_b128 {vr(KM,4)}, {ad(rdKM, vKa)}")
    e(5); e(6); e(7); c(1); c(2)
    if qk:
        a(f"v_mfma_f32_32x32x8_bf16 {vr(n,16)}, {vr(KE,2)}, {vr(QE+2*u,2)}, {vr(n,16)}")
    if rdKE is not None:
        a(f"ds_read_b64 {vr(KE,2)}, {ad(rdKE, vKe)}" if ke64 else f"ds_read_b32 v{KE}, {ad(rdKE, vKe)}")
    for x in extra: a(x)
    if fair is not None and fair[1] != fair[0]: a(f"s_setprio {fair[1]}")
    c(3); e(8); e(9); e(10); e(11); c(4)
    later = (rdVb is not None) + (rdKM is not None) + (rdKE is not None)
    a(f"s_waitcnt lgkmcnt({min(later, 2)})")
    a(f"v_mfma_f32_32x32x16_bf16 {vr(OC,16)}, {vr(VA,4)}, {vr(s,4)}, {0 if ozero else vr(OC,16)}")
    if rdVa is not None:
        a(f"ds_read_b128 {vr(VA,4)}, {ad(rdVa, vVa)}")
    e(12); e(13); e(14); e(15); c(5); c(6); c(7)

def tail_pv1(a, cur):
    a("s_waitcnt lgkmcnt(0)")
    a("s_nop 0")
    a(f"v_mfma_f32_32x32x16_bf16 {vr(OC,16)}, {vr(VB,4)}, {vr(S_[cur]+8,4)}, {vr(OC,16)}")

def v_addr(a, base):
    a(f"v_mul_u32_u24 v{vVa}, 304, v{vH}")
    a(f"v_min_u32 v4, 18, v{vT}")
    a(f"v_lshl_add_u32 v{vVa}, v4, 4, v{vVa}")
    a(f"v_add_u32 v{vVa}, {base}, v{vVa}")
    a(f"v_cmp_ge_u32 vcc, 18, v{vT}")
    a(f"v_cmp_eq_u32 s[62:63], 28, v{vT}")
    a("s_or_b64 vcc, vcc, s[62:63]")
    a(f"v_mov_b32 v4, {LOOB:#x}")
    a("s_nop 0")
    a(f"v_cndmask_b32 v{vVa}, v4, v{vVa}, vcc")

def attn_finish(a, tag, sT, sHead, OO):
    a("s_nop 12")
    a(f"v_cmp_eq_u32 vcc, 0, v{vH}")
    a("s_nop 1")
    a(f"v_cndmask_b32 v4, v{OC+12}, v{OC+10}, vcc")
    a(f"v_cmp_le_f32 vcc, {f2u(2.0**-60):#x}, v4")
    a(f"v_mov_b32 v5, {f2u(2.0**60):#x}")
    a("v_cmp_le_f32 s[62:63], v4, v5")
    a("s_and_b64 vcc, vcc, s[62:63]")
    a("s_cmp_eq_u64 vcc, -1")
    a(f"s_cbranch_scc0 L_{tag}_slow")
    if FORCESLOW: a(f"s_branch L_{tag}_slow")
    a.lab(f"L_{tag}_fin")
    a("v_rcp_f32 v4, v4")
    a("s_nop 0")
    for r in range(10):
        a(f"v_mul_f32 v{OC+r}, v4, v{OC+r}")
    pack(a, OC, 5)
    a(f"s_mul_i32 s24, {sT}, {XT}")
    a(f"s_add_u32 s24, s24, {OO:#x}")
    a(f"s_lshl_b32 s27, {sHead}, 10")
    a("s_add_u32 s27, s27, s24")
    a(f"s_lshr_b32 s25, {sHead}, 2")
    a("s_lshl_b32 s25, s25, 9")
    a(f"s_and_b32 s26, {sHead}, 3")
    a("s_lshl_b32 s26, s26, 2")
    a("s_add_u32 s25, s25, s26")
    a("s_add_u32 s25, s25, s24")
    a(f"s_add_u32 s25, s25, {32*1024}")
    a(f"v_lshlrev_b32 v4, 30, v{vH}")
    a(f"v_lshl_add_u32 v4, v{vT}, 4, v4")
    lstore(a, [f"buffer_store_dwordx4 {vr(OC,4)}, v{vL16}, {WS}, s27 offen",
               f"buffer_store_dword v{OC+4}, v4, {WS}, s25 offen"])

def mask_init(a, dst, diag):
    for r in range(16):
        m = f"s[{MASK+2*r}:{MASK+2*r+1}]"
        if diag: a(f"v_cndmask_b32 v{dst+r}, v11, 0, {m}")
        else:    a(f"v_cndmask_b32 v{dst+r}, 0, v11, {m}")

def slow_qk(a, u, cin):
    s = S_[0]
    a("s_waitcnt lgkmcnt(0)")
    a("s_nop 1")
    a(f"v_mfma_f32_32x32x16_bf16 {vr(s,16)}, {vr(KM,4)}, {vr(QM,4)}, {vr(s,16) if cin else 0}")
    a(f"v_mfma_f32_32x32x8_bf16 {vr(s,16)}, {vr(KE,2)}, {vr(QE+2*u,2)}, {vr(s,16)}")
    a("s_nop 12")

def slow_max(a):
    s = S_[0]
    for i in range(8):
        a(f"v_max3_f32 v7, v{s+2*i}, v{s+2*i+1}, v7")

def slow_pv(a):
    s = S_[0]
    for r in range(16):
        a(f"v_sub_f32 v{s+r}, v{s+r}, v7")
    for r in range(16):
        a(f"v_exp_f32 v{s+r}, v{s+r}")
    a("s_nop 0")
    pack(a, s, 8)
    a("s_nop 1")
    a(f"v_mfma_f32_32x32x16_bf16 {vr(OC,16)}, {vr(VA,4)}, {vr(s,4)}, {vr(OC,16)}")
    a(f"v_mfma_f32_32x32x16_bf16 {vr(OC,16)}, {vr(VB,4)}, {vr(s+4,4)}, {vr(OC,16)}")
    a("s_nop 7")

def slow_mid(a):
    a("v_mov_b32 v6, v7")
    a("s_nop 1")
    a("v_permlane32_swap_b32 v6, v7")
    a("s_nop 1")
    a("v_max_f32 v7, v6, v7")
    for r in range(16):
        a(f"v_mov_b32 v{OC+r}, 0")

def slow_end(a, tag):
    a("s_nop 12")
    a(f"v_cmp_eq_u32 vcc, 0, v{vH}")
    a("s_nop 1")
    a(f"v_cndmask_b32 v4, v{OC+12}, v{OC+10}, vcc")
    a(f"s_branch L_{tag}_fin")

def out_role(a):
    a(f"s_and_b32 s42, {sI}, 7")
    a(f"s_lshl_b32 s43, {sX}, 3")
    a("s_add_u32 s42, s42, s43")
    a(f"s_lshr_b32 s44, {sI}, 3")
    a("s_mul_i32 s43, s44, 9")
    a("s_add_u32 s43, s43, 1")
    a("s_lshr_b32 s43, s43, 1")
    a(f"s_add_u32 s43, s43, {W}")
    a("s_and_b32 s44, s44, 1")
    a("s_sub_u32 s44, 5, s44")

def gen_pha(a, slow):
    a.lab("L_it")
    stamp(a, "A_begin")
    a(f"s_and_b32 s45, {sI}, 3")
    a("s_lshl_b32 s45, s45, 1")
    a(f"s_lshl_b32 s46, {sX}, 3")
    a("s_add_u32 s45, s45, s46")
    a(f"s_lshr_b32 s46, {sI}, 2")
    a(f"s_cmp_ge_u32 {W}, 5")
    a("s_cbranch_scc1 L_A_q2")
    a(f"s_cmp_eq_u32 {W}, 4")
    a("s_cbranch_scc1 L_A_kv")
    a(f"s_cmp_ge_u32 {W}, 2")
    a("s_cbranch_scc1 L_A_st")
    a(f"s_add_u32 s22, s45, {W}")
    a(f"s_cmp_eq_u32 {sIT}, 0")
    a("s_cbranch_scc1 L_A_ld0")
    a("s_lshl_b32 s23, s22, 9")
    a(f"s_add_u32 s23, s23, {FXA:#x}")
    poll(a, IT, "s23", 4)
    stamp(a, "A_xflag")
    a(f"s_mul_i32 s22, s22, {XT}")
    a(f"s_add_u32 s22, s22, {XS:#x}")
    a(f"s_mul_i32 s23, {W}, {XT}")
    a(f"s_add_u32 m0, s23, {L_XA}")
    dma(a, WS, "s22", 36, 1024, 1024)
    a.lab("L_A_ld2")
    for n in (24, 12, 0):
        a(f"s_waitcnt vmcnt({n})")
        a("s_barrier")
        if n == 24: stamp(a, "A_bar1")
    a.lab("L_A_ld3")
    a(f"s_cmp_lg_u32 {W}, 0")
    a("s_cbranch_scc1 L_A_q")
    a(f"s_lshl_b32 s23, {sX}, 12")
    a(f"s_add_u32 s23, s23, {FKAL:#x}")
    poll(a, IT, "s23", 16)
    stamp(a, "A_kvflag")
    a(f"s_mul_i32 s22, {sX}, {BLK}")
    a(f"s_add_u32 s22, s22, {KVL:#x}")
    a("s_mov_b32 m0, 0")
    dma(a, WS, "s22", 19, 1024, 1024, half_last=True)
    a("s_waitcnt vmcnt(0)")
    a("s_branch L_A_q")
    a.lab("L_A_ld0")
    for n in range(3):
        a("s_barrier")
        if n == 0: stamp(a, "A_bar1")
    a("s_branch L_A_ld3")
    a.lab("L_A_idle")
    for n in range(3):
        a("s_barrier")
    a("s_branch L_A_q")
    a.lab("L_A_st")
    a(f"s_sub_u32 s24, {W}, 2")
    a(f"s_cmp_eq_u32 {sIT}, 0")
    a("s_cbranch_scc0 L_A_st1")
    a(f"s_mul_i32 s25, s24, {XT}")
    a(f"s_add_u32 s25, s25, {L_XA}")
    xaddr(a, 40, "s25")
    a(f"v_mov_b32 v{STR}, 0")
    a(f"v_mov_b32 v{STR+1}, 0")
    a("s_mov_b32 s25, 0")
    a.lab("L_A_st0")
    for k in range(12):
        a(f"ds_read_b128 {vr(R+4+4*k,4)}, v{40+(k&3)} offset:{(k>>2)*4096}")
    for k in range(12):
        a(f"s_waitcnt lgkmcnt({11-k})")
        for d in range(4):
            a(f"v_dot2_f32_bf16 v{STR}, v{R+4+4*k+d}, s60, v{STR}")
            a(f"v_dot2_f32_bf16 v{STR+1}, v{R+4+4*k+d}, v{R+4+4*k+d}, v{STR+1}")
    for q in range(4):
        a(f"v_add_u32 v{40+q}, {3*4096}, v{40+q}")
    a("s_add_u32 s25, s25, 1")
    a("s_cmp_lt_u32 s25, 3")
    a("s_cbranch_scc1 L_A_st0")
    a("s_barrier")
    a(f"v_permlane32_swap_b32 v{STR}, v{STR+1}")
    a("s_nop 1")
    a(f"v_add_f32 v{STR}, v{STR}, v{STR+1}")
    a("s_barrier")
    a("s_branch L_A_st2")
    a.lab("L_A_st1")
    a("s_add_u32 s25, s45, s24")
    a("s_barrier")
    stats_load(a, STR, "s25", STS)
    a("s_barrier")
    a("s_waitcnt vmcnt(0)")
    stats_sum(a, STR)
    a.lab("L_A_st2")
    stats_compute(a, STR, XEXT, RSTD)
    a("s_lshl_b32 s24, s24, 8")
    a(f"s_add_u32 s24, s24, {L_MISC}")
    a(f"v_lshl_add_u32 v4, v{vT}, 2, s24")
    a(f"ds_write_b32 v4, v{RSTD}")
    a(f"ds_write_b32 v4, v{XEXT} offset:128")
    a("s_waitcnt lgkmcnt(0)")
    a("s_barrier")
    a("s_branch L_A_q")
    def bar1():
        l = a.nl("Lb")
        a(f"s_cmp_eq_u32 {sIT}, 0")
        a(f"s_cbranch_scc1 {l}")
        a("s_barrier")
        a.lab(l)
    def gemm3(bases, swap, pre, staged):
        a(f"v_mov_b32 v{CS}, 0")
        a(f"v_mov_b32 v{XEXT+1}, 0")
        a(f"v_mov_b32 v{XEXT+3}, 0")
        if staged:
            def h2():
                bar1(); pre()
            gemm_stage(a, bases, 0, 36, swap, True, quad=True, hooks={0: bar1, 12: bar1, 20: (lambda: census_issue(a, 44)), 24: h2})
        else:
            for _ in range(3): bar1()
            gemm_stage(a, bases, 0, 36, swap, True, cs=True, pre=pre, quad=True)
    def first_w():
        l, e = a.nl("Lfw"), a.nl("Lfe")
        a(f"s_cmp_eq_u32 {sIT}, 0")
        a(f"s_cbranch_scc0 {l}")
        for _ in range(3): a("s_barrier")
        a(f"s_mov_b32 s23, {FPREP:#x}")
        poll(a, WS, "s23", 36, vtmp=4, voff=13)
        stamp(a, "A_wflag")
        wa_role(a, l)
        a(f"s_mul_i32 s40, s22, {WCT}")
        a(f"s_add_u32 s40, s40, {WA_OFF:#x}")
        r_loads(a, WS, "s40", 0, 12)
        a(f"s_branch {e}")
        a.lab(l)
        a("s_waitcnt vmcnt(0)")
        a.lab(e)
    a.lab("L_A_kv")
    a("s_and_b32 s24, s46, 2")
    a("s_cmp_eq_u32 s24, 0")
    a("s_cbranch_scc1 L_A_idle")
    a("s_and_b32 s24, s46, 1")
    a("s_add_u32 s47, s45, s24")
    a("s_lshl_b32 s27, s24, 8")
    a(f"s_add_u32 s27, s27, {L_MISC}")
    a(f"s_mul_i32 s24, s24, {XT}")
    a(f"s_add_u32 s24, s24, {L_XA}")
    xaddr(a, 40, "s24")
    a(f"v_lshl_add_u32 v6, v{vT}, 2, s27")
    a(f"v_lshl_add_u32 v5, v{vH}, 4, s27")
    a("s_lshr_b32 s28, s47, 2")
    a(f"s_mul_i32 s28, s28, {GRP}")
    a(f"s_add_u32 s28, s28, {KVA:#x}")
    a("s_and_b32 s29, s47, 3")
    a("s_setprio 3")
    a("s_waitcnt vmcnt(0)")
    a(f"s_cmp_eq_u32 {sIT}, 0")
    a("s_cbranch_scc0 L_A_kv1")
    a(f"v_mov_b32 v{CS}, 0")
    for k0 in range(0, 36, 12):
        for ks in range(k0, k0 + 12):
            a(f"ds_read_b128 {vr(R+4*ks,4)}, v{vL16} offset:{ks*1024}")
        for ks in range(k0, k0 + 12):
            a(f"s_waitcnt lgkmcnt({k0 + 11 - ks})")
            cs_dot(a, ks)
    cs_pack(a, WEXT)
    for _ in range(3): a("s_barrier")
    a.lab("L_A_kv1")
    a("s_cmp_ge_u32 s46, 4")
    a("s_cbranch_scc1 L_A_v")
    def pre_k():
        a(f"ds_read_b32 v{RSTD}, v6")
        a(f"ds_read_b32 v{XEXT}, v6 offset:128")
    gemm3([40], False, pre_k, True)
    a(f"v_mfma_f32_32x32x8_bf16 {vr(ACC,16)}, {vr(WEXT,2)}, {vr(XEXT,2)}, {vr(ACC,16)}")
    a("s_lshl_b32 s30, s29, 10")
    a("s_add_u32 s30, s30, s28")
    a(f"s_add_u32 s31, s30, {KVL-KVA:#x}")
    a("s_lshr_b32 s24, s29, 1")
    a("s_lshl_b32 s24, s24, 8")
    a("s_and_b32 s25, s29, 1")
    a("s_lshl_b32 s25, s25, 2")
    a("s_add_u32 s24, s24, s25")
    a("s_add_u32 s24, s24, s28")
    a("s_add_u32 s24, s24, 4096")
    a(f"s_add_u32 s25, s24, {KVL-KVA:#x}")
    a(f"v_lshlrev_b32 v4, 30, v{vH}")
    a(f"v_lshl_add_u32 v4, v{vT}, 3, v4")
    for r in range(10):
        a(f"v_mul_f32 v{ACC+r}, v{RSTD}, v{ACC+r}")
    pack(a, ACC, 5)
    a("s_waitcnt vmcnt(0)")
    census_eval(a, 44, sLOC)
    lstore(a, [f"buffer_store_dwordx4 {vr(ACC,4)}, v{vL16}, {WS}, s31 offen", f"buffer_store_dword v{ACC+4}, v4, {WS}, s25 offen"])
    a("s_add_u32 s30, s30, s33")
    a("s_add_u32 s24, s24, s33")
    a(f"buffer_store_dwordx4 {vr(ACC,4)}, v{vL16}, {IT}, s30 offen sc1")
    a(f"buffer_store_dword v{ACC+4}, v4, {IT}, s24 offen sc1")
    a("s_mov_b32 s26, 0")
    a("s_branch L_A_kvflag")
    a.lab("L_A_v")
    def pre_v():
        a(f"ds_read_b32 v{XEXT}, v6 offset:128")
        for q in range(4):
            a(f"ds_read_b128 {vr(STR+4*q,4)}, v5 offset:{32*q}")
    gemm3([40], True, pre_v, True)
    a(f"v_mfma_f32_32x32x8_bf16 {vr(ACC,16)}, {vr(XEXT,2)}, {vr(WEXT,2)}, {vr(ACC,16)}")
    a(f"s_mul_i32 s30, s29, {VT}")
    a("s_add_u32 s30, s30, s28")
    a("s_add_u32 s30, s30, 4608")
    a(f"s_add_u32 s31, s30, {KVL-KVA:#x}")
    a(f"v_mul_u32_u24 v4, 304, v{vH}")
    a(f"v_lshl_add_u32 v4, v{vT}, 4, v4")
    a(f"v_mov_b32 v5, {OOB:#x}")
    a(f"v_cmp_ge_u32 vcc, 18, v{vT}")
    a("s_nop 1")
    a("v_cndmask_b32 v4, v5, v4, vcc")
    a("s_nop 1")
    for r in range(16):
        a(f"v_mul_f32 v{ACC+r}, v{STR+r}, v{ACC+r}")
    pack(a, ACC, 8)
    a("s_mov_b32 s24, 0x40000")
    a("s_mov_b32 s25, 0x40000")
    a("s_mov_b64 exec, s[24:25]")
    for p in range(8):
        a(f"v_mov_b32 v{ACC+p}, s60")
    a("s_mov_b64 exec, -1")
    a("s_waitcnt vmcnt(0)")
    census_eval(a, 44, sLOC)
    lstore(a, [f"buffer_store_dwordx4 {vr(ACC,4)}, v4, {WS}, s31 offen", f"buffer_store_dwordx4 {vr(ACC+4,4)}, v4, {WS}, s31 offen offset:608"])
    a("s_add_u32 s30, s30, s33")
    for so in ("s30",):
        a(f"buffer_store_dwordx4 {vr(ACC,4)}, v4, {IT}, {so} offen sc1")
        a(f"buffer_store_dwordx4 {vr(ACC+4,4)}, v4, {IT}, {so} offen offset:608 sc1")
    a("s_mov_b32 s26, 128")
    a.lab("L_A_kvflag")
    stamp(a, "A_kvst")
    a("s_lshl_b32 s24, s47, 8")
    a("s_add_u32 s24, s24, s26")
    a(f"s_lshl_b32 s25, {sX}, 11")
    a("s_add_u32 s25, s25, s24")
    a(f"s_add_u32 s25, s25, {FKAL:#x}")
    a(f"s_add_u32 s24, s24, {FKA:#x}")
    a("s_waitcnt vmcnt(2)")
    stamp(a, "A_kvack")
    setflag(a, IT, "s25", local=True)
    a("s_waitcnt vmcnt(1)")
    setflag(a, IT, "s24")
    a("s_setprio 0")
    a("s_branch L_A_q")
    a.lab("L_A_q2")
    xaddr(a, 88, L_XA)
    for q in range(4):
        a(f"v_add_u32 v{92+q}, {XT}, v{88+q}")
    a(f"v_lshlrev_b32 v5, 2, v{vT}")
    a(f"v_add_u32 v5, {L_MISC}, v5")
    first_w()
    def pre_q():
        for t in range(2):
            a(f"ds_read_b32 v{RSTD+t}, v5 offset:{256*t}")
            a(f"ds_read_b32 v{XEXT+2*t}, v5 offset:{256*t+128}")
    gemm3([88, 92], False, pre_q, False)
    for t in range(2):
        a(f"v_mfma_f32_32x32x8_bf16 {vr(ACC+16*t,16)}, {vr(WEXT,2)}, {vr(XEXT+2*t,2)}, {vr(ACC+16*t,16)}")
    for t in range(2):
        a(f"v_mul_f32 v{RSTD+t}, {f2u(QSCALE):#x}, v{RSTD+t}")
    a(f"s_sub_u32 s24, {W}, 5")
    a(f"s_mul_i32 s24, s24, {4*1152}")
    a(f"s_add_u32 s24, s24, {L_Q}")
    a(f"v_add_u32 v4, s24, v{vL16}")
    a(f"v_mul_u32_u24 v5, {4*1152}, v{vH}")
    a(f"v_lshl_add_u32 v5, v{vT}, 2, v5")
    a(f"v_add_u32 v5, {L_Q+1024}, v5")
    a("s_nop 3")
    for t in range(2):
        for r in range(16):
            a(f"v_mul_f32 v{ACC+16*t+r}, v{RSTD+t}, v{ACC+16*t+r}")
        pack(a, ACC + 16 * t, 8)
    a(f"s_cmp_eq_u32 {W}, 7")
    a("s_cbranch_scc1 L_A_qext")
    for t in range(2):
        for hh in range(2):
            a(f"ds_write_b128 v4, {vr(ACC+16*t+4*hh,4)} offset:{(2*hh+t)*1152}")
    a("s_branch L_A_q")
    a.lab("L_A_qext")
    for t in range(2):
        for p in range(2):
            a(f"ds_write_b32 v5, v{ACC+16*t+p} offset:{(2*p+t)*1152}")
    a.lab("L_A_q")
    a("s_waitcnt vmcnt(0) lgkmcnt(0)")
    a("s_barrier")
    stamp(a, "A_attn0")
    a(f"v_lshlrev_b32 v11, 3, v{vL16}")
    a(f"s_add_u32 s47, {sX}, {W}")
    a("s_and_b32 s47, s47, 7")
    a("s_lshl_b32 s23, s47, 11")
    a(f"s_add_u32 s23, s23, {FKA:#x}")
    a(f"v_mov_b32 v12, v{vNONCE}")
    set_exec(a, 0xffff)
    poll_issue(a, IT, "s23", 16, 12, 11)
    a("s_mov_b64 exec, -1")
    a(f"s_mul_i32 s24, {W}, 1152")
    a(f"s_add_u32 s24, s24, {L_Q}")
    a(f"v_add_u32 v4, s24, v{vL16}")
    a(f"v_lshl_add_u32 v5, v{vT}, 2, s24")
    a(f"ds_read_b128 {vr(QM,4)}, v4")
    a(f"ds_read_b32 v6, v5 offset:1024")
    a(f"v_mov_b32 v{vKa}, v{vL16}")
    a(f"v_lshlrev_b32 v{vKe}, 8, v{vH}")
    a(f"v_lshl_add_u32 v{vKe}, v{vT}, 3, v{vKe}")
    a(f"ds_read_b128 {vr(KM,4)}, v{vKa}")
    a(f"ds_read_b64 {vr(KE,2)}, v{vKe} offset:4096")
    v_addr(a, 4608)
    a(f"v_cmp_eq_u32 vcc, 0, v{vH}")
    for r in (1, 2, 5, 6):
        a(f"v_mov_b32 v{QE+r}, 0")
    a("s_waitcnt lgkmcnt(0)")
    a(f"v_cndmask_b32 v{QE}, 0, v6, vcc")
    a(f"v_cndmask_b32 v{QE+3}, 0, v6, vcc")
    a(f"v_cndmask_b32 v{QE+4}, v6, 0, vcc")
    a(f"v_cndmask_b32 v{QE+7}, v6, 0, vcc")
    a(f"v_mfma_f32_32x32x16_bf16 {vr(S_[0],16)}, {vr(KM,4)}, {vr(QM,4)}, 0")
    a(f"v_mfma_f32_32x32x8_bf16 {vr(S_[0],16)}, {vr(KE,2)}, {vr(QE,2)}, {vr(S_[0],16)}")
    a(f"ds_read_b128 {vr(KM,4)}, v{vKa} offset:1024")
    a(f"ds_read_b128 {vr(VA,4)}, v{vVa}")
    a(f"s_and_b32 s22, {W}, 1")
    a("s_add_u32 s45, s45, s22")
    a("s_lshl_b32 s46, s46, 2")
    a(f"s_lshr_b32 s22, {W}, 1")
    a("s_add_u32 s46, s46, s22")
    out_role(a)
    a(f"s_lshl_b32 s41, {sI}, 1")
    a(f"s_add_u32 s41, s41, {W}")
    a("s_sub_u32 s41, s41, 5")
    a(f"s_mul_i32 s41, s41, {WCT}")
    a(f"s_add_u32 s41, s41, {WB_OFF:#x}")
    a(f"s_sub_u32 s22, {W}, 5")
    a("s_cmp_lt_u32 s22, 2")
    a(f"s_cselect_b32 s41, s41, {OOB:#x}")
    a(f"s_mul_i32 s22, s43, {XT}")
    a(f"s_add_u32 s22, s22, {WOA_OFF:#x}")
    a(f"s_cmp_lt_u32 {W}, s44")
    a("s_cselect_b32 s41, s22, s41")
    base = {vKa: 0, vKe: 0, vVa: 0}
    def off(reg, o):
        if o - base[reg] > 65535:
            d = 6 * GRP
            a(f"v_add_u32 v{reg}, {d}, v{reg}")
            base[reg] += d
        assert 0 <= o - base[reg] <= 65535
        return o - base[reg]
    def call_if(lo, hi, target):
        l = a.nl("Lc")
        if lo == hi:
            a(f"s_cmp_eq_u32 {W}, {lo}")
        else:
            a(f"s_sub_u32 s22, {W}, {lo}")
            a(f"s_cmp_le_u32 s22, {hi-lo}")
        a(f"s_cbranch_scc0 {l}")
        a(f"s_call_b64 s[30:31], {target}")
        a.lab(l)
    ko = lambda t: (t >> 2) * GRP + (t & 3) * 1024
    vo = lambda t: (t >> 2) * GRP + (t & 3) * VT
    for j in range(64):
        if j + 1 < 64: off(vVa, vo(j + 1))
        kw = dict(rdKM=off(vKa, ko(j + 2)) if j + 2 < 64 else None,
                  rdKE=off(vKe, ((j + 2) >> 2) * GRP + 4096) if (j + 2 < 64 and (j + 2) % 4 == 0) else None,
                  rdVa=off(vVa, vo(j + 1)) if j + 1 < 64 else None, rdVb=off(vVa, vo(j) + 608))
        ex = []
        if 38 <= j < 56:
            for ks in (2 * (j - 38), 2 * (j - 38) + 1):
                if ks % 4 == 0: ex.append(f"s_add_u32 s61, s41, {(ks//4)*4096}")
                ex.append(f"buffer_load_dwordx4 {vr(R+4*ks,4)}, v{vL16}, {WS}, s61 offen offset:{(ks%4)*1024}")
        body(a, j & 1, u=(j + 1) & 3, qk=(j < 63), pv1=(j > 0), pvwait=(1 if j == 63 else 2), extra=ex, ozero=(j == 0),
             fair=[None, (1, 0), (3 - (j & 3),) * 2, (3 - 2 * (j & 1), 2 - 2 * (j & 1)), (3 - ((j >> 1) & 3),) * 2][FAIR], **kw)
        if j == 0: call_if(7, 7, "L_A_touch0")
        if j == 1: call_if(1, 2, "L_A_fetch")
        if j == 5:
            a("s_waitcnt vmcnt(0)")
            a("s_barrier")
            stamp(a, "A_n2b")
            call_if(3, 4, "L_A_fetch")
            call_if(0, 2, "L_defer")
        if j == 9: call_if(5, 6, "L_A_fetch")
        if j == 13: call_if(7, 7, "L_A_fetch")
        if j == 21:
            a("s_waitcnt vmcnt(0)")
            a("s_barrier")
            stamp(a, "A_n4b")
            stamp(a, "A_n4b", True)
            call_if(1, 1, "L_A_pflag")
        if j == 22: call_if(0, 3, "L_A_touch")
        if j == 26: call_if(4, 6, "L_A_touch")
        if j == 34: call_if(7, 7, "L_A_touch")
        if j == 27: call_if(7, 7, "L_A_check0")
        if j == 32: call_if(7, 7, "L_A_check")
        if j == 37:
            l = a.nl("Lc")
            a(f"s_cmp_eq_u32 {sIT}, 0")
            a(f"s_cbranch_scc0 {l}")
            a(f"s_mov_b32 s50, {L_FLAG+4}")
            a("s_mov_b32 s51, 1")
            a("s_call_b64 s[30:31], L_B_wait")
            a(f"v_readfirstlane_b32 {sLOC}, v6")
            a.lab(l)
    tail_pv1(a, 1)
    a("s_setprio 0")
    stamp(a, "A_attn1")
    stamp(a, "A_attn1", True)
    attn_finish(a, "A", "s45", "s46", OS)
    a("s_waitcnt vmcnt(0)")
    a("s_barrier")
    a(f"s_cmp_lg_u32 {W}, 0")
    a("s_cbranch_scc1 L_A_end")
    a("s_lshr_b32 s22, s45, 1")
    a("s_lshl_b32 s22, s22, 10")
    a("s_lshl_b32 s23, s46, 5")
    a("s_add_u32 s22, s22, s23")
    a(f"s_add_u32 s22, s22, {FOA:#x}")
    setflag(a, IT, "s22", local=True)
    a.lab("L_A_end")
    stamp(a, "A_end")
    b = slow
    RET = "s_setpc_b64 s[30:31]"
    b.lab("L_defer")
    b(f"s_cmp_eq_u32 {sIT}, 0")
    b("s_cbranch_scc0 L_ret")
    b(f"buffer_store_dwordx4 {vr(RES,4)}, v{vL16}, {WS}, s100 offen sc1")
    b("s_add_u32 s100, s100, s101")
    b(f"buffer_store_dwordx4 {vr(RES+4,4)}, v{vL16}, {WS}, s100 offen sc1")
    b("s_cmp_lt_u32 s2, 180")
    b("s_cbranch_scc1 L_ret")
    b(f"s_cmp_ge_u32 {W}, 2")
    b("s_cbranch_scc1 L_ret")
    b("s_add_u32 s100, s100, s101")
    b(f"buffer_store_dwordx4 {vr(R,4)}, v{vL16}, {WS}, s100 offen sc1")
    b.lab("L_ret")
    b(RET)
    b.lab("L_A_pflag")
    b(f"s_cmp_eq_u32 {sIT}, 0")
    b("s_cbranch_scc0 L_ret")
    b("s_cmp_lt_u32 s2, 36")
    b("s_cbranch_scc1 L_ret")
    prep_flag(b)
    b(RET)
    b.lab("L_A_fetch")
    b("s_waitcnt vmcnt(0)")
    poll_test(b, 16, 12)
    b("s_cbranch_vccz L_A_fetch2")
    b("s_lshl_b32 s23, s47, 11")
    b(f"s_add_u32 s23, s23, {FKA:#x}")
    poll(b, IT, "s23", 16, vtmp=4, voff=11, setoff=False)
    b.lab("L_A_fetch2")
    b(f"s_mul_i32 s22, s47, {BLK}")
    b("s_add_u32 s22, s22, s33")
    b(f"s_mul_i32 m0, {W}, {BLK}")
    dma(b, IT, "s22", 19, 1024, 1024, half_last=True)
    b(f"s_cmp_ge_u32 {W}, 3")
    b("s_cbranch_scc1 L_defer")
    b(RET)
    b.lab("L_A_check0")
    b(f"s_cmp_eq_u32 {sIT}, 0")
    b("s_cbranch_scc0 L_ret")
    b(f"s_mov_b32 s22, {FPREP:#x}")
    poll_issue(b, WS, "s22", 256, 104, 11)
    census_issue(b, 108)
    b(RET)
    b.lab("L_A_check")
    b(f"s_cmp_eq_u32 {sIT}, 0")
    b("s_cbranch_scc0 L_ret")
    b("s_waitcnt vmcnt(0)")
    poll_test(b, 256, 104)
    b("s_cbranch_vccz L_A_check2")
    b(f"s_mov_b32 s22, {FPREP:#x}")
    poll(b, WS, "s22", 256, vtmp=4, voff=11, setoff=False)
    b.lab("L_A_check2")
    census_eval(b, 108, "s22")
    b("v_mov_b32 v4, s22")
    b(f"v_mov_b32 v5, {L_FLAG}")
    b("ds_write_b32 v5, v4 offset:4")
    b("s_waitcnt lgkmcnt(0)")
    b(RET)
    b.lab("L_A_touch0")
    b(f"s_cmp_eq_u32 {sIT}, 0")
    b("s_cbranch_scc0 L_ret")
    b(f"s_mov_b32 s22, {FPREP:#x}")
    poll_issue(b, WS, "s22", 256, 100, 11)
    b(RET)
    b.lab("L_A_touch")
    b(f"s_cmp_eq_u32 {sIT}, 0")
    b("s_cbranch_scc0 L_ret")
    b(f"s_mul_i32 s22, s42, {XT}")
    b("s_lshl_b32 s23, s43, 6")
    b("s_add_u32 s22, s22, s23")
    b(f"v_mul_u32_u24 v5, 1152, v{vT}")
    b(f"v_lshl_add_u32 v5, v{vH}, 4, v5")
    b(f"buffer_load_dwordx4 {vr(RES,4)}, v5, {X0}, s22 offen")
    b(f"buffer_load_dwordx4 {vr(RES+4,4)}, v5, {X0}, s22 offen offset:32")
    b(f"s_lshl_b32 s22, {sI}, 6")
    b(f"s_lshl_b32 s23, {sX}, 3")
    b("s_add_u32 s22, s22, s23")
    b(f"s_add_u32 s22, s22, {W}")
    b("s_lshl_b32 s23, s22, 7")
    b(f"s_add_u32 s23, s23, {FKB:#x}")
    b(f"s_mul_i32 s22, s22, {KVT}")
    b(f"s_add_u32 s22, s22, {KVB:#x}")
    set_exec(b, (1 << 20) - 1)
    b(f"buffer_load_dword v100, v11, {IT}, s22 offen sc1")
    b("s_mov_b64 exec, 1")
    b(f"buffer_load_dword v100, off, {IT}, s23 sc1")
    b("s_mov_b64 exec, -1")
    b(f"s_mul_i32 s22, s45, {XT}")
    b(f"s_add_u32 s22, s22, {OS:#x}")
    b("s_lshl_b32 s23, s46, 10")
    b("s_add_u32 s23, s23, s22")
    b(f"buffer_load_dwordx4 v[100:103], v{vL16}, {WS}, s23 offen sc1")
    b("s_lshr_b32 s23, s46, 3")
    b("s_lshl_b32 s23, s23, 10")
    b("s_add_u32 s23, s23, s22")
    b(f"s_add_u32 s23, s23, {32*1024}")
    b(f"buffer_load_dwordx4 v[100:103], v{vL16}, {WS}, s23 offen sc1")
    b(f"s_cmp_ge_u32 {W}, s44")
    b("s_cbranch_scc1 L_ret")
    b(f"s_mul_i32 s22, s42, {XT}")
    b("s_lshl_b32 s23, s43, 11")
    b("s_add_u32 s22, s22, s23")
    b(f"s_add_u32 s22, s22, {XS:#x}")
    b(f"buffer_load_dwordx4 v[100:103], v{vL16}, {WS}, s22 offen sc1")
    b(f"buffer_load_dwordx4 v[100:103], v{vL16}, {WS}, s22 offen offset:1024 sc1")
    b(f"s_mul_i32 s22, s42, {18*256}")
    b("s_lshl_b32 s23, s43, 8")
    b("s_add_u32 s22, s22, s23")
    b(f"s_add_u32 s22, s22, {STS:#x}")
    b(f"v_lshrrev_b32 v4, 2, v{vL16}")
    b(f"buffer_load_dword v100, v4, {WS}, s22 offen sc1")
    b(RET)
    b.lab("L_A_slow")
    for ps in range(2):
        b(f"v_mov_b32 v{vKa}, v{vL16}")
        b(f"v_lshlrev_b32 v{vKe}, 8, v{vH}")
        b(f"v_lshl_add_u32 v{vKe}, v{vT}, 3, v{vKe}")
        if ps == 0:
            b(f"v_mov_b32 v7, {f2u(float('-inf')):#x}")
        else:
            v_addr(b, 4608)
        b("s_mov_b32 s41, 0")
        b.lab(f"L_A_slow{ps}")
        b(f"ds_read_b64 {vr(KE,2)}, v{vKe} offset:4096")
        for u in range(4):
            b(f"ds_read_b128 {vr(KM,4)}, v{vKa} offset:{u*1024}")
            if ps:
                b(f"ds_read_b128 {vr(VA,4)}, v{vVa} offset:{u*VT}")
                b(f"ds_read_b128 {vr(VB,4)}, v{vVa} offset:{u*VT+608}")
            slow_qk(b, u, False)
            if ps: slow_pv(b)
            else: slow_max(b)
        b(f"v_add_u32 v{vKa}, {GRP}, v{vKa}")
        b(f"v_add_u32 v{vKe}, {GRP}, v{vKe}")
        b(f"v_add_u32 v{vVa}, {GRP}, v{vVa}")
        b("s_add_u32 s41, s41, 1")
        b("s_cmp_lt_u32 s41, 16")
        b(f"s_cbranch_scc1 L_A_slow{ps}")
        if ps == 0: slow_mid(b)
    slow_end(b, "A")

def gen_out(a, isB):
    tag = "OB" if isB else "OA"
    OO = OS
    a(f"s_cmp_lt_u32 {W}, s44")
    a(f"s_cbranch_scc1 L_{tag}_c")
    a(f"s_cmp_eq_u32 {W}, 7")
    a(f"s_cbranch_scc1 L_{tag}_ld")
    if not isB:
        a(f"s_cmp_eq_u32 {W}, 4")
        a(f"s_cbranch_scc1 L_{tag}_idle")
        a(f"s_sub_u32 s22, {W}, 5")
        a(f"s_mul_i32 s23, s22, {WCT}")
        a(f"s_add_u32 s23, s23, {L_WB}")
        a(f"v_add_u32 v4, s23, v{vL16}")
        a(f"v_mov_b32 v{CS}, 0")
        for ks in range(36):
            a(f"ds_write_b128 v4, {vr(R+4*ks,4)} offset:{ks*1024}")
        for _ in range(3): a("s_barrier")
        a(f"s_cmp_eq_u32 {sIT}, 0")
        a("s_cbranch_scc0 L_OA_cs")
        for ks in range(36):
            cs_dot(a, ks)
        cs_pack(a, RES)
        a.lab("L_OA_cs")
        a("s_lshl_b32 s22, s22, 8")
        a(f"s_add_u32 s22, s22, {L_WBX}")
        a(f"v_lshrrev_b32 v4, 2, v{vL16}")
        a("v_add_u32 v4, s22, v4")
        a(f"ds_write_b32 v4, v{RES}")
        a(f"v_mov_b32 v4, {L_FLAG+16}")
        for r in range(4): a(f"v_mov_b32 v{8+r}, 0")
        a("ds_write_b128 v4, v[8:11]")
        a("ds_write_b128 v4, v[8:11] offset:16")
        a("s_waitcnt lgkmcnt(0)")
        a(f"s_branch L_{tag}_e")
    else:
        a(f"s_cmp_eq_u32 {sIT}, 0")
        a(f"s_cbranch_scc0 L_{tag}_idle")
        wa_role(a, f"L_{tag}_idle")
        wa_issue(a)
    a.lab(f"L_{tag}_idle")
    for n in range(3):
        a("s_barrier")
    a(f"s_branch L_{tag}_e")
    a.lab(f"L_{tag}_ld")
    if not isB:
        a("s_lshr_b32 s23, s42, 1")
        a("s_lshl_b32 s23, s23, 10")
        a(f"s_add_u32 s23, s23, {FOA:#x}")
        poll(a, IT, "s23", 8)
    else:
        a(f"s_lshl_b32 s23, {sX}, 12")
        a(f"s_add_u32 s23, s23, {FOB:#x}")
        poll(a, IT, "s23", 32)
    stamp(a, tag + "_flag")
    a(f"s_mul_i32 s22, s42, {XT}")
    a(f"s_add_u32 s22, s22, {OO:#x}")
    a("s_mov_b32 m0, 0")
    dma(a, WS, "s22", 36, 1024, 1024)
    for n in (24, 12, 0):
        a(f"s_waitcnt vmcnt({n})")
        a("s_barrier")
    stamp(a, tag + "_x")
    if isB:
        a(f"s_cmp_eq_u32 {sIT}, 0")
        a(f"s_cbranch_scc0 L_{tag}_e")
        wa_role(a, f"L_{tag}_e")
        wa_issue(a)
    a(f"s_branch L_{tag}_e")
    a.lab(f"L_{tag}_c")
    a("s_waitcnt vmcnt(0)")
    for p in range(8):
        a(f"v_lshlrev_b32 v{ACC+2*p}, 16, v{RES+p}")
        a(f"v_and_b32 v{ACC+2*p+1}, 0xffff0000, v{RES+p}")
    hb = lambda: a("s_barrier")
    gemm_stage(a, [vL16], 0, 36, False, False, hooks={0: hb, 12: hb, 24: hb})
    a("s_nop 12")
    pack(a, ACC, 8, RES)
    if isB:
        a(f"s_cmp_eq_u32 {sIT}, 1")
        a("s_cbranch_scc1 L_final")
        store_x_and_stats(a, RES, "s42", "s43", 4, XS, STS, WS)
    else:
        store_x_and_stats(a, RES, "s42", "s43", 4, XS, STS, WS)
    a("s_waitcnt vmcnt(0)")
    a.lab(f"L_{tag}_e")
    if isB:
        a(f"s_cmp_eq_u32 {sIT}, 1")
        a("s_cbranch_scc1 L_fin2")
    a("s_barrier")
    a(f"s_cmp_lg_u32 {W}, 0")
    a(f"s_cbranch_scc1 L_{tag}_nf")
    a("s_lshl_b32 s22, s42, 9")
    a(f"s_lshr_b32 s23, {sI}, 3")
    a("s_lshl_b32 s23, s23, 7")
    a("s_add_u32 s22, s22, s23")
    a(f"s_add_u32 s22, s22, {(ITS + FXA) if isB else FXB:#x}")
    setflag(a, IT, "s22", local=True)
    a.lab(f"L_{tag}_nf")
    stamp(a, tag + "_end")

def gen_phb(a, slow):
    a(f"s_add_u32 s48, {W}, 4")
    a(f"s_sub_u32 s22, 7, {W}")
    a(f"s_cmp_lt_u32 {W}, 4")
    a("s_cselect_b32 s48, s48, s22")
    a(f"s_lshl_b32 s45, {sX}, 3")
    a("s_add_u32 s45, s45, s48")
    a(f"s_mov_b32 s46, {sI}")
    a("s_setprio 1")
    a(f"s_cmp_lt_u32 {W}, 4")
    a("s_cbranch_scc0 L_B_pr")
    a("s_setprio 2")
    a.lab("L_B_pr")
    BX = 104
    MK = 72
    aVG, aVL, aEX, aFAC = 4, 5, 11, 13
    a("s_add_u32 s28, s48, 8")
    a(f"s_mul_i32 s28, s28, {KVT}")
    a(f"s_add_u32 s28, s28, {L_KVB}")
    a("s_lshl_b32 s49, s46, 6")
    a("s_add_u32 s49, s49, s45")
    a(f"s_mul_i32 s29, s49, {KVT}")
    a(f"s_add_u32 s29, s29, {KVB:#x}")
    a("s_lshl_b32 s49, s49, 7")
    a(f"s_add_u32 s49, s49, {FKB:#x}")
    a(f"s_lshl_b32 s27, {W}, 8")
    a(f"s_add_u32 s27, s27, {L_MISC}")
    a("s_add_u32 s47, s48, 1")
    a(f"s_cmp_eq_u32 {sX}, 0")
    a("s_cselect_b32 s47, s47, 9")
    a(f"s_mul_i32 s41, s43, {XT}")
    a(f"s_add_u32 s41, s41, {WOB_OFF:#x}")
    a(f"s_cmp_lt_u32 {W}, s44")
    a(f"s_cselect_b32 s41, s41, {OOB:#x}")
    a(f"v_lshrrev_b32 v5, 2, v{vL16}")
    a(f"v_add_u32 v4, {L_WBX}, v5")
    a(f"ds_read_b32 v106, v4")
    a(f"ds_read_b32 v108, v4 offset:256")
    a("v_mov_b32 v107, 0")
    a("v_mov_b32 v109, 0")
    a(f"s_sub_u32 s24, s28, {8*KVT}")
    a(f"v_add_u32 v{vKa}, s24, v{vL16}")
    a(f"v_lshl_add_u32 v{vKe}, v{vT}, 2, s24")
    a("s_add_u32 s24, s24, 1152")
    v_addr(a, "s24")
    a(f"v_mov_b32 v11, {NEGBIG:#x}")
    mask_init(a, MK, True)
    a("s_lshl_b32 s23, s45, 9")
    a(f"s_add_u32 s23, s23, {FXB:#x}")
    poll(a, IT, "s23", 4)
    stamp(a, "B_xflag")
    a(f"s_and_b32 s24, {W}, 3")
    a("s_lshl_b32 s24, s24, 2")
    a(f"s_add_u32 s50, s24, {L_FLAG+32}")
    a(f"s_cmp_lt_u32 {W}, 4")
    a("s_cbranch_scc1 L_B_x")
    a("s_mov_b32 s51, 1")
    a("s_call_b64 s[30:31], L_B_wait")
    a.lab("L_B_x")
    stats_load(a, STR, "s45", STS)
    a(f"s_mul_i32 s22, s45, {XT}")
    a(f"s_add_u32 s22, s22, {XS:#x}")
    PF = BPF
    r_loads(a, WS, "s22", 0, PF, LD)
    a(f"v_add_u32 v6, {L_WB}, v{vL16}")
    a(f"v_add_u32 v7, {L_WB+WCT}, v{vL16}")
    a("s_waitcnt lgkmcnt(0)")
    items = [(ks, t) for ks in range(36) for t in range(2)]
    n = len(items); depth = 4
    def rd(i):
        ks, t = items[i]
        a(f"ds_read_b128 {vr(XB_+4*(i%depth),4)}, v{6+t} offset:{ks*1024}")
    for i in range(depth - 1): rd(i)
    for i in range(n):
        ks, t = items[i]
        if i == 0:
            main_a = a; a = A()
            stats_sum(a, STR)
            stats_compute(a, STR, BX, RSTD)
            a("s_waitcnt lgkmcnt(0)")
            a(f"v_lshl_add_u32 v4, v{vT}, 2, s27")
            a(f"ds_write_b32 v4, v{RSTD}")
            a(f"v_lshl_add_u32 v4, v{vH}, 4, s27")
            a("s_waitcnt lgkmcnt(0)")
            for q in range(4):
                a(f"ds_read_b128 {vr(STR+4*q,4)}, v4 offset:{32*q}")
            a(f"v_mul_u32_u24 v{aVG}, 304, v{vH}")
            a(f"v_lshl_add_u32 v{aVG}, v{vT}, 4, v{aVG}")
            a(f"v_add_u32 v{aVL}, s28, v{aVG}")
            a(f"v_cmp_ge_u32 vcc, 18, v{vT}")
            a(f"v_mov_b32 v{aEX}, {OOB:#x}")
            a(f"v_lshrrev_b32 v{aFAC}, 1, v{vT}")
            a(f"v_cndmask_b32 v{aVG}, v{aEX}, v{aVG}, vcc")
            a(f"v_mov_b32 v{aEX}, {LOOB:#x}")
            a(f"v_cndmask_b32 v{aVL}, v{aEX}, v{aVL}, vcc")
            a(f"v_cmp_eq_u32 vcc, 12, v{aFAC}")
            a(f"v_cmp_eq_u32 s[62:63], 13, v{aFAC}")
            a("s_add_u32 s24, s27, 128")
            a("s_add_u32 s25, s28, 1024")
            a(f"v_mov_b32 v{aFAC}, s24")
            a(f"v_cndmask_b32 v{aEX}, v{aEX}, v{aFAC}, vcc")
            a(f"v_mov_b32 v{aFAC}, s25")
            a(f"v_cndmask_b32 v{aEX}, v{aEX}, v{aFAC}, s[62:63]")
            a(f"v_and_b32 v{aFAC}, 1, v{vT}")
            a(f"v_lshl_add_u32 v{aEX}, v{aFAC}, 1, v{aEX}")
            a(f"v_lshl_add_u32 v{aEX}, v{vH}, 4, v{aEX}")
            a(f"v_mov_b32 v{aFAC}, {f2u(QSCALE):#x}")
            a(f"v_cndmask_b32 v{aFAC}, 1.0, v{aFAC}, vcc")
            a("s_waitcnt lgkmcnt(0)")
            for r in range(16):
                a(f"v_mul_f32 v{STR+r}, v{aFAC}, v{STR+r}")
            a(f"v_mul_f32 v{RSTD+1}, {f2u(QSCALE):#x}, v{RSTD}")
            a(f"v_mfma_f32_32x32x8_bf16 {vr(ACC,16)}, v[106:107], {vr(BX,2)}, {vr(ACC,16)}")
            a(f"v_mfma_f32_32x32x8_bf16 {vr(ACC+16,16)}, {vr(BX,2)}, v[108:109], {vr(ACC+16,16)}")
            side = list(a.l); a = main_a
        if i + depth - 1 < n:
            rd(i + depth - 1); out = depth - 1
        else:
            out = n - 1 - i
        if t == 0:
            a(f"s_waitcnt vmcnt({min(35, ks + PF - 1) - ks}) lgkmcnt({out})")
        else:
            a(f"s_waitcnt lgkmcnt({out})")
        acc = vr(ACC + 16 * t, 16); x = vr(R + 4 * ks, 4); w = vr(XB_ + 4 * (i % depth), 4)
        c = "0" if ks == 0 else acc
        a(f"v_mfma_f32_32x32x16_bf16 {acc}, {x}, {w}, {c}" if t else f"v_mfma_f32_32x32x16_bf16 {acc}, {w}, {x}, {c}")
        if t == 0 and ks + PF < 36:
            r_loads(a, WS, "s22", ks + PF, ks + PF + 1, LD)
        if i >= 2:
            for _ in range(4):
                if side: a.l.append(side.pop(0))
        if t == 0 and ks == LSTART:
            a("v_mov_b32 v15, s50" if not STAMPS else "v_mov_b32 v111, s50")
            a(f"ds_write_b32 v15, v{vNONCE}" if not STAMPS else f"ds_write_b32 v111, v{vNONCE}")
            if STAMPS: a("v_mov_b32 v111, 0")
    assert not side
    stamp(a, "B_gemm")
    V1 = ACC + 16
    a(f"v_add_u32 v6, s28, v{vL16}")
    a(f"v_lshlrev_b32 v7, 30, v{vH}")
    a(f"v_lshl_add_u32 v7, v{vT}, 2, v7")
    a(f"v_lshl_add_u32 v56, v{vT}, 2, s24")
    a(f"v_lshl_add_u32 v57, v{vT}, 2, s25")
    a(f"s_and_b32 s24, {W}, 4")
    a(f"s_add_u32 s24, s24, {L_FLAG+16}")
    a("v_mov_b32 v58, s24")
    a("v_mov_b32 v59, 1")
    a("s_mov_b32 s24, 0x40000")
    a("s_mov_b32 s25, 0x40000")
    a("s_nop 0")
    for r in range(8, 16):
        a(f"v_mul_f32 v{ACC+r}, v{RSTD}, v{ACC+r}")
    for p in range(4):
        a(f"v_cvt_pk_bf16_f32 v{KM+p-24}, v{ACC+8+2*p}, v{ACC+9+2*p}")
    a(f"ds_write_b128 v6, v[60:63]")
    a(f"buffer_store_dwordx4 v[60:63], v{vL16}, {IT}, s29 offen sc1")
    for r in range(16):
        a(f"v_mul_f32 v{V1+r}, v{STR+r}, v{V1+r}")
        if r % 2 == 1:
            a(f"v_cvt_pk_bf16_f32 v{V1+r//2}, v{V1+r-1}, v{V1+r}")
    for r in range(16):
        op = "ds_write_b16" if r % 2 == 0 else "ds_write_b16_d16_hi"
        a(f"{op} v{aEX}, v{V1+r//2} offset:{((r&3)+8*(r>>2))*4}")
    a("s_mov_b64 exec, s[24:25]")
    for p in range(8):
        a(f"v_mov_b32 v{V1+p}, s60")
    a("s_mov_b64 exec, -1")
    a("ds_read_b32 v64, v57")
    a("ds_read_b32 v65, v56")
    a(f"ds_write_b128 v{aVL}, {vr(V1,4)} offset:1152")
    a(f"ds_write_b128 v{aVL}, {vr(V1+4,4)} offset:{1152+608}")
    a(f"buffer_store_dwordx4 {vr(V1,4)}, v{aVG}, {IT}, s29 offen offset:1152 sc1")
    a(f"buffer_store_dwordx4 {vr(V1+4,4)}, v{aVG}, {IT}, s29 offen offset:{1152+608} sc1")
    for r in range(8):
        a(f"v_mul_f32 v{ACC+r}, v{RSTD+1}, v{ACC+r}")
    pack(a, ACC, 4)
    a(f"v_cmp_eq_u32 vcc, 0, v{vH}")
    a(f"v_mov_b32 v{QE+1}, 0")
    a(f"v_mov_b32 v{KE+1}, 0")
    a(f"v_mov_b32 v11, {NEGBIG:#x}")
    a("s_waitcnt lgkmcnt(0)")
    a(f"buffer_store_dword v64, v7, {IT}, s29 offen offset:1024 sc1")
    a("s_mov_b64 exec, 1")
    a("ds_add_u32 v58, v59")
    a("s_mov_b64 exec, -1")
    a(f"v_cndmask_b32 v{QE}, 0, v65, vcc")
    a(f"v_mov_b32 v{KE}, v64")
    a(f"v_mfma_f32_32x32x16_bf16 {vr(S_[0],16)}, v[60:63], {vr(QM,4)}, {vr(MK,16)}")
    a("s_nop 0")
    a(f"v_mfma_f32_32x32x8_bf16 {vr(S_[0],16)}, {vr(KE,2)}, {vr(QE,2)}, {vr(S_[0],16)}")
    stamp(a, "B_attn0")
    to = lambda i: (8 - i) * KVT
    def wait(word, val):
        a(f"s_mov_b32 s50, {L_FLAG+16+4*word}")
        a(f"s_mov_b32 s51, {val}")
        a("s_call_b64 s[30:31], L_B_wait")
    def wait_if(tile, word, val):
        l = a.nl("Lw")
        a(f"s_cmp_eq_u32 s48, {tile}")
        a(f"s_cbranch_scc0 {l}")
        wait(word, val)
        a.lab(l)
    def first_qk(k0, masked):
        a(f"ds_read_b128 {vr(KM,4)}, v{k0[0]} offset:{k0[2]}")
        a(f"ds_read_b32 v{KE}, v{k0[1]} offset:{k0[2]+1024}")
        a("s_waitcnt lgkmcnt(0)")
        a(f"v_mfma_f32_32x32x16_bf16 {vr(S_[0],16)}, {vr(KM,4)}, {vr(QM,4)}, {vr(S_[0],16) if masked else 0}")
        a(f"v_mfma_f32_32x32x8_bf16 {vr(S_[0],16)}, {vr(KE,2)}, {vr(QE,2)}, {vr(S_[0],16)}")
    a("s_waitcnt vmcnt(0)")
    stamp(a, "B_ack")
    setflag(a, IT, "s49")
    a(f"s_cmp_eq_u32 {sX}, 0")
    a("s_cbranch_scc1 L_B_L0")
    a(f"s_cmp_ge_u32 {W}, 4")
    a("s_cbranch_scc1 L_B_L")
    a("s_setprio 0")
    for st in (1, 2, 3):
        a(f"s_cmp_ge_u32 s48, {st+4}")
        a(f"s_mov_b32 s22, {to(st)-4*KVT}")
        a(f"s_cselect_b32 s22, {to(st)}, s22")
        for q, r in enumerate((vKa, vKe, vVa)):
            a(f"v_add_u32 v{100+3*(st-1)+q}, s22, v{r}")
    a(f"s_cmp_eq_u32 {W}, 0")
    a("s_cbranch_scc0 L_B_E1")
    a("s_mov_b32 s50, 2")
    a("s_call_b64 s[30:31], L_B_fetch")
    a("s_call_b64 s[30:31], L_B_fetched")
    stamp(a, "B_rem")
    a.lab("L_B_E1")
    if WEARLY: r_loads(a, WS, "s41", 0, WEARLY)
    wsp = [WEARLY + (36 - WEARLY) * q // 8 for q in range(9)]
    def wl(k0, k1):
        ex = []
        for ks in range(k0, k1):
            if ks == k0 or ks % 4 == 0: ex.append(f"s_add_u32 s61, s41, {(ks//4)*4096}")
            ex.append(f"buffer_load_dwordx4 {vr(R+4*ks,4)}, v{vL16}, {WS}, s61 offen offset:{(ks%4)*1024}")
        return ex
    def wlg(cond, k0, k1):
        l = a.nl("Lg")
        return [cond, f"s_cbranch_scc0 {l}"] + wl(k0, k1) + [f"{l}:"]
    wait(0, 4)
    K = lambda st: (vKa, to(0)) if st == 0 else ((vKa, 0) if st == 4 else (100 + 3 * (st - 1), 0))
    E = lambda st: (vKe, to(0) + 1024) if st == 0 else ((vKe, 1024) if st == 4 else (101 + 3 * (st - 1), 1024))
    Vv = lambda st, o: (vVa, to(0) + o) if st == 0 else ((vVa, o) if st == 4 else (102 + 3 * (st - 1), o))
    a(f"ds_read_b128 {vr(KM,4)}, v{K(1)[0]} offset:{K(1)[1]}")
    a(f"ds_read_b32 v{KE}, v{E(1)[0]} offset:{E(1)[1]}")
    a(f"ds_read_b128 {vr(VA,4)}, v{vVa} offset:{to(0)}")
    for j in range(5):
        if j <= 2: wait_if(5 + j, 2, 1)
        body(a, j & 1, rdKM=K(j + 2) if j + 2 <= 4 else None, rdKE=E(j + 2) if j + 2 <= 4 else None,
             rdVa=Vv(j + 1, 0) if j + 1 <= 4 else None, rdVb=Vv(j, 608), u=0, qk=(j < 4), pv1=(j > 0),
             cinit=((lambda n: mask_init(a, n, False)) if j == 3 else None), ke64=False, pvwait=(1 if j == 4 else 2),
             ozero=(j == 0), extra=wl(wsp[j], wsp[j + 1]))
    tail_pv1(a, 0)
    a("s_sub_u32 s22, 8, s48")
    a(f"s_mul_i32 s22, s22, {KVT}")
    for q, r in enumerate((vKa, vKe, vVa)):
        a(f"v_add_u32 v{100+q}, s22, v{r}")
    for r in range(16):
        a(f"v_mov_b32 v{S_[0]+r}, 0")
    a("s_mov_b32 s40, 4")
    wait(1, 4)
    a.lab("L_B_run2")
    tb = lambda i: i * KVT
    first_qk((100, 101, tb(0)), True)
    a(f"ds_read_b128 {vr(KM,4)}, v100 offset:{tb(1)}")
    a(f"ds_read_b32 v{KE}, v101 offset:{tb(1)+1024}")
    a(f"ds_read_b128 {vr(VA,4)}, v102 offset:{tb(0)}")
    a("s_nop 8")
    for j in range(4):
        body(a, j & 1, rdKM=(100, tb(j + 2)) if j + 2 <= 3 else None, rdKE=(101, tb(j + 2) + 1024) if j + 2 <= 3 else None,
             rdVa=(102, tb(j + 1)) if j + 1 <= 3 else None, rdVb=(102, tb(j) + 608), u=0, qk=(j < 3), pv1=(j > 0),
             ke64=False, pvwait=(1 if j == 3 else 2), extra=(wlg(f"s_cmp_lt_u32 {W}, 4", wsp[5 + j], wsp[6 + j]) if j < 3 else ()))
        if j < 3:
            a(f"s_cmp_eq_u32 s40, {j+1}")
            a(f"s_cbranch_scc1 L_B_t{j&1}")
    a("s_branch L_B_t1")
    a.lab("L_B_L0")
    a(f"s_cmp_lt_u32 {W}, s44")
    a("s_cbranch_scc0 L_B_L0b")
    r_loads(a, WS, "s41", 0, 36)
    a.lab("L_B_L0b")
    wait(0, 4)
    a("s_mov_b32 s40, s47")
    a("s_mov_b32 s48, 99")
    a("s_branch L_B_L1")
    a.lab("L_B_L")
    a("s_add_u32 s40, s48, 5")
    wait(2, 1)
    a.lab("L_B_L1")
    wait(1, 4)
    a(f"s_cmp_lt_u32 {W}, s44")
    a("s_cselect_b32 s51, 77, 0")
    a(f"s_cmp_eq_u32 {sX}, 0")
    a("s_cselect_b32 s51, 0, s51")
    a(f"ds_read_b128 {vr(KM,4)}, v{vKa} offset:{to(1)}")
    a(f"ds_read_b32 v{KE}, v{vKe} offset:{to(1)+1024}")
    a(f"ds_read_b128 {vr(VA,4)}, v{vVa} offset:{to(0)}")
    for j in range(8):
        if j == 2:
            l = a.nl("Lf")
            a("s_cmp_eq_u32 s48, 0")
            a(f"s_cbranch_scc0 {l}")
            a("s_mov_b32 s50, 3")
            a("s_call_b64 s[30:31], L_B_fetch")
            a.lab(l)
        body(a, j & 1, rdKM=to(j + 2) if j + 2 <= 7 else None, rdKE=to(j + 2) + 1024 if j + 2 <= 7 else None,
             rdVa=to(j + 1) if j + 1 <= 7 else None, rdVb=to(j) + 608, u=0, qk=(j < 7), pv1=(j > 0),
             ke64=False, pvwait=(1 if j == 7 else 2), ozero=(j == 0),
             extra=(wlg("s_cmp_eq_u32 s51, 77", 36 * j // 7, 36 * (j + 1) // 7) if j < 7 else ()))
        if j < 7:
            a(f"s_cmp_eq_u32 s40, {j+1}")
            a(f"s_cbranch_scc1 L_B_u{j&1}")
    a.lab("L_B_u1")
    tail_pv1(a, 1)
    a.lab("L_B_L2")
    a(f"s_cmp_eq_u32 {sX}, 0")
    a("s_cbranch_scc1 L_B_done")
    for q, r in enumerate((vKa, vKe, vVa)):
        a(f"v_mov_b32 v{100+q}, v{r}")
    a("s_sub_u32 s40, 4, s48")
    a("s_cmp_eq_u32 s48, 0")
    a("s_cbranch_scc0 L_B_L3")
    a("s_call_b64 s[30:31], L_B_fetched")
    stamp(a, "B_rem2")
    a.lab("L_B_L3")
    a("s_nop 7")
    mask_init(a, S_[0], False)
    wait(3, 1)
    a("s_branch L_B_run2")
    a.lab("L_B_t0")
    tail_pv1(a, 0)
    a.lab("L_B_done")
    stamp(a, "B_attn1")
    attn_finish(a, "B", "s45", "s46", OS)
    a("s_waitcnt vmcnt(0)")
    a("s_barrier")
    a(f"s_cmp_lg_u32 {W}, 0")
    a("s_cbranch_scc1 L_B_end")
    a(f"s_lshl_b32 s22, {sX}, 12")
    a("s_lshl_b32 s23, s46, 7")
    a("s_add_u32 s22, s22, s23")
    a(f"s_add_u32 s22, s22, {FOB:#x}")
    setflag(a, IT, "s22", local=True)
    a.lab("L_B_end")
    a("s_setprio 0")
    stamp(a, "B_end")
    b = slow
    b.lab("L_B_t1")
    tail_pv1(b, 1)
    b("s_branch L_B_done")
    b.lab("L_B_u0")
    tail_pv1(b, 0)
    b("s_branch L_B_L2")
    RET = "s_setpc_b64 s[30:31]"
    b.lab("L_B_wait")
    b("v_mov_b32 v5, s50")
    b("s_mov_b32 s21, 0")
    b.lab("L_B_spin")
    b("ds_read_b32 v6, v5")
    b("s_add_u32 s21, s21, 1")
    b("s_cmp_gt_u32 s21, 0x400000")
    b("s_waitcnt lgkmcnt(0)")
    b("s_cbranch_scc1 L_B_spun")
    b("v_cmp_gt_u32 vcc, s51, v6")
    b("s_cbranch_vccz L_B_spun")
    b("s_sleep 1")
    b("s_branch L_B_spin")
    b.lab("L_B_spun")
    b(RET)
    b.lab("L_B_fetch")
    b("s_sub_u32 s22, s49, 1024")
    poll(b, IT, "s22", 4)
    stamp(b, "B_poll")
    b(f"s_sub_u32 s22, s29, {8*KVT}")
    b(f"s_mul_i32 s23, s48, {KVT}")
    b(f"s_add_u32 m0, s23, {L_KVB}")
    dma(b, IT, "s22", 9, 1024, 1024)
    b("s_add_u32 m0, m0, 1024")
    b("s_add_u32 s22, s22, 1024")
    set_exec(b, 0xffff)
    b(f"buffer_load_dwordx4 v{vL16}, {IT}, s22 offen sc1 lds")
    b("s_mov_b64 exec, -1")
    b(RET)
    b.lab("L_B_fetched")
    b("s_lshl_b32 s50, s50, 2")
    b(f"s_add_u32 s50, s50, {L_FLAG+16}")
    b("v_mov_b32 v5, s50")
    b("v_mov_b32 v6, 1")
    b("s_waitcnt vmcnt(0)")
    b("ds_write_b32 v5, v6")
    b("s_waitcnt lgkmcnt(0)")
    b(RET)
    b.lab("L_B_slow")
    for ps in range(2):
        if ps == 0:
            b(f"v_mov_b32 v7, {f2u(float('-inf')):#x}")
        for j in range(9):
            b(f"ds_read_b128 {vr(KM,4)}, v{vKa} offset:{to(j)}")
            b(f"ds_read_b32 v{KE}, v{vKe} offset:{to(j)+1024}")
            if ps:
                b(f"ds_read_b128 {vr(VA,4)}, v{vVa} offset:{to(j)}")
                b(f"ds_read_b128 {vr(VB,4)}, v{vVa} offset:{to(j)+608}")
            if j in (0, 8): mask_init(b, S_[0], j == 0)
            slow_qk(b, 0, j in (0, 8))
            if ps: slow_pv(b)
            else: slow_max(b)
            if j < 8:
                b(f"s_cmp_eq_u32 s47, {j+1}")
                b(f"s_cbranch_scc1 L_B_slowd{ps}")
        b.lab(f"L_B_slowd{ps}")
        if ps == 0: slow_mid(b)
    slow_end(b, "B")

def main(out):
    ref = open(f"cdna_kernels/{NAME}.s.ref").read().splitlines()
    hdr = [l for l in ref if l.startswith(";") and "@launch" not in l]
    a = A(); slow = A(); slow.n = 100000
    gen_start(a)
    gen_prep(a)
    gen_pha(a, slow)
    gen_out(a, False)
    gen_phb(a, slow)
    gen_out(a, True)
    a(f"s_mov_b32 {sIT}, 1")
    a(f"s_mov_b32 s33, {KVA2-ITS:#x}")
    a(f"s_add_u32 s16, s16, {ITS:#x}")
    a("s_addc_u32 s17, s17, 0")
    a("s_branch L_it")
    a.lab("L_final")
    a(f"v_mul_u32_u24 v4, 1152, v{vT}")
    a(f"v_lshl_add_u32 v4, v{vH}, 4, v4")
    a(f"s_mul_i32 s24, s42, {32*1152}")
    a("s_lshl_b32 s25, s43, 6")
    a("s_add_u32 s24, s24, s25")
    for q in range(2):
        a(f"buffer_store_dwordx4 {vr(RES+4*q,4)}, v4, {AUX}, s24 offen offset:{32*q}")
    a.lab("L_fin2")
    if STAMPS:
        a("s_waitcnt vmcnt(0)")
        stamp(a, "end")
        a("v_lshlrev_b32 v4, 2, v0")
        a("s_lshl_b32 s22, s2, 11")
        a(f"s_add_u32 s22, s22, {DBG_OFF:#x}")
        a(f"buffer_store_dword v{vSTAMP}, v4, {WS}, s22 offen")
        open(out + ".stamps", "w").write("\n".join(STN))
        assert len(STN) <= 32
    a.lab("L_end")
    a("s_endpgm")
    K = NAME + "_kernel"
    txt = "\n".join(hdr) + "\n; @launch grid=(256,1,1) block=(512,1,1) lds=163840\n"
    txt += f'.amdgcn_target "amdgcn-amd-amdhsa--gfx950"\n.text\n.globl {K}\n.p2align 8\n.type {K},@function\n{K}:\n'
    txt += a.text() + slow.text() + "CODE_END:\n"
    txt += f""".section .rodata,"a"
.p2align 6
.amdhsa_kernel {K}
  .amdhsa_next_free_vgpr 256
  .amdhsa_next_free_sgpr 102
  .amdhsa_accum_offset 256
  .amdhsa_group_segment_fixed_size 0
  .amdhsa_kernarg_size 88
  .amdhsa_user_sgpr_count 2
  .amdhsa_user_sgpr_kernarg_segment_ptr 1
  .amdhsa_system_sgpr_workgroup_id_x 1
  .amdhsa_float_denorm_mode_32 3
.end_amdhsa_kernel
"""
    open(out, "w").write(txt)

if __name__ == "__main__":
    if "stamps" in sys.argv: STAMPS = True
    if "nolocal" in sys.argv: NOLOCAL = True
    for x in sys.argv[2:]:
        if "=" in x:
            k, v = x.split("="); globals()[k] = int(v)
    main(sys.argv[1])
```

```python
import math, struct, sys

NAME = "interleave_layers__grouped_kv_mqa__sliding_block__prompt"
def f2u(x): return struct.unpack("<I", struct.pack("<f", x))[0]

FR = 1024
XT = 36 * FR
WCT = 36 * FR
KVA = 0x0
KVA2 = 0x28000
KVB = 0x60000
FL = 0x510000
ITS = 32
FKAL, FOA, FXB, FOB, FXA = FL, FL + 4, FL + 8, FL + 12, FL + 16
FKA, FKB = FL + 0x8000, FL + 0x10000
XS, OS, STS, KVL = 0x600000, 0x840000, 0xA80000, 0xAD0000
WA_OFF, WB_OFF, WOA_OFF, WOB_OFF, FPREP = 0xB00000, 0xC00000, 0xF00000, 0x1000000, 0x10C0000
DBG_OFF = 0x4000000
WS_SIZE = 0x10000000
OOB = 0x40000000
LOOB = 0x40000
GRP = 9472
KVA_SZ = 16 * GRP
BLK = 2 * GRP
VT = 1216
KVT = 2368
QSCALE = (18 ** -0.5) * math.log2(math.e)
NEGBIG = f2u(-1e30)
L_XA = 40960
L_WB = 40960
L_KVB = 118784
L_Q = 151552
L_MISC = 160768
L_FLAG = 162816
NPREP = 252
L_PREP = 114688
L_RAW = 135168
L_WBX = L_WB + 2 * WCT

STAMPS = False
FORCESLOW = 0
DBGOUT = 0
NOLOCAL = False
STN = []
ST = " sc1"
LD = " sc1"

class A:
    def __init__(self):
        self.l = []; self.n = 0; self.ns = 0; self.stn = []
    def __call__(self, s): self.l.append("    " + s)
    def lab(self, s): self.l.append(s + ":")
    def nl(self, p="L"):
        self.n += 1
        return f"{p}_{self.n}"
    def text(self): return "\n".join(self.l) + "\n"

def vr(a, n): return f"v[{a}:{a+n-1}]" if n > 1 else f"v{a}"

W = "s3"
WS, AUX, IT = "s[4:7]", "s[8:11]", "s[16:19]"
sX, sI, sNONCE, sIT, sLIM, sLOC = "s12", "s13", "s14", "s15", "s20", "s99"
vL16, vT, vH = 1, 2, 3
vNONCE, vSTAMP = 14, 15
RES = 16
R = 112
WEXT = 110
MASK = 64

def stamp(a, name, cyc=False):
    if not STAMPS: return
    if cyc: name = "c:" + name
    if name not in STN: STN.append(name)
    k = STN.index(name)
    a("s_memtime s[96:97]" if cyc else "s_memrealtime s[96:97]")
    a(f"s_mul_i32 s98, {sIT}, 32")
    a(f"s_add_u32 s98, s98, {k}")
    a("s_waitcnt lgkmcnt(0)")
    a(f"s_mov_b32 m0, s98")
    a(f"v_writelane_b32 v{vSTAMP}, s96, m0")

def set_exec(a, mask):
    lo, hi = mask & 0xffffffff, mask >> 32
    if mask <= 64:
        a(f"s_mov_b64 exec, {mask}")
    else:
        a(f"s_mov_b32 exec_lo, {lo:#x}" if lo != 0xffffffff else "s_mov_b32 exec_lo, -1")
        a(f"s_mov_b32 exec_hi, {hi:#x}")

def poll_issue(a, srd, soff, n, vtmp, voff):
    for q in range((n + 63) // 64):
        if q == 0:
            a(f"buffer_load_dword v{vtmp}, v{voff}, {srd}, {soff} offen sc1")
        else:
            a(f"s_add_u32 s61, {soff}, {8192*q}")
            a(f"buffer_load_dword v{vtmp+q}, v{voff}, {srd}, s61 offen sc1")

def poll_test(a, n, vtmp):
    a(f"v_cmp_ne_u32 vcc, {sNONCE}, v{vtmp}")
    for q in range(1, (n + 63) // 64):
        a(f"v_cmp_ne_u32 s[62:63], {sNONCE}, v{vtmp+q}")
        a("s_or_b64 vcc, vcc, s[62:63]")

def poll(a, srd, soff, n, vtmp=4, voff=5, setoff=True):
    l, d = a.nl("Lp"), a.nl("Lpd")
    if setoff: a(f"v_lshlrev_b32 v{voff}, 3, v{vL16}")
    if n < 64: set_exec(a, (1 << n) - 1)
    a("s_mov_b32 s21, 0")
    a.lab(l)
    poll_issue(a, srd, soff, n, vtmp, voff)
    a("s_add_u32 s21, s21, 1")
    a(f"s_cmp_gt_u32 s21, {sLIM}")
    a(f"s_cselect_b32 {sLIM}, 0, {sLIM}")
    a("s_waitcnt vmcnt(0)")
    a(f"s_cbranch_scc1 {d}")
    poll_test(a, n, vtmp)
    a(f"s_cbranch_vccnz {l}")
    a.lab(d)
    if n < 64: a("s_mov_b64 exec, -1")

def census_issue(a, v):
    a(f"v_lshlrev_b32 v{v+1}, 7, v{vT}")
    a(f"s_lshl_b32 s22, {sX}, 12")
    a(f"s_add_u32 s22, s22, {FL+20:#x}")
    a(f"buffer_load_dword v{v}, v{v+1}, {WS}, s22 offen sc1")

def census_eval(a, v, dst):
    a(f"v_cmp_ne_u32 vcc, s34, v{v}")
    a("s_cmp_eq_u64 vcc, 0")
    a(f"s_cselect_b32 {dst}, 1, 2")
    if NOLOCAL: a(f"s_mov_b32 {dst}, 2")

def lstore(a, insts):
    l, e = a.nl("Ls"), a.nl("Lse")
    a(f"s_cmp_eq_u32 {sLOC}, 1")
    a(f"s_cbranch_scc1 {l}")
    for i in insts: a(i + " sc1")
    a(f"s_branch {e}")
    a.lab(l)
    for i in insts: a(i)
    a.lab(e)

def setflag(a, srd, soff, local=False):
    a("s_mov_b64 exec, 1")
    if local: lstore(a, [f"buffer_store_dword v{vNONCE}, off, {srd}, {soff}"])
    else: a(f"buffer_store_dword v{vNONCE}, off, {srd}, {soff} sc1")
    a("s_mov_b64 exec, -1")

def dma(a, srd, sG, n, gstep, lstep, flags=LD, half_last=False):
    for r in range(n):
        if half_last and r == n - 1:
            a("s_mov_b32 exec_hi, 0")
        else:
            a("s_nop 0")
        a(f"buffer_load_dwordx4 v{vL16}, {srd}, {sG} offen{flags} lds")
        if half_last and r == n - 1:
            a("s_mov_b64 exec, -1")
        if r + 1 < n:
            a(f"s_add_u32 m0, m0, {lstep}")
            a(f"s_add_u32 {sG}, {sG}, {gstep}")

def r_loads(a, srd, sOff, k0, k1, flags=""):
    for ks in range(k0, k1):
        if ks == k0 or ks % 4 == 0:
            a(f"s_add_u32 s61, {sOff}, {(ks//4)*4096}")
        a(f"buffer_load_dwordx4 {vr(R+4*ks,4)}, v{vL16}, {srd}, s61 offen offset:{(ks%4)*1024}{flags}")

def cs_dot(a, ks):
    for d in range(4):
        a(f"v_dot2_f32_bf16 v{CS}, v{R+4*ks+d}, s60, v{CS}")

def cs_pack(a, dst):
    a("s_nop 2")
    a(f"v_cvt_pk_bf16_f32 v{dst}, v{CS}, v{CS}")
    a(f"v_lshlrev_b32 v{dst}, 16, v{dst}")
    a(f"v_sub_f32 v{CS}, v{CS}, v{dst}")
    a(f"v_cvt_pk_bf16_f32 v{dst}, v{dst}, v{CS}")

def store_x_and_stats(a, P, sT, sC, tmp, XO, SO, srd):
    a(f"s_mul_i32 s26, {sT}, {XT}")
    a(f"s_lshl_b32 s27, {sC}, 11")
    a("s_add_u32 s26, s26, s27")
    a(f"s_add_u32 s26, s26, {XO:#x}")
    lstore(a, [f"buffer_store_dwordx4 {vr(P,4)}, v{vL16}, {srd}, s26 offen",
               f"buffer_store_dwordx4 {vr(P+4,4)}, v{vL16}, {srd}, s26 offen offset:1024"])
    a(f"v_mov_b32 v{tmp}, 0")
    a(f"v_mov_b32 v{tmp+1}, 0")
    for i in range(8):
        a(f"v_dot2_f32_bf16 v{tmp}, v{P+i}, s60, v{tmp}")
        a(f"v_dot2_f32_bf16 v{tmp+1}, v{P+i}, v{P+i}, v{tmp+1}")
    a(f"v_lshrrev_b32 v{tmp+2}, 2, v{vL16}")
    a(f"s_mul_i32 s26, {sT}, {18*256}")
    a(f"s_lshl_b32 s27, {sC}, 8")
    a("s_add_u32 s26, s26, s27")
    a(f"s_add_u32 s26, s26, {SO:#x}")
    a(f"v_permlane32_swap_b32 v{tmp}, v{tmp+1}")
    a("s_nop 1")
    a(f"v_add_f32 v{tmp}, v{tmp}, v{tmp+1}")
    lstore(a, [f"buffer_store_dword v{tmp}, v{tmp+2}, {srd}, s26 offen"])

def stats_load(a, b, sT, SO):
    a(f"v_lshrrev_b32 v4, 2, v{vL16}")
    a(f"s_mul_i32 s40, {sT}, {18*256}")
    a(f"s_add_u32 s40, s40, {SO:#x}")
    for c in range(18):
        if c == 16: a("s_add_u32 s40, s40, 4096")
        a(f"buffer_load_dword v{b+c}, v4, {WS}, s40 offen offset:{(c%16)*256}{LD}")

def stats_sum(a, b):
    for i in range(9):
        a(f"v_add_f32 v{b+i}, v{b+i}, v{b+9+i}")
    for i, j in ((0, 1), (2, 3), (4, 5), (6, 7), (0, 2), (4, 6), (0, 4), (0, 8)):
        a(f"v_add_f32 v{b+i}, v{b+i}, v{b+j}")

def stats_compute(a, b, xext, rstd):
    a(f"v_mov_b32 v{b+1}, v{b}")
    a("s_nop 1")
    a(f"v_permlane32_swap_b32 v{b}, v{b+1}")
    a("s_nop 1")
    a(f"v_mul_f32 v{b}, {f2u(1.0/576):#x}, v{b}")
    a(f"v_mul_f32 v{b+1}, {f2u(1.0/576):#x}, v{b+1}")
    a(f"v_fma_f32 v{b+1}, -v{b}, v{b}, v{b+1}")
    a(f"v_max_f32 v{b+1}, 0, v{b+1}")
    a(f"v_cvt_pk_bf16_f32 v{xext}, -v{b}, -v{b}")
    a(f"v_mov_b32 v{xext+1}, 0")
    a(f"v_cvt_pk_bf16_f32 v{b+1}, v{b+1}, v{b+1}")
    a(f"v_lshlrev_b32 v{b+1}, 16, v{b+1}")
    a(f"v_add_f32 v{b+1}, {f2u(1e-5):#x}, v{b+1}")
    a(f"v_cvt_pk_bf16_f32 v{b+1}, v{b+1}, v{b+1}")
    a(f"v_lshlrev_b32 v{b+1}, 16, v{b+1}")
    a(f"v_sqrt_f32 v{b+1}, v{b+1}")
    a("s_nop 0")
    a(f"v_cvt_pk_bf16_f32 v{b+1}, v{b+1}, v{b+1}")
    a(f"v_lshlrev_b32 v{b+1}, 16, v{b+1}")
    a(f"v_rcp_f32 v{rstd}, v{b+1}")
    a("s_nop 0")

def rstd_bcast(a, rstd, dst):
    a(f"s_lshl_b32 s27, {W}, 8")
    a(f"s_add_u32 s27, s27, {L_MISC}")
    a(f"v_lshl_add_u32 v6, v{vT}, 2, s27")
    a(f"ds_write_b32 v6, v{rstd}")
    a(f"v_lshl_add_u32 v6, v{vH}, 4, s27")
    a("s_waitcnt lgkmcnt(0)")
    for q in range(4):
        a(f"ds_read_b128 {vr(dst+4*q,4)}, v6 offset:{32*q}")

ACC = 24
XB_ = 56
STR = 88
CS = 106
DEPTH = 8
XEXT = 8
RSTD = 12

def xaddr(a, dst, base):
    l, e = a.nl("Lxa"), a.nl("Lxe")
    a(f"s_cmp_eq_u32 {sIT}, 0")
    a(f"s_cbranch_scc1 {l}")
    a(f"v_add_u32 v{dst}, {base}, v{vL16}")
    for q in range(1, 4):
        a(f"v_add_u32 v{dst+q}, {1024*q}, v{dst}")
    a(f"s_branch {e}")
    a.lab(l)
    a(f"v_bfe_u32 v4, v{vT}, 1, 3")
    a(f"v_xor_b32 v4, v4, v{vH}")
    a(f"v_lshlrev_b32 v{dst+3}, 7, v{vT}")
    a(f"v_add_u32 v{dst+3}, {base}, v{dst+3}")
    for q in range(4):
        if q: a(f"v_xor_b32 v4, {(2*q) ^ (2*q-2)}, v4")
        a(f"v_lshl_add_u32 v{dst+q}, v4, 4, v{dst+3}")
    a.lab(e)

def gemm_stage(a, bases, k0, k1, swap, first_zero, cs=False, pre=None, quad=False, hooks={}):
    TT = len(bases)
    items = [(ks, t) for ks in range(k0, k1) for t in range(TT)]
    n = len(items); depth = DEPTH
    def rd(i):
        ks, t = items[i]
        if i in hooks: hooks[i]()
        if quad: a(f"ds_read_b128 {vr(XB_+4*(i%depth),4)}, v{bases[t]+(ks&3)} offset:{(ks>>2)*4096}")
        else: a(f"ds_read_b128 {vr(XB_+4*(i%depth),4)}, v{bases[t]} offset:{ks*1024}")
    if pre: pre()
    for i in range(depth - 1): rd(i)
    if cs: a(f"s_cmp_eq_u32 {sIT}, 1")
    for i in range(n):
        ks, t = items[i]
        if i + depth - 1 < n:
            rd(i + depth - 1); out = depth - 1
        else:
            out = n - 1 - i
        if cs and t == 0 and ks % 4 == 0:
            l = a.nl("Lcs")
            a(f"s_cbranch_scc1 {l}")
            if ks + 12 < 36: r_loads(a, WS, "s40", ks + 12, ks + 16)
            a(f"s_waitcnt vmcnt({min(36, ks + 16) - ks - 4})")
            for k in range(ks, ks + 4): cs_dot(a, k)
            if ks == 32: cs_pack(a, WEXT)
            a(f"s_cmp_eq_u32 {sIT}, 1")
            a.lab(l)
        a(f"s_waitcnt lgkmcnt({out})")
        acc = vr(ACC + 16 * t, 16); w = vr(R + 4 * ks, 4); x = vr(XB_ + 4 * (i % depth), 4)
        c = "0" if (first_zero and ks == 0) else acc
        a(f"v_mfma_f32_32x32x16_bf16 {acc}, {x}, {w}, {c}" if swap else f"v_mfma_f32_32x32x16_bf16 {acc}, {w}, {x}, {c}")

def pack(a, base, n=8, dst=None):
    dst = base if dst is None else dst
    for p in range(n):
        a(f"v_cvt_pk_bf16_f32 v{dst+p}, v{base+2*p}, v{base+2*p+1}")

def gen_start(a):
    a("s_cmp_ge_u32 s2, 256")
    a("s_cbranch_scc1 L_end")
    a("s_load_dwordx16 s[32:47], s[0:1], 0")
    a("s_load_dwordx4 s[48:51], s[0:1], 64")
    a("s_load_dwordx2 s[4:5], s[0:1], 80")
    a("s_memrealtime s[22:23]")
    a("v_lshrrev_b32 v4, 6, v0")
    a("v_and_b32 v5, 63, v0")
    a("v_readfirstlane_b32 s3, v4")
    a(f"v_lshlrev_b32 v{vL16}, 4, v5")
    a(f"v_and_b32 v{vT}, 31, v5")
    a(f"v_lshrrev_b32 v{vH}, 5, v5")
    a(f"s_mov_b32 s6, {WS_SIZE:#x}")
    a("s_mov_b32 s7, 0x20000")
    a("s_mov_b32 s11, 0x20000")
    a(f"s_mov_b32 s18, {WS_SIZE-2*ITS:#x}")
    a("s_mov_b32 s19, 0x20000")
    a(f"s_and_b32 {sX}, s2, 7")
    a(f"s_lshr_b32 {sI}, s2, 3")
    a(f"s_mov_b32 {sIT}, 0")
    a(f"s_mov_b32 {sLIM}, 200000")
    a(f"s_mov_b32 {sLOC}, 0")
    a(f"v_mov_b32 v{vSTAMP}, 0")
    a(f"v_mov_b32 v{WEXT+1}, 0")
    if CODEPF:
        a(f"s_cmp_lg_u32 {W}, 5")
        a("s_cbranch_scc1 L_nocodepf")
        a("s_getpc_b64 s[26:27]")
        a(f"s_lshl_b32 s24, {sI}, 11")
        a(f"s_cmp_ge_u32 s24, CODE_END - L_nocodepf - 2048")
        a("s_cbranch_scc1 L_nocodepf")
        a("s_add_u32 s26, s26, s24")
        a("s_addc_u32 s27, s27, 0")
        a(f"v_lshlrev_b32 v4, 1, v{vL16}")
        a("v_mov_b32 v5, s27")
        a("v_add_co_u32 v4, vcc, s26, v4")
        a("s_nop 1")
        a("v_addc_co_u32 v5, vcc, 0, v5, vcc")
        a("global_load_dword v100, v[4:5], off")
        a.lab("L_nocodepf")
    a(f"v_lshlrev_b32 v4, 2, v{vH}")
    a(f"v_sub_u32 v4, v{vT}, v4")
    for r in range(16):
        a(f"v_cmp_le_i32 s[{MASK+2*r}:{MASK+2*r+1}], {(r&3)+8*(r>>2)}, v4")
    a("s_waitcnt lgkmcnt(0)")
    a("s_mov_b32 s16, s4")
    a("s_mov_b32 s17, s5")
    a("s_mov_b32 s56, s50")
    a("s_mov_b32 s57, s51")
    a("s_mov_b32 s58, 256")
    a("s_mov_b32 s59, 0x20000")
    a("s_mov_b32 s52, s32")
    a("s_mov_b32 s53, s33")
    a(f"s_mov_b32 s54, {2048*1152}")
    a("s_mov_b32 s55, 0x20000")
    a("s_mov_b32 s60, 0x3f803f80")
    a(f"s_or_b32 s24, s2, {W}")
    a("s_cmp_lg_u32 s24, 0")
    a("s_cbranch_scc1 L_nononce")
    a("s_or_b32 s22, s22, 1")
    a("v_mov_b32 v4, s22")
    a("s_mov_b64 exec, 1")
    a("buffer_store_dword v4, off, s[56:59], 0 sc1")
    a("s_mov_b64 exec, -1")
    a.lab("L_nononce")

    stamp(a, "start")

X0 = "s[52:55]"
def gather(a, vaddr, rs, dst, tmp):
    for j in range(8):
        a(f"ds_read_u16 v{tmp+j}, v{vaddr} offset:{j*rs}")
def gpack(a, dst, tmp):
    for d in range(4):
        a(f"v_lshl_or_b32 v{dst+d}, v{tmp+2*d+1}, 16, v{tmp+2*d}")

def x0_dma(a):
    a("s_call_b64 s[30:31], L_x0")

def x0_sub(a):
    a.lab("L_x0")
    a(f"s_and_b32 s24, {sI}, 8")
    a("s_cmp_eq_u32 s24, 0")
    a("s_cbranch_scc1 L_x0b")
    a(f"s_cmp_lt_u32 {sI}, 16")
    a("s_cselect_b32 s24, s36, s38")
    a("s_cselect_b32 s25, s37, s39")
    a(f"s_mov_b32 s26, {576*36}")
    a("s_mov_b32 s27, 0x20000")
    a(f"s_lshl_b32 s21, {W}, 10")
    a(f"s_add_u32 m0, s21, {L_RAW}")
    dma(a, "s[24:27]", "s21", 3, 8192, 8192, flags="")
    a.lab("L_x0b")
    a(f"s_and_b32 s24, {sI}, 3")
    a("s_lshl_b32 s24, s24, 1")
    a(f"s_lshl_b32 s25, {sX}, 3")
    a("s_add_u32 s24, s24, s25")
    a(f"s_mul_i32 s24, s24, {XT}")
    a(f"s_mul_i32 s25, {W}, {8*1152}")
    a("s_add_u32 s24, s24, s25")
    a(f"s_lshr_b32 s25, {W}, 2")
    a(f"s_mul_i32 s25, s25, {XT}")
    a(f"s_and_b32 s26, {W}, 3")
    a("s_lshl_b32 s27, s26, 10")
    a("s_add_u32 s25, s25, s27")
    a(f"s_add_u32 m0, s25, {L_XA}")
    a("s_and_b32 s26, s26, 1")
    a("s_lshl_b32 s26, s26, 2")
    a(f"v_lshrrev_b32 v13, 7, v{vL16}")
    a("v_lshrrev_b32 v9, 1, v13")
    a("v_add_u32 v9, s26, v9")
    a(f"v_bfe_u32 v8, v{vL16}, 4, 3")
    a("v_xor_b32 v9, v8, v9")
    a("v_mul_u32_u24 v13, 1152, v13")
    a("v_lshl_add_u32 v13, v9, 4, v13")
    for kq in range(9):
        a(f"buffer_load_dwordx4 v13, {X0}, s24 offen lds")
        if kq < 8:
            a("s_add_u32 m0, m0, 4096")
            a("s_add_u32 s24, s24, 128")
    a("s_waitcnt vmcnt(9)")
    a("s_barrier")
    a("s_setpc_b64 s[30:31]")

def prep_flag(a):
    a("s_lshl_b32 s22, s2, 7")
    a(f"s_add_u32 s22, s22, {FPREP:#x}")
    setflag(a, WS, "s22")

def gen_prep(a):
    G0, P0 = 24, 64
    a(f"v_and_b32 v4, 0x13, v{vT}")
    a(f"v_and_b32 v5, 4, v{vT}")
    a("v_lshl_or_b32 v4, v5, 1, v4")
    a(f"v_and_b32 v5, 8, v{vT}")
    a("v_lshrrev_b32 v5, 1, v5")
    a("v_or_b32 v12, v4, v5")
    a("v_lshlrev_b32 v12, 1, v12")
    a(f"v_mov_b32 v11, {LOOB:#x}")
    a(f"s_mov_b32 s100, {OOB:#x}")
    a("s_mov_b32 s101, 0")
    a(f"s_cmp_ge_u32 s2, {NPREP}")
    a("s_cbranch_scc1 L_pn")
    a("s_cmp_ge_u32 s2, 180")
    a("s_cbranch_scc1 L_po")
    a("s_cmp_ge_u32 s2, 36")
    a("s_cbranch_scc1 L_pb")
    a("s_mov_b32 s8, s34")
    a("s_mov_b32 s9, s35")
    a(f"s_mov_b32 s10, {576*1152}")
    a(f"s_mul_i32 s22, s2, {16*1152}")
    a(f"s_lshl_b32 s23, {W}, 10")
    a("s_add_u32 s22, s22, s23")
    a(f"s_add_u32 m0, s23, {L_PREP}")
    dma(a, AUX, "s22", 2, 8192, 8192, flags="")
    a(f"s_cmp_ge_u32 {W}, 4")
    a("s_cbranch_scc1 L_pa1")
    a(f"s_cmp_ge_u32 {W}, 2")
    a("s_cbranch_scc1 L_pa0")
    a("s_add_u32 m0, m0, 8192")
    a("s_add_u32 s22, s22, 8192")
    dma(a, AUX, "s22", 1, 0, 0, flags="")
    a("s_branch L_pa1")
    a.lab("L_pa0")
    a(f"s_cmp_eq_u32 {W}, 2")
    a("s_cselect_b32 s8, s36, s38")
    a("s_cselect_b32 s9, s37, s39")
    a(f"s_mov_b32 s10, {576*36}")
    a("s_mul_i32 s22, s2, 576")
    a("s_add_u32 m0, m0, 8192")
    dma(a, AUX, "s22", 1, 0, 0, flags="")
    a.lab("L_pa1")
    x0_dma(a)
    a(f"v_mul_u32_u24 v10, {8*1152}, v{vH}")
    a(f"v_add_u32 v10, {L_PREP}, v10")
    for r in range(3):
        a(f"s_add_u32 s22, {W}, {8*r}")
        a("s_mul_i32 s23, s22, 86")
        a("s_lshr_b32 s23, s23, 8")
        a("s_mul_i32 s24, s23, 3")
        a("s_sub_u32 s24, s22, s24")
        a("s_mul_i32 s23, s23, 144")
        a("s_mul_i32 s25, s24, 72")
        a("s_cmp_eq_u32 s24, 2")
        a("s_cselect_b32 s25, 32, s25")
        a("s_cselect_b32 s26, 1, 4")
        a("s_cselect_b32 s27, 1, 15")
        a("s_cselect_b32 s28, 8, 32")
        a("s_add_u32 s23, s23, s25")
        a(f"v_lshrrev_b32 v4, s26, v{vT}")
        a("v_mul_u32_u24 v4, 36, v4")
        a(f"v_and_b32 v5, s27, v{vT}")
        a("v_lshl_add_u32 v4, v5, 1, v4")
        a("v_add3_u32 v4, v4, v10, s23")
        a(f"v_cmp_gt_u32 vcc, s28, v{vT}")
        a("s_nop 1")
        a("v_cndmask_b32 v4, v11, v4, vcc")
        gather(a, 4, 1152, P0 + 4 * r, G0 + 8 * r)
    a(f"v_lshlrev_b32 v4, 1, v{vT}")
    a(f"s_cmp_eq_u32 {W}, 1")
    a("s_cselect_b64 vcc, -1, 0")
    a(f"s_lshl_b32 s23, {W}, 10")
    a(f"s_add_u32 s23, s23, {L_PREP+18432}")
    a("v_cndmask_b32 v4, v4, v12, vcc")
    a(f"v_mul_u32_u24 v5, {8*36}, v{vH}")
    a("v_add3_u32 v4, v4, v5, s23")
    a(f"v_cmp_gt_u32 vcc, 18, v{vT}")
    a("s_nop 1")
    a("v_cndmask_b32 v4, v11, v4, vcc")
    a("s_waitcnt lgkmcnt(0)")
    gather(a, 4, 36, P0 + 12, G0 + 24)
    a(f"s_mul_i32 s22, {W}, {WCT}")
    a("s_lshl_b32 s23, s2, 10")
    a("s_add_u32 s22, s22, s23")
    a(f"s_add_u32 s22, s22, {WA_OFF:#x}")
    for r in range(3):
        gpack(a, P0 + 4 * r, G0 + 8 * r)
        a(f"buffer_store_dwordx4 {vr(P0+4*r,4)}, v{vL16}, {WS}, s22 offen sc1")
        a(f"s_add_u32 s22, s22, {8*WCT}")
    a(f"s_cmp_ge_u32 {W}, 2")
    a("s_cbranch_scc1 L_prep_done")
    a("s_waitcnt lgkmcnt(0)")
    gpack(a, P0 + 12, G0 + 24)
    a(f"buffer_store_dwordx4 {vr(P0+12,4)}, v{vL16}, {WS}, s22 offen sc1")
    a("s_branch L_prep_done")
    x0_sub(a)
    a.lab("L_pb")
    a("s_mov_b32 s8, s44")
    a("s_mov_b32 s9, s45")
    a(f"s_mov_b32 s10, {576*3456}")
    a("s_sub_u32 s28, s2, 36")
    a("s_and_b32 s29, s28, 3")
    a("s_lshr_b32 s28, s28, 2")
    a(f"s_mul_i32 s22, s28, {16*3456}")
    a("s_mul_i32 s23, s29, 288")
    a("s_add_u32 s22, s22, s23")
    a(f"s_lshl_b32 s23, {W}, 10")
    a(f"s_add_u32 m0, s23, {L_PREP}")
    for r in range(2):
        a(f"v_add_u32 v4, {512*r}, v0")
        a("v_mul_u32_u24 v5, 607, v4")
        a("v_lshrrev_b32 v5, 15, v5")
        a("v_mul_u32_u24 v6, 54, v5")
        a("v_sub_u32 v4, v4, v6")
        a("v_mul_u32_u24 v6, 57, v4")
        a("v_lshrrev_b32 v6, 10, v6")
        a(f"v_mul_u32_u24 v6, {1152-288}, v6")
        a("v_lshl_add_u32 v4, v4, 4, v6")
        a("v_mul_u32_u24 v5, 3456, v5")
        a("v_add_u32 v4, v4, v5")
        a(f"buffer_load_dwordx4 v4, {AUX}, s22 offen lds")
        if r == 0: a("s_add_u32 m0, m0, 8192")
    x0_dma(a)
    a(f"v_mul_u32_u24 v10, {8*864}, v{vH}")
    a(f"s_mul_i32 s23, {W}, 36")
    a(f"s_add_u32 s23, s23, {L_PREP}")
    a("v_add_u32 v10, s23, v10")
    a(f"v_lshrrev_b32 v4, 4, v{vT}")
    a("v_mul_u32_u24 v4, 288, v4")
    a(f"v_and_b32 v5, 15, v{vT}")
    a("v_lshl_add_u32 v4, v5, 1, v4")
    a("v_add_u32 v4, v4, v10")
    gather(a, 4, 864, P0, G0)
    a("v_add_u32 v4, 576, v12")
    a(f"v_cmp_gt_u32 vcc, 18, v{vT}")
    a(f"v_bfe_u32 v5, v{vT}, 1, 1")
    a("v_mul_u32_u24 v5, 288, v5")
    a("v_cndmask_b32 v4, v11, v4, vcc")
    a(f"v_and_b32 v6, 1, v{vT}")
    a("v_lshl_add_u32 v5, v6, 1, v5")
    a(f"v_lshrrev_b32 v6, 2, v{vT}")
    a("v_cmp_eq_u32 vcc, 6, v6")
    a("v_add_u32 v5, 32, v5")
    a("s_nop 0")
    a("v_cndmask_b32 v4, v4, v5, vcc")
    a("v_add_u32 v4, v4, v10")
    gather(a, 4, 864, P0 + 4, G0 + 8)
    a("s_lshl_b32 s22, s29, 3")
    a(f"s_add_u32 s22, s22, {W}")
    a(f"s_mul_i32 s22, s22, {2*WCT}")
    a("s_lshl_b32 s23, s28, 10")
    a("s_add_u32 s22, s22, s23")
    a(f"s_add_u32 s22, s22, {WB_OFF:#x}")
    a("s_mov_b32 s100, s22")
    a(f"s_mov_b32 s101, {WCT}")
    a("s_waitcnt lgkmcnt(0)")
    gpack(a, RES, G0)
    gpack(a, RES + 4, G0 + 8)
    a("s_branch L_prep_done")
    a.lab("L_po")
    a("s_cmp_ge_u32 s2, 216")
    a("s_cselect_b32 s8, s46, s40")
    a("s_cselect_b32 s9, s47, s41")
    a("s_cselect_b32 s28, 36, 0")
    a(f"s_cselect_b32 s29, {WOB_OFF>>20}, {WOA_OFF>>20}")
    a(f"s_mov_b32 s10, {576*1152}")
    a("s_sub_u32 s28, s2, s28")
    a("s_sub_u32 s28, s28, 180")
    a(f"s_mul_i32 s22, s28, {18*1152}")
    a("s_sub_u32 s23, s28, 32")
    a(f"s_mul_i32 s23, s23, {144*1152}")
    a(f"s_add_u32 s23, s23, {16*1152}")
    a("s_cmp_ge_u32 s28, 32")
    a("s_cselect_b32 s22, s23, s22")
    a(f"s_cselect_b32 s24, {18*1152-2304}, 0")
    a(f"s_lshl_b32 s23, {W}, 10")
    a(f"s_add_u32 m0, s23, {L_PREP}")
    for r in range(3):
        if r == 2:
            a(f"s_cmp_ge_u32 {W}, 2")
            a("s_cbranch_scc1 L_po1")
        a(f"v_add_u32 v4, {512*r}, v0")
        a("v_mul_u32_u24 v5, 1821, v4")
        a("v_lshrrev_b32 v5, 18, v5")
        a("v_mul_lo_u32 v5, v5, s24")
        a("v_lshl_add_u32 v4, v4, 4, v5")
        a(f"buffer_load_dwordx4 v4, {AUX}, s22 offen lds")
        if r < 2: a("s_add_u32 m0, m0, 8192")
    a.lab("L_po1")
    x0_dma(a)
    a(f"v_mul_u32_u24 v10, {8*1152}, v{vH}")
    a(f"s_lshl_b32 s23, {W}, 6")
    a(f"s_add_u32 s23, s23, {L_PREP}")
    a("v_add3_u32 v4, v10, v12, s23")
    for r in range(3):
        gather(a, 4, 1152, P0 + 4 * r, G0 + 8 * r)
        a("v_add_u32 v4, 512, v4")
        if r == 1: a("s_waitcnt lgkmcnt(0)")
    a("s_lshl_b32 s29, s29, 20")
    a(f"s_mul_i32 s22, {W}, {WCT}")
    a("s_lshl_b32 s23, s28, 10")
    a("s_add_u32 s22, s22, s23")
    a("s_add_u32 s22, s22, s29")
    a("s_mov_b32 s100, s22")
    a(f"s_mov_b32 s101, {8*WCT}")
    a("s_waitcnt lgkmcnt(0)")
    gpack(a, RES, G0)
    gpack(a, RES + 4, G0 + 8)
    gpack(a, R, G0 + 16)
    a("s_branch L_prep_done")
    a.lab("L_pn")
    x0_dma(a)
    a.lab("L_prep_done")
    a(f"s_and_b32 s24, {sI}, 8")
    a("s_cmp_eq_u32 s24, 0")
    a("s_cbranch_scc1 L_pd_nokv")
    a(f"v_lshlrev_b32 v4, 1, v{vT}")
    a(f"s_cmp_ge_u32 {sI}, 16")
    a("s_cselect_b64 vcc, -1, 0")
    a(f"s_mul_i32 s23, {W}, 576")
    a(f"s_add_u32 s23, s23, {L_RAW}")
    a("v_cndmask_b32 v4, v4, v12, vcc")
    a(f"v_mul_u32_u24 v5, {8*36}, v{vH}")
    a("v_add3_u32 v4, v4, v5, s23")
    a(f"v_cmp_gt_u32 vcc, 18, v{vT}")
    a(f"s_lshl_b32 s23, {W}, 10")
    a(f"v_add_u32 v5, s23, v{vL16}")
    a("v_cndmask_b32 v4, v11, v4, vcc")
    for r in range(5):
        for j in range(8):
            a(f"ds_read_u16 v{G0+8*r+j}, v4 offset:{r*8*576+j*36}")
        if r % 2 == 1: a("s_waitcnt lgkmcnt(0)")
    a("s_waitcnt lgkmcnt(0)")
    for r in range(5):
        gpack(a, G0 + 8 * r, G0 + 8 * r)
        a(f"ds_write_b128 v5, {vr(G0+8*r,4)} offset:{r*8192}")
    a.lab("L_pd_nokv")
    a("s_mov_b32 s8, s48")
    a("s_mov_b32 s9, s49")
    a(f"s_mov_b32 s10, {2048*1152}")
    a(f"v_mov_b32 v5, {L_FLAG}")
    a(f"s_cmp_lg_u32 {W}, 7")
    a("s_cbranch_scc1 L_pd_w")
    a("s_mov_b32 s21, 0")
    a.lab("L_pd_poll")
    a("buffer_load_dword v4, off, s[56:59], 0 sc1")
    a("s_add_u32 s21, s21, 1")
    a(f"s_cmp_gt_u32 s21, {sLIM}")
    a("s_waitcnt vmcnt(0)")
    a("s_cbranch_scc1 L_pd_got")
    a("v_cmp_eq_u32 vcc, 0, v4")
    a("s_cbranch_vccnz L_pd_poll")
    a.lab("L_pd_got")
    a("ds_write_b32 v5, v4")
    a("v_mov_b32 v4, 0")
    a("ds_write_b32 v5, v4 offset:4")
    a.lab("L_pd_w")
    a("s_waitcnt vmcnt(0) lgkmcnt(0)")
    a("s_barrier")
    a("s_mov_b32 s33, 0")
    a(f"ds_read_b32 v{vNONCE}, v5")
    a("s_waitcnt lgkmcnt(0)")
    a(f"v_readfirstlane_b32 {sNONCE}, v{vNONCE}")
    a("s_getreg_b32 s34, hwreg(HW_REG_XCC_ID)")
    a("s_lshl_b32 s34, s34, 1")
    a(f"s_add_u32 s34, s34, {sNONCE}")
    a(f"s_cmp_lg_u32 {W}, 1")
    a("s_cbranch_scc1 L_nocensus")
    a("v_mov_b32 v5, s34")
    a(f"v_lshlrev_b32 v4, 3, v{vL16}")
    a(f"s_lshl_b32 s22, {sX}, 12")
    a(f"s_lshl_b32 s23, {sI}, 7")
    a("s_add_u32 s22, s22, s23")
    a(f"s_add_u32 s22, s22, {FL+20:#x}")
    a("s_mov_b64 exec, 1")
    a(f"buffer_store_dword v5, off, {WS}, s22 sc1")
    a(f"s_mul_i32 s22, {sX}, {BLK}")
    a(f"s_mul_i32 s23, {sI}, 640")
    a("s_add_u32 s22, s22, s23")
    a(f"s_add_u32 s22, s22, {KVL:#x}")
    a("s_mov_b64 exec, 31")
    a(f"buffer_load_dword v100, v4, {WS}, s22 offen sc1")
    a("s_mov_b64 exec, -1")
    a.lab("L_nocensus")

    a(f"s_cmp_lg_u32 {W}, 3")
    a("s_cbranch_scc1 L_pd_noflag")
    a("s_cmp_ge_u32 s2, 36")
    a("s_cbranch_scc1 L_pd_noflag")
    prep_flag(a)
    a.lab("L_pd_noflag")
    stamp(a, "prep_done")

def wa_role(a, skip):
    a(f"s_cmp_lt_u32 {W}, 4")
    a(f"s_cbranch_scc1 {skip}")
    a(f"s_lshr_b32 s23, {sI}, 2")
    a("s_mul_i32 s22, s23, 3")
    a(f"s_add_u32 s22, s22, {W}")
    a("s_sub_u32 s22, s22, 5")
    a(f"s_cmp_lg_u32 {W}, 4")
    l = a.nl("Lwa")
    a(f"s_cbranch_scc1 {l}")
    a("s_and_b32 s24, s23, 2")
    a("s_cmp_eq_u32 s24, 0")
    a(f"s_cbranch_scc1 {skip}")
    a("s_lshr_b32 s22, s23, 2")
    a("s_add_u32 s22, s22, 24")
    a.lab(l)

def wa_issue(a):
    a(f"s_mul_i32 s22, s22, {WCT}")
    a(f"s_add_u32 s22, s22, {WA_OFF:#x}")
    r_loads(a, WS, "s22", 0, 36)

QM = 24
QE = 28
S_ = [36, 52]
OC = 68
KM = 84
KE = 88
VA, VB = 92, 96
vKa, vKe, vVa = 8, 9, 10

FAIR = 3
CODEPF = 1
LSTART = 0
BPF = 36
WEARLY = 12
def body(a, cur, rdKM=None, rdKE=None, rdVa=None, rdVb=None, u=0, qk=True, pv1=True, cinit=None, ke64=True, pvwait=2,
         extra=(), fair=None, ozero=False):
    s, n = S_[cur], S_[cur ^ 1]
    e = lambda r: a(f"v_exp_f32 v{s+r}, v{s+r}")
    c = lambda p: a(f"v_cvt_pk_bf16_f32 v{s+p+(4 if p >= 4 else 0)}, v{s+2*p}, v{s+2*p+1}")
    ad = lambda x, d: (f"v{x[0]} offset:{x[1]}" if isinstance(x, tuple) else f"v{d} offset:{x}")
    if fair is not None: a(f"s_setprio {fair[0]}")
    e(0); e(1)
    if pv1:
        a(f"s_waitcnt lgkmcnt({pvwait})")
        a(f"v_mfma_f32_32x32x16_bf16 {vr(OC,16)}, {vr(VB,4)}, {vr(n+8,4)}, {vr(OC,16)}")
    if rdVb is not None:
        a(f"ds_read_b128 {vr(VB,4)}, {ad(rdVb, vVa)}")
    if cinit is not None:
        cinit(n)
    e(2); e(3); e(4); c(0)
    if qk:
        a("s_waitcnt lgkmcnt(2)")
        a(f"v_mfma_f32_32x32x16_bf16 {vr(n,16)}, {vr(KM,4)}, {vr(QM,4)}, {vr(n,16) if cinit is not None else 0}")
    if rdKM is not None:
        a(f"ds_read_b128 {vr(KM,4)}, {ad(rdKM, vKa)}")
    e(5); e(6); e(7); c(1); c(2)
    if qk:
        a(f"v_mfma_f32_32x32x8_bf16 {vr(n,16)}, {vr(KE,2)}, {vr(QE+2*u,2)}, {vr(n,16)}")
    if rdKE is not None:
        a(f"ds_read_b64 {vr(KE,2)}, {ad(rdKE, vKe)}" if ke64 else f"ds_read_b32 v{KE}, {ad(rdKE, vKe)}")
    for x in extra: a(x)
    if fair is not None and fair[1] != fair[0]: a(f"s_setprio {fair[1]}")
    c(3); e(8); e(9); e(10); e(11); c(4)
    later = (rdVb is not None) + (rdKM is not None) + (rdKE is not None)
    a(f"s_waitcnt lgkmcnt({min(later, 2)})")
    a(f"v_mfma_f32_32x32x16_bf16 {vr(OC,16)}, {vr(VA,4)}, {vr(s,4)}, {0 if ozero else vr(OC,16)}")
    if rdVa is not None:
        a(f"ds_read_b128 {vr(VA,4)}, {ad(rdVa, vVa)}")
    e(12); e(13); e(14); e(15); c(5); c(6); c(7)

def tail_pv1(a, cur):
    a("s_waitcnt lgkmcnt(0)")
    a("s_nop 0")
    a(f"v_mfma_f32_32x32x16_bf16 {vr(OC,16)}, {vr(VB,4)}, {vr(S_[cur]+8,4)}, {vr(OC,16)}")

def v_addr(a, base):
    a(f"v_mul_u32_u24 v{vVa}, 304, v{vH}")
    a(f"v_min_u32 v4, 18, v{vT}")
    a(f"v_lshl_add_u32 v{vVa}, v4, 4, v{vVa}")
    a(f"v_add_u32 v{vVa}, {base}, v{vVa}")
    a(f"v_cmp_ge_u32 vcc, 18, v{vT}")
    a(f"v_cmp_eq_u32 s[62:63], 28, v{vT}")
    a("s_or_b64 vcc, vcc, s[62:63]")
    a(f"v_mov_b32 v4, {LOOB:#x}")
    a("s_nop 0")
    a(f"v_cndmask_b32 v{vVa}, v4, v{vVa}, vcc")

def attn_finish(a, tag, sT, sHead, OO):
    a("s_nop 12")
    a(f"v_cmp_eq_u32 vcc, 0, v{vH}")
    a("s_nop 1")
    a(f"v_cndmask_b32 v4, v{OC+12}, v{OC+10}, vcc")
    a(f"v_cmp_le_f32 vcc, {f2u(2.0**-60):#x}, v4")
    a(f"v_mov_b32 v5, {f2u(2.0**60):#x}")
    a("v_cmp_le_f32 s[62:63], v4, v5")
    a("s_and_b64 vcc, vcc, s[62:63]")
    a("s_cmp_eq_u64 vcc, -1")
    a(f"s_cbranch_scc0 L_{tag}_slow")
    if FORCESLOW: a(f"s_branch L_{tag}_slow")
    a.lab(f"L_{tag}_fin")
    a("v_rcp_f32 v4, v4")
    a("s_nop 0")
    for r in range(10):
        a(f"v_mul_f32 v{OC+r}, v4, v{OC+r}")
    pack(a, OC, 5)
    a(f"s_mul_i32 s24, {sT}, {XT}")
    a(f"s_add_u32 s24, s24, {OO:#x}")
    a(f"s_lshl_b32 s27, {sHead}, 10")
    a("s_add_u32 s27, s27, s24")
    a(f"s_lshr_b32 s25, {sHead}, 2")
    a("s_lshl_b32 s25, s25, 9")
    a(f"s_and_b32 s26, {sHead}, 3")
    a("s_lshl_b32 s26, s26, 2")
    a("s_add_u32 s25, s25, s26")
    a("s_add_u32 s25, s25, s24")
    a(f"s_add_u32 s25, s25, {32*1024}")
    a(f"v_lshlrev_b32 v4, 30, v{vH}")
    a(f"v_lshl_add_u32 v4, v{vT}, 4, v4")
    lstore(a, [f"buffer_store_dwordx4 {vr(OC,4)}, v{vL16}, {WS}, s27 offen",
               f"buffer_store_dword v{OC+4}, v4, {WS}, s25 offen"])

def mask_init(a, dst, diag):
    for r in range(16):
        m = f"s[{MASK+2*r}:{MASK+2*r+1}]"
        if diag: a(f"v_cndmask_b32 v{dst+r}, v11, 0, {m}")
        else:    a(f"v_cndmask_b32 v{dst+r}, 0, v11, {m}")

def slow_qk(a, u, cin):
    s = S_[0]
    a("s_waitcnt lgkmcnt(0)")
    a("s_nop 1")
    a(f"v_mfma_f32_32x32x16_bf16 {vr(s,16)}, {vr(KM,4)}, {vr(QM,4)}, {vr(s,16) if cin else 0}")
    a(f"v_mfma_f32_32x32x8_bf16 {vr(s,16)}, {vr(KE,2)}, {vr(QE+2*u,2)}, {vr(s,16)}")
    a("s_nop 12")

def slow_max(a):
    s = S_[0]
    for i in range(8):
        a(f"v_max3_f32 v7, v{s+2*i}, v{s+2*i+1}, v7")

def slow_pv(a):
    s = S_[0]
    for r in range(16):
        a(f"v_sub_f32 v{s+r}, v{s+r}, v7")
    for r in range(16):
        a(f"v_exp_f32 v{s+r}, v{s+r}")
    a("s_nop 0")
    pack(a, s, 8)
    a("s_nop 1")
    a(f"v_mfma_f32_32x32x16_bf16 {vr(OC,16)}, {vr(VA,4)}, {vr(s,4)}, {vr(OC,16)}")
    a(f"v_mfma_f32_32x32x16_bf16 {vr(OC,16)}, {vr(VB,4)}, {vr(s+4,4)}, {vr(OC,16)}")
    a("s_nop 7")

def slow_mid(a):
    a("v_mov_b32 v6, v7")
    a("s_nop 1")
    a("v_permlane32_swap_b32 v6, v7")
    a("s_nop 1")
    a("v_max_f32 v7, v6, v7")
    for r in range(16):
        a(f"v_mov_b32 v{OC+r}, 0")

def slow_end(a, tag):
    a("s_nop 12")
    a(f"v_cmp_eq_u32 vcc, 0, v{vH}")
    a("s_nop 1")
    a(f"v_cndmask_b32 v4, v{OC+12}, v{OC+10}, vcc")
    a(f"s_branch L_{tag}_fin")

def out_role(a):
    a(f"s_and_b32 s42, {sI}, 7")
    a(f"s_lshl_b32 s43, {sX}, 3")
    a("s_add_u32 s42, s42, s43")
    a(f"s_lshr_b32 s44, {sI}, 3")
    a("s_mul_i32 s43, s44, 9")
    a("s_add_u32 s43, s43, 1")
    a("s_lshr_b32 s43, s43, 1")
    a(f"s_add_u32 s43, s43, {W}")
    a("s_and_b32 s44, s44, 1")
    a("s_sub_u32 s44, 5, s44")

def gen_pha(a, slow):
    a.lab("L_it")
    stamp(a, "A_begin")
    a(f"s_and_b32 s45, {sI}, 3")
    a("s_lshl_b32 s45, s45, 1")
    a(f"s_lshl_b32 s46, {sX}, 3")
    a("s_add_u32 s45, s45, s46")
    a(f"s_lshr_b32 s46, {sI}, 2")
    a(f"s_cmp_ge_u32 {W}, 5")
    a("s_cbranch_scc1 L_A_q2")
    a(f"s_cmp_eq_u32 {W}, 4")
    a("s_cbranch_scc1 L_A_kv")
    a(f"s_cmp_ge_u32 {W}, 2")
    a("s_cbranch_scc1 L_A_st")
    a(f"s_add_u32 s22, s45, {W}")
    a(f"s_cmp_eq_u32 {sIT}, 0")
    a("s_cbranch_scc1 L_A_ld0")
    a("s_lshl_b32 s23, s22, 9")
    a(f"s_add_u32 s23, s23, {FXA:#x}")
    poll(a, IT, "s23", 4)
    stamp(a, "A_xflag")
    a(f"s_mul_i32 s22, s22, {XT}")
    a(f"s_add_u32 s22, s22, {XS:#x}")
    a(f"s_mul_i32 s23, {W}, {XT}")
    a(f"s_add_u32 m0, s23, {L_XA}")
    dma(a, WS, "s22", 36, 1024, 1024)
    a.lab("L_A_ld2")
    for n in (24, 12, 0):
        a(f"s_waitcnt vmcnt({n})")
        a("s_barrier")
        if n == 24: stamp(a, "A_bar1")
    a.lab("L_A_ld3")
    a(f"s_cmp_lg_u32 {W}, 0")
    a("s_cbranch_scc1 L_A_q")
    a(f"s_lshl_b32 s23, {sX}, 12")
    a(f"s_add_u32 s23, s23, {FKAL:#x}")
    poll(a, IT, "s23", 16)
    stamp(a, "A_kvflag")
    a(f"s_mul_i32 s22, {sX}, {BLK}")
    a(f"s_add_u32 s22, s22, {KVL:#x}")
    a("s_mov_b32 m0, 0")
    dma(a, WS, "s22", 19, 1024, 1024, half_last=True)
    a("s_waitcnt vmcnt(0)")
    a("s_branch L_A_q")
    a.lab("L_A_ld0")
    for n in range(3):
        a("s_barrier")
        if n == 0: stamp(a, "A_bar1")
    a("s_branch L_A_ld3")
    a.lab("L_A_idle")
    for n in range(3):
        a("s_barrier")
    a("s_branch L_A_q")
    a.lab("L_A_st")
    a(f"s_sub_u32 s24, {W}, 2")
    a(f"s_cmp_eq_u32 {sIT}, 0")
    a("s_cbranch_scc0 L_A_st1")
    a(f"s_mul_i32 s25, s24, {XT}")
    a(f"s_add_u32 s25, s25, {L_XA}")
    xaddr(a, 40, "s25")
    a(f"v_mov_b32 v{STR}, 0")
    a(f"v_mov_b32 v{STR+1}, 0")
    a("s_mov_b32 s25, 0")
    a.lab("L_A_st0")
    for k in range(12):
        a(f"ds_read_b128 {vr(R+4+4*k,4)}, v{40+(k&3)} offset:{(k>>2)*4096}")
    for k in range(12):
        a(f"s_waitcnt lgkmcnt({11-k})")
        for d in range(4):
            a(f"v_dot2_f32_bf16 v{STR}, v{R+4+4*k+d}, s60, v{STR}")
            a(f"v_dot2_f32_bf16 v{STR+1}, v{R+4+4*k+d}, v{R+4+4*k+d}, v{STR+1}")
    for q in range(4):
        a(f"v_add_u32 v{40+q}, {3*4096}, v{40+q}")
    a("s_add_u32 s25, s25, 1")
    a("s_cmp_lt_u32 s25, 3")
    a("s_cbranch_scc1 L_A_st0")
    a("s_barrier")
    a(f"v_permlane32_swap_b32 v{STR}, v{STR+1}")
    a("s_nop 1")
    a(f"v_add_f32 v{STR}, v{STR}, v{STR+1}")
    a("s_barrier")
    a("s_branch L_A_st2")
    a.lab("L_A_st1")
    a("s_add_u32 s25, s45, s24")
    a("s_barrier")
    stats_load(a, STR, "s25", STS)
    a("s_barrier")
    a("s_waitcnt vmcnt(0)")
    stats_sum(a, STR)
    a.lab("L_A_st2")
    stats_compute(a, STR, XEXT, RSTD)
    a("s_lshl_b32 s24, s24, 8")
    a(f"s_add_u32 s24, s24, {L_MISC}")
    a(f"v_lshl_add_u32 v4, v{vT}, 2, s24")
    a(f"ds_write_b32 v4, v{RSTD}")
    a(f"ds_write_b32 v4, v{XEXT} offset:128")
    a("s_waitcnt lgkmcnt(0)")
    a("s_barrier")
    a("s_branch L_A_q")
    def bar1():
        l = a.nl("Lb")
        a(f"s_cmp_eq_u32 {sIT}, 0")
        a(f"s_cbranch_scc1 {l}")
        a("s_barrier")
        a.lab(l)
    def gemm3(bases, swap, pre, staged):
        a(f"v_mov_b32 v{CS}, 0")
        a(f"v_mov_b32 v{XEXT+1}, 0")
        a(f"v_mov_b32 v{XEXT+3}, 0")
        if staged:
            def h2():
                bar1(); pre()
            gemm_stage(a, bases, 0, 36, swap, True, quad=True, hooks={0: bar1, 12: bar1, 20: (lambda: census_issue(a, 44)), 24: h2})
        else:
            for _ in range(3): bar1()
            gemm_stage(a, bases, 0, 36, swap, True, cs=True, pre=pre, quad=True)
    def first_w():
        l, e = a.nl("Lfw"), a.nl("Lfe")
        a(f"s_cmp_eq_u32 {sIT}, 0")
        a(f"s_cbranch_scc0 {l}")
        for _ in range(3): a("s_barrier")
        a(f"s_mov_b32 s23, {FPREP:#x}")
        poll(a, WS, "s23", 36, vtmp=4, voff=13)
        stamp(a, "A_wflag")
        wa_role(a, l)
        a(f"s_mul_i32 s40, s22, {WCT}")
        a(f"s_add_u32 s40, s40, {WA_OFF:#x}")
        r_loads(a, WS, "s40", 0, 12)
        a(f"s_branch {e}")
        a.lab(l)
        a("s_waitcnt vmcnt(0)")
        a.lab(e)
    a.lab("L_A_kv")
    a("s_and_b32 s24, s46, 2")
    a("s_cmp_eq_u32 s24, 0")
    a("s_cbranch_scc1 L_A_idle")
    a("s_and_b32 s24, s46, 1")
    a("s_add_u32 s47, s45, s24")
    a("s_lshl_b32 s27, s24, 8")
    a(f"s_add_u32 s27, s27, {L_MISC}")
    a(f"s_mul_i32 s24, s24, {XT}")
    a(f"s_add_u32 s24, s24, {L_XA}")
    xaddr(a, 40, "s24")
    a(f"v_lshl_add_u32 v6, v{vT}, 2, s27")
    a(f"v_lshl_add_u32 v5, v{vH}, 4, s27")
    a("s_lshr_b32 s28, s47, 2")
    a(f"s_mul_i32 s28, s28, {GRP}")
    a(f"s_add_u32 s28, s28, {KVA:#x}")
    a("s_and_b32 s29, s47, 3")
    a("s_setprio 3")
    a("s_waitcnt vmcnt(0)")
    a(f"s_cmp_eq_u32 {sIT}, 0")
    a("s_cbranch_scc0 L_A_kv1")
    a(f"v_mov_b32 v{CS}, 0")
    for k0 in range(0, 36, 12):
        for ks in range(k0, k0 + 12):
            a(f"ds_read_b128 {vr(R+4*ks,4)}, v{vL16} offset:{ks*1024}")
        for ks in range(k0, k0 + 12):
            a(f"s_waitcnt lgkmcnt({k0 + 11 - ks})")
            cs_dot(a, ks)
    cs_pack(a, WEXT)
    for _ in range(3): a("s_barrier")
    a.lab("L_A_kv1")
    a("s_cmp_ge_u32 s46, 4")
    a("s_cbranch_scc1 L_A_v")
    def pre_k():
        a(f"ds_read_b32 v{RSTD}, v6")
        a(f"ds_read_b32 v{XEXT}, v6 offset:128")
    gemm3([40], False, pre_k, True)
    a(f"v_mfma_f32_32x32x8_bf16 {vr(ACC,16)}, {vr(WEXT,2)}, {vr(XEXT,2)}, {vr(ACC,16)}")
    a("s_lshl_b32 s30, s29, 10")
    a("s_add_u32 s30, s30, s28")
    a(f"s_add_u32 s31, s30, {KVL-KVA:#x}")
    a("s_lshr_b32 s24, s29, 1")
    a("s_lshl_b32 s24, s24, 8")
    a("s_and_b32 s25, s29, 1")
    a("s_lshl_b32 s25, s25, 2")
    a("s_add_u32 s24, s24, s25")
    a("s_add_u32 s24, s24, s28")
    a("s_add_u32 s24, s24, 4096")
    a(f"s_add_u32 s25, s24, {KVL-KVA:#x}")
    a(f"v_lshlrev_b32 v4, 30, v{vH}")
    a(f"v_lshl_add_u32 v4, v{vT}, 3, v4")
    for r in range(10):
        a(f"v_mul_f32 v{ACC+r}, v{RSTD}, v{ACC+r}")
    pack(a, ACC, 5)
    a("s_waitcnt vmcnt(0)")
    census_eval(a, 44, sLOC)
    lstore(a, [f"buffer_store_dwordx4 {vr(ACC,4)}, v{vL16}, {WS}, s31 offen", f"buffer_store_dword v{ACC+4}, v4, {WS}, s25 offen"])
    a("s_add_u32 s30, s30, s33")
    a("s_add_u32 s24, s24, s33")
    a(f"buffer_store_dwordx4 {vr(ACC,4)}, v{vL16}, {IT}, s30 offen sc1")
    a(f"buffer_store_dword v{ACC+4}, v4, {IT}, s24 offen sc1")
    a("s_mov_b32 s26, 0")
    a("s_branch L_A_kvflag")
    a.lab("L_A_v")
    def pre_v():
        a(f"ds_read_b32 v{XEXT}, v6 offset:128")
        for q in range(4):
            a(f"ds_read_b128 {vr(STR+4*q,4)}, v5 offset:{32*q}")
    gemm3([40], True, pre_v, True)
    a(f"v_mfma_f32_32x32x8_bf16 {vr(ACC,16)}, {vr(XEXT,2)}, {vr(WEXT,2)}, {vr(ACC,16)}")
    a(f"s_mul_i32 s30, s29, {VT}")
    a("s_add_u32 s30, s30, s28")
    a("s_add_u32 s30, s30, 4608")
    a(f"s_add_u32 s31, s30, {KVL-KVA:#x}")
    a(f"v_mul_u32_u24 v4, 304, v{vH}")
    a(f"v_lshl_add_u32 v4, v{vT}, 4, v4")
    a(f"v_mov_b32 v5, {OOB:#x}")
    a(f"v_cmp_ge_u32 vcc, 18, v{vT}")
    a("s_nop 1")
    a("v_cndmask_b32 v4, v5, v4, vcc")
    a("s_nop 1")
    for r in range(16):
        a(f"v_mul_f32 v{ACC+r}, v{STR+r}, v{ACC+r}")
    pack(a, ACC, 8)
    a("s_mov_b32 s24, 0x40000")
    a("s_mov_b32 s25, 0x40000")
    a("s_mov_b64 exec, s[24:25]")
    for p in range(8):
        a(f"v_mov_b32 v{ACC+p}, s60")
    a("s_mov_b64 exec, -1")
    a("s_waitcnt vmcnt(0)")
    census_eval(a, 44, sLOC)
    lstore(a, [f"buffer_store_dwordx4 {vr(ACC,4)}, v4, {WS}, s31 offen", f"buffer_store_dwordx4 {vr(ACC+4,4)}, v4, {WS}, s31 offen offset:608"])
    a("s_add_u32 s30, s30, s33")
    for so in ("s30",):
        a(f"buffer_store_dwordx4 {vr(ACC,4)}, v4, {IT}, {so} offen sc1")
        a(f"buffer_store_dwordx4 {vr(ACC+4,4)}, v4, {IT}, {so} offen offset:608 sc1")
    a("s_mov_b32 s26, 128")
    a.lab("L_A_kvflag")
    stamp(a, "A_kvst")
    a("s_lshl_b32 s24, s47, 8")
    a("s_add_u32 s24, s24, s26")
    a(f"s_lshl_b32 s25, {sX}, 11")
    a("s_add_u32 s25, s25, s24")
    a(f"s_add_u32 s25, s25, {FKAL:#x}")
    a(f"s_add_u32 s24, s24, {FKA:#x}")
    a("s_waitcnt vmcnt(2)")
    stamp(a, "A_kvack")
    setflag(a, IT, "s25", local=True)
    a("s_waitcnt vmcnt(1)")
    setflag(a, IT, "s24")
    a("s_setprio 0")
    a("s_branch L_A_q")
    a.lab("L_A_q2")
    xaddr(a, 88, L_XA)
    for q in range(4):
        a(f"v_add_u32 v{92+q}, {XT}, v{88+q}")
    a(f"v_lshlrev_b32 v5, 2, v{vT}")
    a(f"v_add_u32 v5, {L_MISC}, v5")
    first_w()
    def pre_q():
        for t in range(2):
            a(f"ds_read_b32 v{RSTD+t}, v5 offset:{256*t}")
            a(f"ds_read_b32 v{XEXT+2*t}, v5 offset:{256*t+128}")
    gemm3([88, 92], False, pre_q, False)
    for t in range(2):
        a(f"v_mfma_f32_32x32x8_bf16 {vr(ACC+16*t,16)}, {vr(WEXT,2)}, {vr(XEXT+2*t,2)}, {vr(ACC+16*t,16)}")
    for t in range(2):
        a(f"v_mul_f32 v{RSTD+t}, {f2u(QSCALE):#x}, v{RSTD+t}")
    a(f"s_sub_u32 s24, {W}, 5")
    a(f"s_mul_i32 s24, s24, {4*1152}")
    a(f"s_add_u32 s24, s24, {L_Q}")
    a(f"v_add_u32 v4, s24, v{vL16}")
    a(f"v_mul_u32_u24 v5, {4*1152}, v{vH}")
    a(f"v_lshl_add_u32 v5, v{vT}, 2, v5")
    a(f"v_add_u32 v5, {L_Q+1024}, v5")
    a("s_nop 3")
    for t in range(2):
        for r in range(16):
            a(f"v_mul_f32 v{ACC+16*t+r}, v{RSTD+t}, v{ACC+16*t+r}")
        pack(a, ACC + 16 * t, 8)
    a(f"s_cmp_eq_u32 {W}, 7")
    a("s_cbranch_scc1 L_A_qext")
    for t in range(2):
        for hh in range(2):
            a(f"ds_write_b128 v4, {vr(ACC+16*t+4*hh,4)} offset:{(2*hh+t)*1152}")
    a("s_branch L_A_q")
    a.lab("L_A_qext")
    for t in range(2):
        for p in range(2):
            a(f"ds_write_b32 v5, v{ACC+16*t+p} offset:{(2*p+t)*1152}")
    a.lab("L_A_q")
    a("s_waitcnt vmcnt(0) lgkmcnt(0)")
    a("s_barrier")
    stamp(a, "A_attn0")
    a(f"v_lshlrev_b32 v11, 3, v{vL16}")
    a(f"s_add_u32 s47, {sX}, {W}")
    a("s_and_b32 s47, s47, 7")
    a("s_lshl_b32 s23, s47, 11")
    a(f"s_add_u32 s23, s23, {FKA:#x}")
    a(f"v_mov_b32 v12, v{vNONCE}")
    set_exec(a, 0xffff)
    poll_issue(a, IT, "s23", 16, 12, 11)
    a("s_mov_b64 exec, -1")
    a(f"s_mul_i32 s24, {W}, 1152")
    a(f"s_add_u32 s24, s24, {L_Q}")
    a(f"v_add_u32 v4, s24, v{vL16}")
    a(f"v_lshl_add_u32 v5, v{vT}, 2, s24")
    a(f"ds_read_b128 {vr(QM,4)}, v4")
    a(f"ds_read_b32 v6, v5 offset:1024")
    a(f"v_mov_b32 v{vKa}, v{vL16}")
    a(f"v_lshlrev_b32 v{vKe}, 8, v{vH}")
    a(f"v_lshl_add_u32 v{vKe}, v{vT}, 3, v{vKe}")
    a(f"ds_read_b128 {vr(KM,4)}, v{vKa}")
    a(f"ds_read_b64 {vr(KE,2)}, v{vKe} offset:4096")
    v_addr(a, 4608)
    a(f"v_cmp_eq_u32 vcc, 0, v{vH}")
    for r in (1, 2, 5, 6):
        a(f"v_mov_b32 v{QE+r}, 0")
    a("s_waitcnt lgkmcnt(0)")
    a(f"v_cndmask_b32 v{QE}, 0, v6, vcc")
    a(f"v_cndmask_b32 v{QE+3}, 0, v6, vcc")
    a(f"v_cndmask_b32 v{QE+4}, v6, 0, vcc")
    a(f"v_cndmask_b32 v{QE+7}, v6, 0, vcc")
    a(f"v_mfma_f32_32x32x16_bf16 {vr(S_[0],16)}, {vr(KM,4)}, {vr(QM,4)}, 0")
    a(f"v_mfma_f32_32x32x8_bf16 {vr(S_[0],16)}, {vr(KE,2)}, {vr(QE,2)}, {vr(S_[0],16)}")
    a(f"ds_read_b128 {vr(KM,4)}, v{vKa} offset:1024")
    a(f"ds_read_b128 {vr(VA,4)}, v{vVa}")
    a(f"s_and_b32 s22, {W}, 1")
    a("s_add_u32 s45, s45, s22")
    a("s_lshl_b32 s46, s46, 2")
    a(f"s_lshr_b32 s22, {W}, 1")
    a("s_add_u32 s46, s46, s22")
    out_role(a)
    a(f"s_lshl_b32 s41, {sI}, 1")
    a(f"s_add_u32 s41, s41, {W}")
    a("s_sub_u32 s41, s41, 5")
    a(f"s_mul_i32 s41, s41, {WCT}")
    a(f"s_add_u32 s41, s41, {WB_OFF:#x}")
    a(f"s_sub_u32 s22, {W}, 5")
    a("s_cmp_lt_u32 s22, 2")
    a(f"s_cselect_b32 s41, s41, {OOB:#x}")
    a(f"s_mul_i32 s22, s43, {XT}")
    a(f"s_add_u32 s22, s22, {WOA_OFF:#x}")
    a(f"s_cmp_lt_u32 {W}, s44")
    a("s_cselect_b32 s41, s22, s41")
    base = {vKa: 0, vKe: 0, vVa: 0}
    def off(reg, o):
        if o - base[reg] > 65535:
            d = 6 * GRP
            a(f"v_add_u32 v{reg}, {d}, v{reg}")
            base[reg] += d
        assert 0 <= o - base[reg] <= 65535
        return o - base[reg]
    def call_if(lo, hi, target):
        l = a.nl("Lc")
        if lo == hi:
            a(f"s_cmp_eq_u32 {W}, {lo}")
        else:
            a(f"s_sub_u32 s22, {W}, {lo}")
            a(f"s_cmp_le_u32 s22, {hi-lo}")
        a(f"s_cbranch_scc0 {l}")
        a(f"s_call_b64 s[30:31], {target}")
        a.lab(l)
    ko = lambda t: (t >> 2) * GRP + (t & 3) * 1024
    vo = lambda t: (t >> 2) * GRP + (t & 3) * VT
    for j in range(64):
        if j + 1 < 64: off(vVa, vo(j + 1))
        kw = dict(rdKM=off(vKa, ko(j + 2)) if j + 2 < 64 else None,
                  rdKE=off(vKe, ((j + 2) >> 2) * GRP + 4096) if (j + 2 < 64 and (j + 2) % 4 == 0) else None,
                  rdVa=off(vVa, vo(j + 1)) if j + 1 < 64 else None, rdVb=off(vVa, vo(j) + 608))
        ex = []
        if 38 <= j < 56:
            for ks in (2 * (j - 38), 2 * (j - 38) + 1):
                if ks % 4 == 0: ex.append(f"s_add_u32 s61, s41, {(ks//4)*4096}")
                ex.append(f"buffer_load_dwordx4 {vr(R+4*ks,4)}, v{vL16}, {WS}, s61 offen offset:{(ks%4)*1024}")
        body(a, j & 1, u=(j + 1) & 3, qk=(j < 63), pv1=(j > 0), pvwait=(1 if j == 63 else 2), extra=ex, ozero=(j == 0),
             fair=[None, (1, 0), (3 - (j & 3),) * 2, (3 - 2 * (j & 1), 2 - 2 * (j & 1)), (3 - ((j >> 1) & 3),) * 2][FAIR], **kw)
        if j == 0: call_if(7, 7, "L_A_touch0")
        if j == 1: call_if(1, 2, "L_A_fetch")
        if j == 5:
            a("s_waitcnt vmcnt(0)")
            a("s_barrier")
            stamp(a, "A_n2b")
            call_if(3, 4, "L_A_fetch")
            call_if(0, 2, "L_defer")
        if j == 9: call_if(5, 6, "L_A_fetch")
        if j == 13: call_if(7, 7, "L_A_fetch")
        if j == 21:
            a("s_waitcnt vmcnt(0)")
            a("s_barrier")
            stamp(a, "A_n4b")
            stamp(a, "A_n4b", True)
            call_if(1, 1, "L_A_pflag")
        if j == 22: call_if(0, 3, "L_A_touch")
        if j == 26: call_if(4, 6, "L_A_touch")
        if j == 34: call_if(7, 7, "L_A_touch")
        if j == 27: call_if(7, 7, "L_A_check0")
        if j == 32: call_if(7, 7, "L_A_check")
        if j == 37:
            l = a.nl("Lc")
            a(f"s_cmp_eq_u32 {sIT}, 0")
            a(f"s_cbranch_scc0 {l}")
            a(f"s_mov_b32 s50, {L_FLAG+4}")
            a("s_mov_b32 s51, 1")
            a("s_call_b64 s[30:31], L_B_wait")
            a(f"v_readfirstlane_b32 {sLOC}, v6")
            a.lab(l)
    tail_pv1(a, 1)
    a("s_setprio 0")
    stamp(a, "A_attn1")
    stamp(a, "A_attn1", True)
    attn_finish(a, "A", "s45", "s46", OS)
    a("s_waitcnt vmcnt(0)")
    a("s_barrier")
    a(f"s_cmp_lg_u32 {W}, 0")
    a("s_cbranch_scc1 L_A_end")
    a("s_lshr_b32 s22, s45, 1")
    a("s_lshl_b32 s22, s22, 10")
    a("s_lshl_b32 s23, s46, 5")
    a("s_add_u32 s22, s22, s23")
    a(f"s_add_u32 s22, s22, {FOA:#x}")
    setflag(a, IT, "s22", local=True)
    a.lab("L_A_end")
    stamp(a, "A_end")
    b = slow
    RET = "s_setpc_b64 s[30:31]"
    b.lab("L_defer")
    b(f"s_cmp_eq_u32 {sIT}, 0")
    b("s_cbranch_scc0 L_ret")
    b(f"buffer_store_dwordx4 {vr(RES,4)}, v{vL16}, {WS}, s100 offen sc1")
    b("s_add_u32 s100, s100, s101")
    b(f"buffer_store_dwordx4 {vr(RES+4,4)}, v{vL16}, {WS}, s100 offen sc1")
    b("s_cmp_lt_u32 s2, 180")
    b("s_cbranch_scc1 L_ret")
    b(f"s_cmp_ge_u32 {W}, 2")
    b("s_cbranch_scc1 L_ret")
    b("s_add_u32 s100, s100, s101")
    b(f"buffer_store_dwordx4 {vr(R,4)}, v{vL16}, {WS}, s100 offen sc1")
    b.lab("L_ret")
    b(RET)
    b.lab("L_A_pflag")
    b(f"s_cmp_eq_u32 {sIT}, 0")
    b("s_cbranch_scc0 L_ret")
    b("s_cmp_lt_u32 s2, 36")
    b("s_cbranch_scc1 L_ret")
    prep_flag(b)
    b(RET)
    b.lab("L_A_fetch")
    b("s_waitcnt vmcnt(0)")
    poll_test(b, 16, 12)
    b("s_cbranch_vccz L_A_fetch2")
    b("s_lshl_b32 s23, s47, 11")
    b(f"s_add_u32 s23, s23, {FKA:#x}")
    poll(b, IT, "s23", 16, vtmp=4, voff=11, setoff=False)
    b.lab("L_A_fetch2")
    b(f"s_mul_i32 s22, s47, {BLK}")
    b("s_add_u32 s22, s22, s33")
    b(f"s_mul_i32 m0, {W}, {BLK}")
    dma(b, IT, "s22", 19, 1024, 1024, half_last=True)
    b(f"s_cmp_ge_u32 {W}, 3")
    b("s_cbranch_scc1 L_defer")
    b(RET)
    b.lab("L_A_check0")
    b(f"s_cmp_eq_u32 {sIT}, 0")
    b("s_cbranch_scc0 L_ret")
    b(f"s_mov_b32 s22, {FPREP:#x}")
    poll_issue(b, WS, "s22", 256, 104, 11)
    census_issue(b, 108)
    b(RET)
    b.lab("L_A_check")
    b(f"s_cmp_eq_u32 {sIT}, 0")
    b("s_cbranch_scc0 L_ret")
    b("s_waitcnt vmcnt(0)")
    poll_test(b, 256, 104)
    b("s_cbranch_vccz L_A_check2")
    b(f"s_mov_b32 s22, {FPREP:#x}")
    poll(b, WS, "s22", 256, vtmp=4, voff=11, setoff=False)
    b.lab("L_A_check2")
    census_eval(b, 108, "s22")
    b("v_mov_b32 v4, s22")
    b(f"v_mov_b32 v5, {L_FLAG}")
    b("ds_write_b32 v5, v4 offset:4")
    b("s_waitcnt lgkmcnt(0)")
    b(RET)
    b.lab("L_A_touch0")
    b(f"s_cmp_eq_u32 {sIT}, 0")
    b("s_cbranch_scc0 L_ret")
    b(f"s_mov_b32 s22, {FPREP:#x}")
    poll_issue(b, WS, "s22", 256, 100, 11)
    b(RET)
    b.lab("L_A_touch")
    b(f"s_cmp_eq_u32 {sIT}, 0")
    b("s_cbranch_scc0 L_ret")
    b(f"s_mul_i32 s22, s42, {XT}")
    b("s_lshl_b32 s23, s43, 6")
    b("s_add_u32 s22, s22, s23")
    b(f"v_mul_u32_u24 v5, 1152, v{vT}")
    b(f"v_lshl_add_u32 v5, v{vH}, 4, v5")
    b(f"buffer_load_dwordx4 {vr(RES,4)}, v5, {X0}, s22 offen")
    b(f"buffer_load_dwordx4 {vr(RES+4,4)}, v5, {X0}, s22 offen offset:32")
    b(f"s_lshl_b32 s22, {sI}, 6")
    b(f"s_lshl_b32 s23, {sX}, 3")
    b("s_add_u32 s22, s22, s23")
    b(f"s_add_u32 s22, s22, {W}")
    b("s_lshl_b32 s23, s22, 7")
    b(f"s_add_u32 s23, s23, {FKB:#x}")
    b(f"s_mul_i32 s22, s22, {KVT}")
    b(f"s_add_u32 s22, s22, {KVB:#x}")
    set_exec(b, (1 << 20) - 1)
    b(f"buffer_load_dword v100, v11, {IT}, s22 offen sc1")
    b("s_mov_b64 exec, 1")
    b(f"buffer_load_dword v100, off, {IT}, s23 sc1")
    b("s_mov_b64 exec, -1")
    b(f"s_mul_i32 s22, s45, {XT}")
    b(f"s_add_u32 s22, s22, {OS:#x}")
    b("s_lshl_b32 s23, s46, 10")
    b("s_add_u32 s23, s23, s22")
    b(f"buffer_load_dwordx4 v[100:103], v{vL16}, {WS}, s23 offen sc1")
    b("s_lshr_b32 s23, s46, 3")
    b("s_lshl_b32 s23, s23, 10")
    b("s_add_u32 s23, s23, s22")
    b(f"s_add_u32 s23, s23, {32*1024}")
    b(f"buffer_load_dwordx4 v[100:103], v{vL16}, {WS}, s23 offen sc1")
    b(f"s_cmp_ge_u32 {W}, s44")
    b("s_cbranch_scc1 L_ret")
    b(f"s_mul_i32 s22, s42, {XT}")
    b("s_lshl_b32 s23, s43, 11")
    b("s_add_u32 s22, s22, s23")
    b(f"s_add_u32 s22, s22, {XS:#x}")
    b(f"buffer_load_dwordx4 v[100:103], v{vL16}, {WS}, s22 offen sc1")
    b(f"buffer_load_dwordx4 v[100:103], v{vL16}, {WS}, s22 offen offset:1024 sc1")
    b(f"s_mul_i32 s22, s42, {18*256}")
    b("s_lshl_b32 s23, s43, 8")
    b("s_add_u32 s22, s22, s23")
    b(f"s_add_u32 s22, s22, {STS:#x}")
    b(f"v_lshrrev_b32 v4, 2, v{vL16}")
    b(f"buffer_load_dword v100, v4, {WS}, s22 offen sc1")
    b(RET)
    b.lab("L_A_slow")
    for ps in range(2):
        b(f"v_mov_b32 v{vKa}, v{vL16}")
        b(f"v_lshlrev_b32 v{vKe}, 8, v{vH}")
        b(f"v_lshl_add_u32 v{vKe}, v{vT}, 3, v{vKe}")
        if ps == 0:
            b(f"v_mov_b32 v7, {f2u(float('-inf')):#x}")
        else:
            v_addr(b, 4608)
        b("s_mov_b32 s41, 0")
        b.lab(f"L_A_slow{ps}")
        b(f"ds_read_b64 {vr(KE,2)}, v{vKe} offset:4096")
        for u in range(4):
            b(f"ds_read_b128 {vr(KM,4)}, v{vKa} offset:{u*1024}")
            if ps:
                b(f"ds_read_b128 {vr(VA,4)}, v{vVa} offset:{u*VT}")
                b(f"ds_read_b128 {vr(VB,4)}, v{vVa} offset:{u*VT+608}")
            slow_qk(b, u, False)
            if ps: slow_pv(b)
            else: slow_max(b)
        b(f"v_add_u32 v{vKa}, {GRP}, v{vKa}")
        b(f"v_add_u32 v{vKe}, {GRP}, v{vKe}")
        b(f"v_add_u32 v{vVa}, {GRP}, v{vVa}")
        b("s_add_u32 s41, s41, 1")
        b("s_cmp_lt_u32 s41, 16")
        b(f"s_cbranch_scc1 L_A_slow{ps}")
        if ps == 0: slow_mid(b)
    slow_end(b, "A")

def gen_out(a, isB):
    tag = "OB" if isB else "OA"
    OO = OS
    a(f"s_cmp_lt_u32 {W}, s44")
    a(f"s_cbranch_scc1 L_{tag}_c")
    a(f"s_cmp_eq_u32 {W}, 7")
    a(f"s_cbranch_scc1 L_{tag}_ld")
    if not isB:
        a(f"s_cmp_eq_u32 {W}, 4")
        a(f"s_cbranch_scc1 L_{tag}_idle")
        a(f"s_sub_u32 s22, {W}, 5")
        a(f"s_mul_i32 s23, s22, {WCT}")
        a(f"s_add_u32 s23, s23, {L_WB}")
        a(f"v_add_u32 v4, s23, v{vL16}")
        a(f"v_mov_b32 v{CS}, 0")
        for ks in range(36):
            a(f"ds_write_b128 v4, {vr(R+4*ks,4)} offset:{ks*1024}")
        for _ in range(3): a("s_barrier")
        a(f"s_cmp_eq_u32 {sIT}, 0")
        a("s_cbranch_scc0 L_OA_cs")
        for ks in range(36):
            cs_dot(a, ks)
        cs_pack(a, RES)
        a.lab("L_OA_cs")
        a("s_lshl_b32 s22, s22, 8")
        a(f"s_add_u32 s22, s22, {L_WBX}")
        a(f"v_lshrrev_b32 v4, 2, v{vL16}")
        a("v_add_u32 v4, s22, v4")
        a(f"ds_write_b32 v4, v{RES}")
        a(f"v_mov_b32 v4, {L_FLAG+16}")
        for r in range(4): a(f"v_mov_b32 v{8+r}, 0")
        a("ds_write_b128 v4, v[8:11]")
        a("ds_write_b128 v4, v[8:11] offset:16")
        a("s_waitcnt lgkmcnt(0)")
        a(f"s_branch L_{tag}_e")
    else:
        a(f"s_cmp_eq_u32 {sIT}, 0")
        a(f"s_cbranch_scc0 L_{tag}_idle")
        wa_role(a, f"L_{tag}_idle")
        wa_issue(a)
    a.lab(f"L_{tag}_idle")
    for n in range(3):
        a("s_barrier")
    a(f"s_branch L_{tag}_e")
    a.lab(f"L_{tag}_ld")
    if not isB:
        a("s_lshr_b32 s23, s42, 1")
        a("s_lshl_b32 s23, s23, 10")
        a(f"s_add_u32 s23, s23, {FOA:#x}")
        poll(a, IT, "s23", 8)
    else:
        a(f"s_lshl_b32 s23, {sX}, 12")
        a(f"s_add_u32 s23, s23, {FOB:#x}")
        poll(a, IT, "s23", 32)
    stamp(a, tag + "_flag")
    a(f"s_mul_i32 s22, s42, {XT}")
    a(f"s_add_u32 s22, s22, {OO:#x}")
    a("s_mov_b32 m0, 0")
    dma(a, WS, "s22", 36, 1024, 1024)
    for n in (24, 12, 0):
        a(f"s_waitcnt vmcnt({n})")
        a("s_barrier")
    stamp(a, tag + "_x")
    if isB:
        a(f"s_cmp_eq_u32 {sIT}, 0")
        a(f"s_cbranch_scc0 L_{tag}_e")
        wa_role(a, f"L_{tag}_e")
        wa_issue(a)
    a(f"s_branch L_{tag}_e")
    a.lab(f"L_{tag}_c")
    a("s_waitcnt vmcnt(0)")
    for p in range(8):
        a(f"v_lshlrev_b32 v{ACC+2*p}, 16, v{RES+p}")
        a(f"v_and_b32 v{ACC+2*p+1}, 0xffff0000, v{RES+p}")
    hb = lambda: a("s_barrier")
    gemm_stage(a, [vL16], 0, 36, False, False, hooks={0: hb, 12: hb, 24: hb})
    a("s_nop 12")
    pack(a, ACC, 8, RES)
    if isB:
        a(f"s_cmp_eq_u32 {sIT}, 1")
        a("s_cbranch_scc1 L_final")
        store_x_and_stats(a, RES, "s42", "s43", 4, XS, STS, WS)
    else:
        store_x_and_stats(a, RES, "s42", "s43", 4, XS, STS, WS)
    a("s_waitcnt vmcnt(0)")
    a.lab(f"L_{tag}_e")
    if isB:
        a(f"s_cmp_eq_u32 {sIT}, 1")
        a("s_cbranch_scc1 L_fin2")
    a("s_barrier")
    a(f"s_cmp_lg_u32 {W}, 0")
    a(f"s_cbranch_scc1 L_{tag}_nf")
    a("s_lshl_b32 s22, s42, 9")
    a(f"s_lshr_b32 s23, {sI}, 3")
    a("s_lshl_b32 s23, s23, 7")
    a("s_add_u32 s22, s22, s23")
    a(f"s_add_u32 s22, s22, {(ITS + FXA) if isB else FXB:#x}")
    setflag(a, IT, "s22", local=True)
    a.lab(f"L_{tag}_nf")
    stamp(a, tag + "_end")

def gen_phb(a, slow):
    a(f"s_add_u32 s48, {W}, 4")
    a(f"s_sub_u32 s22, 7, {W}")
    a(f"s_cmp_lt_u32 {W}, 4")
    a("s_cselect_b32 s48, s48, s22")
    a(f"s_lshl_b32 s45, {sX}, 3")
    a("s_add_u32 s45, s45, s48")
    a(f"s_mov_b32 s46, {sI}")
    a("s_setprio 1")
    a(f"s_cmp_lt_u32 {W}, 4")
    a("s_cbranch_scc0 L_B_pr")
    a("s_setprio 2")
    a.lab("L_B_pr")
    BX = 104
    MK = 72
    aVG, aVL, aEX, aFAC = 4, 5, 11, 13
    a("s_add_u32 s28, s48, 8")
    a(f"s_mul_i32 s28, s28, {KVT}")
    a(f"s_add_u32 s28, s28, {L_KVB}")
    a("s_lshl_b32 s49, s46, 6")
    a("s_add_u32 s49, s49, s45")
    a(f"s_mul_i32 s29, s49, {KVT}")
    a(f"s_add_u32 s29, s29, {KVB:#x}")
    a("s_lshl_b32 s49, s49, 7")
    a(f"s_add_u32 s49, s49, {FKB:#x}")
    a(f"s_lshl_b32 s27, {W}, 8")
    a(f"s_add_u32 s27, s27, {L_MISC}")
    a("s_add_u32 s47, s48, 1")
    a(f"s_cmp_eq_u32 {sX}, 0")
    a("s_cselect_b32 s47, s47, 9")
    a(f"s_mul_i32 s41, s43, {XT}")
    a(f"s_add_u32 s41, s41, {WOB_OFF:#x}")
    a(f"s_cmp_lt_u32 {W}, s44")
    a(f"s_cselect_b32 s41, s41, {OOB:#x}")
    a(f"v_lshrrev_b32 v5, 2, v{vL16}")
    a(f"v_add_u32 v4, {L_WBX}, v5")
    a(f"ds_read_b32 v106, v4")
    a(f"ds_read_b32 v108, v4 offset:256")
    a("v_mov_b32 v107, 0")
    a("v_mov_b32 v109, 0")
    a(f"s_sub_u32 s24, s28, {8*KVT}")
    a(f"v_add_u32 v{vKa}, s24, v{vL16}")
    a(f"v_lshl_add_u32 v{vKe}, v{vT}, 2, s24")
    a("s_add_u32 s24, s24, 1152")
    v_addr(a, "s24")
    a(f"v_mov_b32 v11, {NEGBIG:#x}")
    mask_init(a, MK, True)
    a("s_lshl_b32 s23, s45, 9")
    a(f"s_add_u32 s23, s23, {FXB:#x}")
    poll(a, IT, "s23", 4)
    stamp(a, "B_xflag")
    a(f"s_and_b32 s24, {W}, 3")
    a("s_lshl_b32 s24, s24, 2")
    a(f"s_add_u32 s50, s24, {L_FLAG+32}")
    a(f"s_cmp_lt_u32 {W}, 4")
    a("s_cbranch_scc1 L_B_x")
    a("s_mov_b32 s51, 1")
    a("s_call_b64 s[30:31], L_B_wait")
    a.lab("L_B_x")
    stats_load(a, STR, "s45", STS)
    a(f"s_mul_i32 s22, s45, {XT}")
    a(f"s_add_u32 s22, s22, {XS:#x}")
    PF = BPF
    r_loads(a, WS, "s22", 0, PF, LD)
    a(f"v_add_u32 v6, {L_WB}, v{vL16}")
    a(f"v_add_u32 v7, {L_WB+WCT}, v{vL16}")
    a("s_waitcnt lgkmcnt(0)")
    items = [(ks, t) for ks in range(36) for t in range(2)]
    n = len(items); depth = 4
    def rd(i):
        ks, t = items[i]
        a(f"ds_read_b128 {vr(XB_+4*(i%depth),4)}, v{6+t} offset:{ks*1024}")
    for i in range(depth - 1): rd(i)
    for i in range(n):
        ks, t = items[i]
        if i == 0:
            main_a = a; a = A()
            stats_sum(a, STR)
            stats_compute(a, STR, BX, RSTD)
            a("s_waitcnt lgkmcnt(0)")
            a(f"v_lshl_add_u32 v4, v{vT}, 2, s27")
            a(f"ds_write_b32 v4, v{RSTD}")
            a(f"v_lshl_add_u32 v4, v{vH}, 4, s27")
            a("s_waitcnt lgkmcnt(0)")
            for q in range(4):
                a(f"ds_read_b128 {vr(STR+4*q,4)}, v4 offset:{32*q}")
            a(f"v_mul_u32_u24 v{aVG}, 304, v{vH}")
            a(f"v_lshl_add_u32 v{aVG}, v{vT}, 4, v{aVG}")
            a(f"v_add_u32 v{aVL}, s28, v{aVG}")
            a(f"v_cmp_ge_u32 vcc, 18, v{vT}")
            a(f"v_mov_b32 v{aEX}, {OOB:#x}")
            a(f"v_lshrrev_b32 v{aFAC}, 1, v{vT}")
            a(f"v_cndmask_b32 v{aVG}, v{aEX}, v{aVG}, vcc")
            a(f"v_mov_b32 v{aEX}, {LOOB:#x}")
            a(f"v_cndmask_b32 v{aVL}, v{aEX}, v{aVL}, vcc")
            a(f"v_cmp_eq_u32 vcc, 12, v{aFAC}")
            a(f"v_cmp_eq_u32 s[62:63], 13, v{aFAC}")
            a("s_add_u32 s24, s27, 128")
            a("s_add_u32 s25, s28, 1024")
            a(f"v_mov_b32 v{aFAC}, s24")
            a(f"v_cndmask_b32 v{aEX}, v{aEX}, v{aFAC}, vcc")
            a(f"v_mov_b32 v{aFAC}, s25")
            a(f"v_cndmask_b32 v{aEX}, v{aEX}, v{aFAC}, s[62:63]")
            a(f"v_and_b32 v{aFAC}, 1, v{vT}")
            a(f"v_lshl_add_u32 v{aEX}, v{aFAC}, 1, v{aEX}")
            a(f"v_lshl_add_u32 v{aEX}, v{vH}, 4, v{aEX}")
            a(f"v_mov_b32 v{aFAC}, {f2u(QSCALE):#x}")
            a(f"v_cndmask_b32 v{aFAC}, 1.0, v{aFAC}, vcc")
            a("s_waitcnt lgkmcnt(0)")
            for r in range(16):
                a(f"v_mul_f32 v{STR+r}, v{aFAC}, v{STR+r}")
            a(f"v_mul_f32 v{RSTD+1}, {f2u(QSCALE):#x}, v{RSTD}")
            a(f"v_mfma_f32_32x32x8_bf16 {vr(ACC,16)}, v[106:107], {vr(BX,2)}, {vr(ACC,16)}")
            a(f"v_mfma_f32_32x32x8_bf16 {vr(ACC+16,16)}, {vr(BX,2)}, v[108:109], {vr(ACC+16,16)}")
            side = list(a.l); a = main_a
        if i + depth - 1 < n:
            rd(i + depth - 1); out = depth - 1
        else:
            out = n - 1 - i
        if t == 0:
            a(f"s_waitcnt vmcnt({min(35, ks + PF - 1) - ks}) lgkmcnt({out})")
        else:
            a(f"s_waitcnt lgkmcnt({out})")
        acc = vr(ACC + 16 * t, 16); x = vr(R + 4 * ks, 4); w = vr(XB_ + 4 * (i % depth), 4)
        c = "0" if ks == 0 else acc
        a(f"v_mfma_f32_32x32x16_bf16 {acc}, {x}, {w}, {c}" if t else f"v_mfma_f32_32x32x16_bf16 {acc}, {w}, {x}, {c}")
        if t == 0 and ks + PF < 36:
            r_loads(a, WS, "s22", ks + PF, ks + PF + 1, LD)
        if i >= 2:
            for _ in range(4):
                if side: a.l.append(side.pop(0))
        if t == 0 and ks == LSTART:
            a("v_mov_b32 v15, s50" if not STAMPS else "v_mov_b32 v111, s50")
            a(f"ds_write_b32 v15, v{vNONCE}" if not STAMPS else f"ds_write_b32 v111, v{vNONCE}")
            if STAMPS: a("v_mov_b32 v111, 0")
    assert not side
    stamp(a, "B_gemm")
    V1 = ACC + 16
    a(f"v_add_u32 v6, s28, v{vL16}")
    a(f"v_lshlrev_b32 v7, 30, v{vH}")
    a(f"v_lshl_add_u32 v7, v{vT}, 2, v7")
    a(f"v_lshl_add_u32 v56, v{vT}, 2, s24")
    a(f"v_lshl_add_u32 v57, v{vT}, 2, s25")
    a(f"s_and_b32 s24, {W}, 4")
    a(f"s_add_u32 s24, s24, {L_FLAG+16}")
    a("v_mov_b32 v58, s24")
    a("v_mov_b32 v59, 1")
    a("s_mov_b32 s24, 0x40000")
    a("s_mov_b32 s25, 0x40000")
    a("s_nop 0")
    for r in range(8, 16):
        a(f"v_mul_f32 v{ACC+r}, v{RSTD}, v{ACC+r}")
    for p in range(4):
        a(f"v_cvt_pk_bf16_f32 v{KM+p-24}, v{ACC+8+2*p}, v{ACC+9+2*p}")
    a(f"ds_write_b128 v6, v[60:63]")
    a(f"buffer_store_dwordx4 v[60:63], v{vL16}, {IT}, s29 offen sc1")
    for r in range(16):
        a(f"v_mul_f32 v{V1+r}, v{STR+r}, v{V1+r}")
        if r % 2 == 1:
            a(f"v_cvt_pk_bf16_f32 v{V1+r//2}, v{V1+r-1}, v{V1+r}")
    for r in range(16):
        op = "ds_write_b16" if r % 2 == 0 else "ds_write_b16_d16_hi"
        a(f"{op} v{aEX}, v{V1+r//2} offset:{((r&3)+8*(r>>2))*4}")
    a("s_mov_b64 exec, s[24:25]")
    for p in range(8):
        a(f"v_mov_b32 v{V1+p}, s60")
    a("s_mov_b64 exec, -1")
    a("ds_read_b32 v64, v57")
    a("ds_read_b32 v65, v56")
    a(f"ds_write_b128 v{aVL}, {vr(V1,4)} offset:1152")
    a(f"ds_write_b128 v{aVL}, {vr(V1+4,4)} offset:{1152+608}")
    a(f"buffer_store_dwordx4 {vr(V1,4)}, v{aVG}, {IT}, s29 offen offset:1152 sc1")
    a(f"buffer_store_dwordx4 {vr(V1+4,4)}, v{aVG}, {IT}, s29 offen offset:{1152+608} sc1")
    for r in range(8):
        a(f"v_mul_f32 v{ACC+r}, v{RSTD+1}, v{ACC+r}")
    pack(a, ACC, 4)
    a(f"v_cmp_eq_u32 vcc, 0, v{vH}")
    a(f"v_mov_b32 v{QE+1}, 0")
    a(f"v_mov_b32 v{KE+1}, 0")
    a(f"v_mov_b32 v11, {NEGBIG:#x}")
    a("s_waitcnt lgkmcnt(0)")
    a(f"buffer_store_dword v64, v7, {IT}, s29 offen offset:1024 sc1")
    a("s_mov_b64 exec, 1")
    a("ds_add_u32 v58, v59")
    a("s_mov_b64 exec, -1")
    a(f"v_cndmask_b32 v{QE}, 0, v65, vcc")
    a(f"v_mov_b32 v{KE}, v64")
    a(f"v_mfma_f32_32x32x16_bf16 {vr(S_[0],16)}, v[60:63], {vr(QM,4)}, {vr(MK,16)}")
    a("s_nop 0")
    a(f"v_mfma_f32_32x32x8_bf16 {vr(S_[0],16)}, {vr(KE,2)}, {vr(QE,2)}, {vr(S_[0],16)}")
    stamp(a, "B_attn0")
    to = lambda i: (8 - i) * KVT
    def wait(word, val):
        a(f"s_mov_b32 s50, {L_FLAG+16+4*word}")
        a(f"s_mov_b32 s51, {val}")
        a("s_call_b64 s[30:31], L_B_wait")
    def wait_if(tile, word, val):
        l = a.nl("Lw")
        a(f"s_cmp_eq_u32 s48, {tile}")
        a(f"s_cbranch_scc0 {l}")
        wait(word, val)
        a.lab(l)
    def first_qk(k0, masked):
        a(f"ds_read_b128 {vr(KM,4)}, v{k0[0]} offset:{k0[2]}")
        a(f"ds_read_b32 v{KE}, v{k0[1]} offset:{k0[2]+1024}")
        a("s_waitcnt lgkmcnt(0)")
        a(f"v_mfma_f32_32x32x16_bf16 {vr(S_[0],16)}, {vr(KM,4)}, {vr(QM,4)}, {vr(S_[0],16) if masked else 0}")
        a(f"v_mfma_f32_32x32x8_bf16 {vr(S_[0],16)}, {vr(KE,2)}, {vr(QE,2)}, {vr(S_[0],16)}")
    a("s_waitcnt vmcnt(0)")
    stamp(a, "B_ack")
    setflag(a, IT, "s49")
    a(f"s_cmp_eq_u32 {sX}, 0")
    a("s_cbranch_scc1 L_B_L0")
    a(f"s_cmp_ge_u32 {W}, 4")
    a("s_cbranch_scc1 L_B_L")
    a("s_setprio 0")
    for st in (1, 2, 3):
        a(f"s_cmp_ge_u32 s48, {st+4}")
        a(f"s_mov_b32 s22, {to(st)-4*KVT}")
        a(f"s_cselect_b32 s22, {to(st)}, s22")
        for q, r in enumerate((vKa, vKe, vVa)):
            a(f"v_add_u32 v{100+3*(st-1)+q}, s22, v{r}")
    a(f"s_cmp_eq_u32 {W}, 0")
    a("s_cbranch_scc0 L_B_E1")
    a("s_mov_b32 s50, 2")
    a("s_call_b64 s[30:31], L_B_fetch")
    a("s_call_b64 s[30:31], L_B_fetched")
    stamp(a, "B_rem")
    a.lab("L_B_E1")
    if WEARLY: r_loads(a, WS, "s41", 0, WEARLY)
    wsp = [WEARLY + (36 - WEARLY) * q // 8 for q in range(9)]
    def wl(k0, k1):
        ex = []
        for ks in range(k0, k1):
            if ks == k0 or ks % 4 == 0: ex.append(f"s_add_u32 s61, s41, {(ks//4)*4096}")
            ex.append(f"buffer_load_dwordx4 {vr(R+4*ks,4)}, v{vL16}, {WS}, s61 offen offset:{(ks%4)*1024}")
        return ex
    def wlg(cond, k0, k1):
        l = a.nl("Lg")
        return [cond, f"s_cbranch_scc0 {l}"] + wl(k0, k1) + [f"{l}:"]
    wait(0, 4)
    K = lambda st: (vKa, to(0)) if st == 0 else ((vKa, 0) if st == 4 else (100 + 3 * (st - 1), 0))
    E = lambda st: (vKe, to(0) + 1024) if st == 0 else ((vKe, 1024) if st == 4 else (101 + 3 * (st - 1), 1024))
    Vv = lambda st, o: (vVa, to(0) + o) if st == 0 else ((vVa, o) if st == 4 else (102 + 3 * (st - 1), o))
    a(f"ds_read_b128 {vr(KM,4)}, v{K(1)[0]} offset:{K(1)[1]}")
    a(f"ds_read_b32 v{KE}, v{E(1)[0]} offset:{E(1)[1]}")
    a(f"ds_read_b128 {vr(VA,4)}, v{vVa} offset:{to(0)}")
    for j in range(5):
        if j <= 2: wait_if(5 + j, 2, 1)
        body(a, j & 1, rdKM=K(j + 2) if j + 2 <= 4 else None, rdKE=E(j + 2) if j + 2 <= 4 else None,
             rdVa=Vv(j + 1, 0) if j + 1 <= 4 else None, rdVb=Vv(j, 608), u=0, qk=(j < 4), pv1=(j > 0),
             cinit=((lambda n: mask_init(a, n, False)) if j == 3 else None), ke64=False, pvwait=(1 if j == 4 else 2),
             ozero=(j == 0), extra=wl(wsp[j], wsp[j + 1]))
    tail_pv1(a, 0)
    a("s_sub_u32 s22, 8, s48")
    a(f"s_mul_i32 s22, s22, {KVT}")
    for q, r in enumerate((vKa, vKe, vVa)):
        a(f"v_add_u32 v{100+q}, s22, v{r}")
    for r in range(16):
        a(f"v_mov_b32 v{S_[0]+r}, 0")
    a("s_mov_b32 s40, 4")
    wait(1, 4)
    a.lab("L_B_run2")
    tb = lambda i: i * KVT
    first_qk((100, 101, tb(0)), True)
    a(f"ds_read_b128 {vr(KM,4)}, v100 offset:{tb(1)}")
    a(f"ds_read_b32 v{KE}, v101 offset:{tb(1)+1024}")
    a(f"ds_read_b128 {vr(VA,4)}, v102 offset:{tb(0)}")
    a("s_nop 8")
    for j in range(4):
        body(a, j & 1, rdKM=(100, tb(j + 2)) if j + 2 <= 3 else None, rdKE=(101, tb(j + 2) + 1024) if j + 2 <= 3 else None,
             rdVa=(102, tb(j + 1)) if j + 1 <= 3 else None, rdVb=(102, tb(j) + 608), u=0, qk=(j < 3), pv1=(j > 0),
             ke64=False, pvwait=(1 if j == 3 else 2), extra=(wlg(f"s_cmp_lt_u32 {W}, 4", wsp[5 + j], wsp[6 + j]) if j < 3 else ()))
        if j < 3:
            a(f"s_cmp_eq_u32 s40, {j+1}")
            a(f"s_cbranch_scc1 L_B_t{j&1}")
    a("s_branch L_B_t1")
    a.lab("L_B_L0")
    a(f"s_cmp_lt_u32 {W}, s44")
    a("s_cbranch_scc0 L_B_L0b")
    r_loads(a, WS, "s41", 0, 36)
    a.lab("L_B_L0b")
    wait(0, 4)
    a("s_mov_b32 s40, s47")
    a("s_mov_b32 s48, 99")
    a("s_branch L_B_L1")
    a.lab("L_B_L")
    a("s_add_u32 s40, s48, 5")
    wait(2, 1)
    a.lab("L_B_L1")
    wait(1, 4)
    a(f"s_cmp_lt_u32 {W}, s44")
    a("s_cselect_b32 s51, 77, 0")
    a(f"s_cmp_eq_u32 {sX}, 0")
    a("s_cselect_b32 s51, 0, s51")
    a(f"ds_read_b128 {vr(KM,4)}, v{vKa} offset:{to(1)}")
    a(f"ds_read_b32 v{KE}, v{vKe} offset:{to(1)+1024}")
    a(f"ds_read_b128 {vr(VA,4)}, v{vVa} offset:{to(0)}")
    for j in range(8):
        if j == 2:
            l = a.nl("Lf")
            a("s_cmp_eq_u32 s48, 0")
            a(f"s_cbranch_scc0 {l}")
            a("s_mov_b32 s50, 3")
            a("s_call_b64 s[30:31], L_B_fetch")
            a.lab(l)
        body(a, j & 1, rdKM=to(j + 2) if j + 2 <= 7 else None, rdKE=to(j + 2) + 1024 if j + 2 <= 7 else None,
             rdVa=to(j + 1) if j + 1 <= 7 else None, rdVb=to(j) + 608, u=0, qk=(j < 7), pv1=(j > 0),
             ke64=False, pvwait=(1 if j == 7 else 2), ozero=(j == 0),
             extra=(wlg("s_cmp_eq_u32 s51, 77", 36 * j // 7, 36 * (j + 1) // 7) if j < 7 else ()))
        if j < 7:
            a(f"s_cmp_eq_u32 s40, {j+1}")
            a(f"s_cbranch_scc1 L_B_u{j&1}")
    a.lab("L_B_u1")
    tail_pv1(a, 1)
    a.lab("L_B_L2")
    a(f"s_cmp_eq_u32 {sX}, 0")
    a("s_cbranch_scc1 L_B_done")
    for q, r in enumerate((vKa, vKe, vVa)):
        a(f"v_mov_b32 v{100+q}, v{r}")
    a("s_sub_u32 s40, 4, s48")
    a("s_cmp_eq_u32 s48, 0")
    a("s_cbranch_scc0 L_B_L3")
    a("s_call_b64 s[30:31], L_B_fetched")
    stamp(a, "B_rem2")
    a.lab("L_B_L3")
    a("s_nop 7")
    mask_init(a, S_[0], False)
    wait(3, 1)
    a("s_branch L_B_run2")
    a.lab("L_B_t0")
    tail_pv1(a, 0)
    a.lab("L_B_done")
    stamp(a, "B_attn1")
    attn_finish(a, "B", "s45", "s46", OS)
    a("s_waitcnt vmcnt(0)")
    a("s_barrier")
    a(f"s_cmp_lg_u32 {W}, 0")
    a("s_cbranch_scc1 L_B_end")
    a(f"s_lshl_b32 s22, {sX}, 12")
    a("s_lshl_b32 s23, s46, 7")
    a("s_add_u32 s22, s22, s23")
    a(f"s_add_u32 s22, s22, {FOB:#x}")
    setflag(a, IT, "s22", local=True)
    a.lab("L_B_end")
    a("s_setprio 0")
    stamp(a, "B_end")
    b = slow
    b.lab("L_B_t1")
    tail_pv1(b, 1)
    b("s_branch L_B_done")
    b.lab("L_B_u0")
    tail_pv1(b, 0)
    b("s_branch L_B_L2")
    RET = "s_setpc_b64 s[30:31]"
    b.lab("L_B_wait")
    b("v_mov_b32 v5, s50")
    b("s_mov_b32 s21, 0")
    b.lab("L_B_spin")
    b("ds_read_b32 v6, v5")
    b("s_add_u32 s21, s21, 1")
    b("s_cmp_gt_u32 s21, 0x400000")
    b("s_waitcnt lgkmcnt(0)")
    b("s_cbranch_scc1 L_B_spun")
    b("v_cmp_gt_u32 vcc, s51, v6")
    b("s_cbranch_vccz L_B_spun")
    b("s_sleep 1")
    b("s_branch L_B_spin")
    b.lab("L_B_spun")
    b(RET)
    b.lab("L_B_fetch")
    b("s_sub_u32 s22, s49, 1024")
    poll(b, IT, "s22", 4)
    stamp(b, "B_poll")
    b(f"s_sub_u32 s22, s29, {8*KVT}")
    b(f"s_mul_i32 s23, s48, {KVT}")
    b(f"s_add_u32 m0, s23, {L_KVB}")
    dma(b, IT, "s22", 9, 1024, 1024)
    b("s_add_u32 m0, m0, 1024")
    b("s_add_u32 s22, s22, 1024")
    set_exec(b, 0xffff)
    b(f"buffer_load_dwordx4 v{vL16}, {IT}, s22 offen sc1 lds")
    b("s_mov_b64 exec, -1")
    b(RET)
    b.lab("L_B_fetched")
    b("s_lshl_b32 s50, s50, 2")
    b(f"s_add_u32 s50, s50, {L_FLAG+16}")
    b("v_mov_b32 v5, s50")
    b("v_mov_b32 v6, 1")
    b("s_waitcnt vmcnt(0)")
    b("ds_write_b32 v5, v6")
    b("s_waitcnt lgkmcnt(0)")
    b(RET)
    b.lab("L_B_slow")
    for ps in range(2):
        if ps == 0:
            b(f"v_mov_b32 v7, {f2u(float('-inf')):#x}")
        for j in range(9):
            b(f"ds_read_b128 {vr(KM,4)}, v{vKa} offset:{to(j)}")
            b(f"ds_read_b32 v{KE}, v{vKe} offset:{to(j)+1024}")
            if ps:
                b(f"ds_read_b128 {vr(VA,4)}, v{vVa} offset:{to(j)}")
                b(f"ds_read_b128 {vr(VB,4)}, v{vVa} offset:{to(j)+608}")
            if j in (0, 8): mask_init(b, S_[0], j == 0)
            slow_qk(b, 0, j in (0, 8))
            if ps: slow_pv(b)
            else: slow_max(b)
            if j < 8:
                b(f"s_cmp_eq_u32 s47, {j+1}")
                b(f"s_cbranch_scc1 L_B_slowd{ps}")
        b.lab(f"L_B_slowd{ps}")
        if ps == 0: slow_mid(b)
    slow_end(b, "B")

def main(out):
    ref = open(f"cdna_kernels/{NAME}.s.ref").read().splitlines()
    hdr = [l for l in ref if l.startswith(";") and "@launch" not in l]
    a = A(); slow = A(); slow.n = 100000
    gen_start(a)
    gen_prep(a)
    gen_pha(a, slow)
    gen_out(a, False)
    gen_phb(a, slow)
    gen_out(a, True)
    a(f"s_mov_b32 {sIT}, 1")
    a(f"s_mov_b32 s33, {KVA2-ITS:#x}")
    a(f"s_add_u32 s16, s16, {ITS:#x}")
    a("s_addc_u32 s17, s17, 0")
    a("s_branch L_it")
    a.lab("L_final")
    a(f"v_mul_u32_u24 v4, 1152, v{vT}")
    a(f"v_lshl_add_u32 v4, v{vH}, 4, v4")
    a(f"s_mul_i32 s24, s42, {32*1152}")
    a("s_lshl_b32 s25, s43, 6")
    a("s_add_u32 s24, s24, s25")
    for q in range(2):
        a(f"buffer_store_dwordx4 {vr(RES+4*q,4)}, v4, {AUX}, s24 offen offset:{32*q}")
    a.lab("L_fin2")
    if STAMPS:
        a("s_waitcnt vmcnt(0)")
        stamp(a, "end")
        a("v_lshlrev_b32 v4, 2, v0")
        a("s_lshl_b32 s22, s2, 11")
        a(f"s_add_u32 s22, s22, {DBG_OFF:#x}")
        a(f"buffer_store_dword v{vSTAMP}, v4, {WS}, s22 offen")
        if DBGOUT:
            sel = [(0, "prep_done"), (0, "A_attn0"), (0, "A_end"), (0, "OA_end"), (0, "B_end"), (0, "OB_end"), (1, "A_attn0"), (1, "A_n4b"), (1, "A_attn1"), (1, "OA_end"), (1, "B_end"), (1, "end")]
            a(f"s_or_b32 s22, s2, {W}")
            a("s_cmp_eq_u32 s22, 0")
            a("s_cbranch_scc0 L_end")
            a(f"v_readlane_b32 s23, v{vSTAMP}, 0")
            a("s_mov_b64 exec, 1")
            for q, (it, nm) in enumerate(sel):
                a(f"v_readlane_b32 s22, v{vSTAMP}, {32*it + STN.index(nm)}")
                a("s_nop 3")
                a("s_sub_u32 s22, s22, s23")
                a("v_mov_b32 v4, s22")
                a(f"buffer_store_dword v4, off, s[56:59], 0 offset:{4*(q+1)}")
                a("s_waitcnt vmcnt(0)")
            a(f"v_readlane_b32 s22, v{vSTAMP}, {32 + STN.index('c:A_attn1')}")
            a(f"v_readlane_b32 s23, v{vSTAMP}, {32 + STN.index('c:A_n4b')}")
            a("s_nop 3")
            a("s_sub_u32 s22, s22, s23")
            a("v_mov_b32 v4, s22")
            a(f"buffer_store_dword v4, off, s[56:59], 0 offset:52")
        open(out + ".stamps", "w").write("\n".join(STN))
        assert len(STN) <= 32
    a.lab("L_end")
    a("s_endpgm")
    K = NAME + "_kernel"
    txt = "\n".join(hdr) + "\n; @launch grid=(256,1,1) block=(512,1,1) lds=163840\n"
    txt += f'.amdgcn_target "amdgcn-amd-amdhsa--gfx950"\n.text\n.globl {K}\n.p2align 8\n.type {K},@function\n{K}:\n'
    txt += a.text() + slow.text() + "CODE_END:\n"
    txt += f""".section .rodata,"a"
.p2align 6
.amdhsa_kernel {K}
  .amdhsa_next_free_vgpr 256
  .amdhsa_next_free_sgpr 102
  .amdhsa_accum_offset 256
  .amdhsa_group_segment_fixed_size 0
  .amdhsa_kernarg_size 88
  .amdhsa_user_sgpr_count 2
  .amdhsa_user_sgpr_kernarg_segment_ptr 1
  .amdhsa_system_sgpr_workgroup_id_x 1
  .amdhsa_float_denorm_mode_32 3
.end_amdhsa_kernel
"""
    open(out, "w").write(txt)

if __name__ == "__main__":
    if "stamps" in sys.argv: STAMPS = True
    if "nolocal" in sys.argv: NOLOCAL = True
    for x in sys.argv[2:]:
        if "=" in x:
            k, v = x.split("="); globals()[k] = int(v)
    main(sys.argv[1])
```

```python
import math, struct, sys

NAME = "interleave_layers__grouped_kv_mqa__sliding_block__prompt"
def f2u(x): return struct.unpack("<I", struct.pack("<f", x))[0]

FR = 1024
XT = 36 * FR
WCT = 36 * FR
KVA = 0x0
KVA2 = 0x28000
KVB = 0x60000
FL = 0x510000
ITS = 32
FKAL, FOA, FXB, FOB, FXA = FL, FL + 4, FL + 8, FL + 12, FL + 16
FKA, FKB = FL + 0x8000, FL + 0x10000
XS, OS, STS, KVL = 0x600000, 0x840000, 0xA80000, 0xAD0000
WA_OFF, WB_OFF, WOA_OFF, WOB_OFF, FPREP = 0xB00000, 0xC00000, 0xF00000, 0x1000000, 0x10C0000
DBG_OFF = 0x4000000
WS_SIZE = 0x10000000
OOB = 0x40000000
LOOB = 0x40000
GRP = 9472
KVA_SZ = 16 * GRP
BLK = 2 * GRP
VT = 1216
KVT = 2368
QSCALE = (18 ** -0.5) * math.log2(math.e)
NEGBIG = f2u(-1e30)
L_XA = 40960
L_WB = 40960
L_KVB = 118784
L_Q = 151552
L_MISC = 160768
L_FLAG = 162816
NPREP = 252
L_PREP = 114688
L_RAW = 135168
L_WBX = L_WB + 2 * WCT

STAMPS = False
FORCESLOW = 0
DBGOUT = 0
NOLOCAL = False
STN = []
ST = " sc1"
LD = " sc1"

class A:
    def __init__(self):
        self.l = []; self.n = 0; self.ns = 0; self.stn = []
    def __call__(self, s): self.l.append("    " + s)
    def lab(self, s): self.l.append(s + ":")
    def nl(self, p="L"):
        self.n += 1
        return f"{p}_{self.n}"
    def text(self): return "\n".join(self.l) + "\n"

def vr(a, n): return f"v[{a}:{a+n-1}]" if n > 1 else f"v{a}"

W = "s3"
WS, AUX, IT = "s[4:7]", "s[8:11]", "s[16:19]"
sX, sI, sNONCE, sIT, sLIM, sLOC = "s12", "s13", "s14", "s15", "s20", "s99"
vL16, vT, vH = 1, 2, 3
vNONCE, vSTAMP = 14, 15
RES = 16
R = 112
WEXT = 110
MASK = 64

def stamp(a, name, cyc=False):
    if not STAMPS: return
    if cyc: name = "c:" + name
    if name not in STN: STN.append(name)
    k = STN.index(name)
    a("s_memtime s[96:97]" if cyc else "s_memrealtime s[96:97]")
    a(f"s_mul_i32 s98, {sIT}, 32")
    a(f"s_add_u32 s98, s98, {k}")
    a("s_waitcnt lgkmcnt(0)")
    a(f"s_mov_b32 m0, s98")
    a(f"v_writelane_b32 v{vSTAMP}, s96, m0")

def set_exec(a, mask):
    lo, hi = mask & 0xffffffff, mask >> 32
    if mask <= 64:
        a(f"s_mov_b64 exec, {mask}")
    else:
        a(f"s_mov_b32 exec_lo, {lo:#x}" if lo != 0xffffffff else "s_mov_b32 exec_lo, -1")
        a(f"s_mov_b32 exec_hi, {hi:#x}")

def poll_issue(a, srd, soff, n, vtmp, voff):
    for q in range((n + 63) // 64):
        if q == 0:
            a(f"buffer_load_dword v{vtmp}, v{voff}, {srd}, {soff} offen sc1")
        else:
            a(f"s_add_u32 s61, {soff}, {8192*q}")
            a(f"buffer_load_dword v{vtmp+q}, v{voff}, {srd}, s61 offen sc1")

def poll_test(a, n, vtmp):
    a(f"v_cmp_ne_u32 vcc, {sNONCE}, v{vtmp}")
    for q in range(1, (n + 63) // 64):
        a(f"v_cmp_ne_u32 s[62:63], {sNONCE}, v{vtmp+q}")
        a("s_or_b64 vcc, vcc, s[62:63]")

def poll(a, srd, soff, n, vtmp=4, voff=5, setoff=True):
    l, d = a.nl("Lp"), a.nl("Lpd")
    if setoff: a(f"v_lshlrev_b32 v{voff}, 3, v{vL16}")
    if n < 64: set_exec(a, (1 << n) - 1)
    a("s_mov_b32 s21, 0")
    a.lab(l)
    poll_issue(a, srd, soff, n, vtmp, voff)
    a("s_add_u32 s21, s21, 1")
    a(f"s_cmp_gt_u32 s21, {sLIM}")
    a(f"s_cselect_b32 {sLIM}, 0, {sLIM}")
    a("s_waitcnt vmcnt(0)")
    a(f"s_cbranch_scc1 {d}")
    poll_test(a, n, vtmp)
    a(f"s_cbranch_vccnz {l}")
    a.lab(d)
    if n < 64: a("s_mov_b64 exec, -1")

def census_issue(a, v):
    a(f"v_lshlrev_b32 v{v+1}, 7, v{vT}")
    a(f"s_lshl_b32 s22, {sX}, 12")
    a(f"s_add_u32 s22, s22, {FL+20:#x}")
    a(f"buffer_load_dword v{v}, v{v+1}, {WS}, s22 offen sc1")

def census_eval(a, v, dst):
    a(f"v_cmp_ne_u32 vcc, s34, v{v}")
    a("s_cmp_eq_u64 vcc, 0")
    a(f"s_cselect_b32 {dst}, 1, 2")
    if NOLOCAL: a(f"s_mov_b32 {dst}, 2")

def lstore(a, insts):
    l, e = a.nl("Ls"), a.nl("Lse")
    a(f"s_cmp_eq_u32 {sLOC}, 1")
    a(f"s_cbranch_scc1 {l}")
    for i in insts: a(i + " sc1")
    a(f"s_branch {e}")
    a.lab(l)
    for i in insts: a(i)
    a.lab(e)

def setflag(a, srd, soff, local=False):
    a("s_mov_b64 exec, 1")
    if local: lstore(a, [f"buffer_store_dword v{vNONCE}, off, {srd}, {soff}"])
    else: a(f"buffer_store_dword v{vNONCE}, off, {srd}, {soff} sc1")
    a("s_mov_b64 exec, -1")

def dma(a, srd, sG, n, gstep, lstep, flags=LD, half_last=False):
    for r in range(n):
        if half_last and r == n - 1:
            a("s_mov_b32 exec_hi, 0")
        else:
            a("s_nop 0")
        a(f"buffer_load_dwordx4 v{vL16}, {srd}, {sG} offen{flags} lds")
        if half_last and r == n - 1:
            a("s_mov_b64 exec, -1")
        if r + 1 < n:
            a(f"s_add_u32 m0, m0, {lstep}")
            a(f"s_add_u32 {sG}, {sG}, {gstep}")

def r_loads(a, srd, sOff, k0, k1, flags=""):
    for ks in range(k0, k1):
        if ks == k0 or ks % 4 == 0:
            a(f"s_add_u32 s61, {sOff}, {(ks//4)*4096}")
        a(f"buffer_load_dwordx4 {vr(R+4*ks,4)}, v{vL16}, {srd}, s61 offen offset:{(ks%4)*1024}{flags}")

def cs_dot(a, ks):
    for d in range(4):
        a(f"v_dot2_f32_bf16 v{CS+d}, v{R+4*ks+d}, s60, {0 if ks == 0 else 'v%d' % (CS+d)}")

def cs_pack(a, dst):
    a("s_nop 2")
    a(f"v_add_f32 v{CS}, v{CS}, v{CS+1}")
    a(f"v_add_f32 v{CS+2}, v{CS+2}, v{CS+3}")
    a(f"v_add_f32 v{CS}, v{CS}, v{CS+2}")
    a(f"v_cvt_pk_bf16_f32 v{dst}, v{CS}, v{CS}")
    a(f"v_lshlrev_b32 v{dst}, 16, v{dst}")
    a(f"v_sub_f32 v{CS}, v{CS}, v{dst}")
    a(f"v_cvt_pk_bf16_f32 v{dst}, v{dst}, v{CS}")

def x_addr(a, sT, sC, XO, SO):
    a(f"s_mul_i32 s26, {sT}, {XT}")
    a(f"s_lshl_b32 s27, {sC}, 11")
    a("s_add_u32 s26, s26, s27")
    a(f"s_add_u32 s26, s26, {XO:#x}")
    a(f"s_mul_i32 s27, {sT}, {18*256}")
    a(f"s_lshl_b32 s28, {sC}, 8")
    a("s_add_u32 s27, s27, s28")
    a(f"s_add_u32 s27, s27, {SO:#x}")
    a(f"v_lshrrev_b32 v8, 2, v{vL16}")

def store_x_and_stats(a, P, srd):
    lstore(a, [f"buffer_store_dwordx4 {vr(P,4)}, v{vL16}, {srd}, s26 offen",
               f"buffer_store_dwordx4 {vr(P+4,4)}, v{vL16}, {srd}, s26 offen offset:1024"])
    for i in range(8):
        q = 4 + 2 * (i & 1)
        a(f"v_dot2_f32_bf16 v{q}, v{P+i}, s60, {0 if i < 2 else 'v%d' % q}")
        a(f"v_dot2_f32_bf16 v{q+1}, v{P+i}, v{P+i}, {0 if i < 2 else 'v%d' % (q+1)}")
    a("s_nop 2")
    a("v_add_f32 v4, v4, v6")
    a("v_add_f32 v5, v5, v7")
    a("s_nop 1")
    a("v_permlane32_swap_b32 v4, v5")
    a("s_nop 1")
    a("v_add_f32 v4, v4, v5")
    lstore(a, [f"buffer_store_dword v4, v8, {srd}, s27 offen"])

def stats_load(a, b, sT, SO):
    a(f"v_lshrrev_b32 v4, 2, v{vL16}")
    a(f"s_mul_i32 s40, {sT}, {18*256}")
    a(f"s_add_u32 s40, s40, {SO:#x}")
    for c in range(18):
        if c == 16: a("s_add_u32 s40, s40, 4096")
        a(f"buffer_load_dword v{b+c}, v4, {WS}, s40 offen offset:{(c%16)*256}{LD}")

def stats_sum(a, b):
    for i in range(9):
        a(f"v_add_f32 v{b+i}, v{b+i}, v{b+9+i}")
    for i, j in ((0, 1), (2, 3), (4, 5), (6, 7), (0, 2), (4, 6), (0, 4), (0, 8)):
        a(f"v_add_f32 v{b+i}, v{b+i}, v{b+j}")

def stats_compute(a, b, xext, rstd):
    a(f"v_mov_b32 v{b+1}, v{b}")
    a("s_nop 1")
    a(f"v_permlane32_swap_b32 v{b}, v{b+1}")
    a("s_nop 1")
    a(f"v_mul_f32 v{b}, {f2u(1.0/576):#x}, v{b}")
    a(f"v_mul_f32 v{b+1}, {f2u(1.0/576):#x}, v{b+1}")
    a(f"v_fma_f32 v{b+1}, -v{b}, v{b}, v{b+1}")
    a(f"v_max_f32 v{b+1}, 0, v{b+1}")
    a(f"v_cvt_pk_bf16_f32 v{xext}, -v{b}, -v{b}")
    a(f"v_mov_b32 v{xext+1}, 0")
    a(f"v_cvt_pk_bf16_f32 v{b+1}, v{b+1}, v{b+1}")
    a(f"v_lshlrev_b32 v{b+1}, 16, v{b+1}")
    a(f"v_add_f32 v{b+1}, {f2u(1e-5):#x}, v{b+1}")
    a(f"v_cvt_pk_bf16_f32 v{b+1}, v{b+1}, v{b+1}")
    a(f"v_lshlrev_b32 v{b+1}, 16, v{b+1}")
    a(f"v_sqrt_f32 v{b+1}, v{b+1}")
    a("s_nop 0")
    a(f"v_cvt_pk_bf16_f32 v{b+1}, v{b+1}, v{b+1}")
    a(f"v_lshlrev_b32 v{b+1}, 16, v{b+1}")
    a(f"v_rcp_f32 v{rstd}, v{b+1}")
    a("s_nop 0")

def rstd_bcast(a, rstd, dst):
    a(f"s_lshl_b32 s27, {W}, 8")
    a(f"s_add_u32 s27, s27, {L_MISC}")
    a(f"v_lshl_add_u32 v6, v{vT}, 2, s27")
    a(f"ds_write_b32 v6, v{rstd}")
    a(f"v_lshl_add_u32 v6, v{vH}, 4, s27")
    a("s_waitcnt lgkmcnt(0)")
    for q in range(4):
        a(f"ds_read_b128 {vr(dst+4*q,4)}, v6 offset:{32*q}")

ACC = 24
XB_ = 56
STR = 88
CS = 106
DEPTH = 8
XEXT = 8
RSTD = 12

def xaddr(a, dst, base):
    l, e = a.nl("Lxa"), a.nl("Lxe")
    a(f"s_cmp_eq_u32 {sIT}, 0")
    a(f"s_cbranch_scc1 {l}")
    a(f"v_add_u32 v{dst}, {base}, v{vL16}")
    for q in range(1, 4):
        a(f"v_add_u32 v{dst+q}, {1024*q}, v{dst}")
    a(f"s_branch {e}")
    a.lab(l)
    a(f"v_bfe_u32 v4, v{vT}, 1, 3")
    a(f"v_xor_b32 v4, v4, v{vH}")
    a(f"v_lshlrev_b32 v{dst+3}, 7, v{vT}")
    a(f"v_add_u32 v{dst+3}, {base}, v{dst+3}")
    for q in range(4):
        if q: a(f"v_xor_b32 v4, {(2*q) ^ (2*q-2)}, v4")
        a(f"v_lshl_add_u32 v{dst+q}, v4, 4, v{dst+3}")
    a.lab(e)

def gemm_stage(a, bases, k0, k1, swap, first_zero, cs=False, pre=None, quad=False, hooks={}):
    TT = len(bases)
    items = [(ks, t) for ks in range(k0, k1) for t in range(TT)]
    n = len(items); depth = DEPTH
    def rd(i):
        ks, t = items[i]
        if i in hooks: hooks[i]()
        if quad: a(f"ds_read_b128 {vr(XB_+4*(i%depth),4)}, v{bases[t]+(ks&3)} offset:{(ks>>2)*4096}")
        else: a(f"ds_read_b128 {vr(XB_+4*(i%depth),4)}, v{bases[t]} offset:{ks*1024}")
    if pre: pre()
    for i in range(depth - 1): rd(i)
    if cs: a(f"s_cmp_eq_u32 {sIT}, 1")
    for i in range(n):
        ks, t = items[i]
        if i + depth - 1 < n:
            rd(i + depth - 1); out = depth - 1
        else:
            out = n - 1 - i
        if cs and t == 0 and ks % 4 == 0:
            l = a.nl("Lcs")
            a(f"s_cbranch_scc1 {l}")
            if ks + QPF < 36: r_loads(a, WS, "s40", ks + QPF, ks + QPF + 4)
            a(f"s_waitcnt vmcnt({min(36, ks + QPF + 4) - ks - 4})")
            for k in range(ks, ks + 4): cs_dot(a, k)
            if ks == 32: cs_pack(a, WEXT)
            a(f"s_cmp_eq_u32 {sIT}, 1")
            a.lab(l)
        a(f"s_waitcnt lgkmcnt({out})")
        acc = vr(ACC + 16 * t, 16); w = vr(R + 4 * ks, 4); x = vr(XB_ + 4 * (i % depth), 4)
        c = "0" if (first_zero and ks == 0) else acc
        a(f"v_mfma_f32_32x32x16_bf16 {acc}, {x}, {w}, {c}" if swap else f"v_mfma_f32_32x32x16_bf16 {acc}, {w}, {x}, {c}")

def pack(a, base, n=8, dst=None):
    dst = base if dst is None else dst
    for p in range(n):
        a(f"v_cvt_pk_bf16_f32 v{dst+p}, v{base+2*p}, v{base+2*p+1}")

def gen_start(a):
    a("s_cmp_ge_u32 s2, 256")
    a("s_cbranch_scc1 L_end")
    a("s_load_dwordx16 s[32:47], s[0:1], 0")
    a("s_load_dwordx4 s[48:51], s[0:1], 64")
    a("s_load_dwordx2 s[4:5], s[0:1], 80")
    a("s_memrealtime s[22:23]")
    a("v_lshrrev_b32 v4, 6, v0")
    a("v_and_b32 v5, 63, v0")
    a("v_readfirstlane_b32 s3, v4")
    a(f"v_lshlrev_b32 v{vL16}, 4, v5")
    a(f"v_and_b32 v{vT}, 31, v5")
    a(f"v_lshrrev_b32 v{vH}, 5, v5")
    a(f"s_mov_b32 s6, {WS_SIZE:#x}")
    a("s_mov_b32 s7, 0x20000")
    a("s_mov_b32 s11, 0x20000")
    a(f"s_mov_b32 s18, {WS_SIZE-2*ITS:#x}")
    a("s_mov_b32 s19, 0x20000")
    a(f"s_and_b32 {sX}, s2, 7")
    a(f"s_lshr_b32 {sI}, s2, 3")
    a(f"s_mov_b32 {sIT}, 0")
    a(f"s_mov_b32 {sLIM}, 200000")
    a(f"s_mov_b32 {sLOC}, 0")
    a(f"v_mov_b32 v{vSTAMP}, 0")
    a(f"v_mov_b32 v{WEXT+1}, 0")
    if CODEPF:
        a(f"s_cmp_lg_u32 {W}, 5")
        a("s_cbranch_scc1 L_nocodepf")
        a("s_getpc_b64 s[26:27]")
        a(f"s_lshl_b32 s24, {sI}, 11")
        a(f"s_cmp_ge_u32 s24, CODE_END - L_nocodepf - 2048")
        a("s_cbranch_scc1 L_nocodepf")
        a("s_add_u32 s26, s26, s24")
        a("s_addc_u32 s27, s27, 0")
        a(f"v_lshlrev_b32 v4, 1, v{vL16}")
        a("v_mov_b32 v5, s27")
        a("v_add_co_u32 v4, vcc, s26, v4")
        a("s_nop 1")
        a("v_addc_co_u32 v5, vcc, 0, v5, vcc")
        a("global_load_dword v100, v[4:5], off")
        a.lab("L_nocodepf")
    a(f"v_lshlrev_b32 v4, 2, v{vH}")
    a(f"v_sub_u32 v4, v{vT}, v4")
    for r in range(16):
        a(f"v_cmp_le_i32 s[{MASK+2*r}:{MASK+2*r+1}], {(r&3)+8*(r>>2)}, v4")
    a("s_waitcnt lgkmcnt(0)")
    a("s_mov_b32 s16, s4")
    a("s_mov_b32 s17, s5")
    a("s_mov_b32 s56, s50")
    a("s_mov_b32 s57, s51")
    a("s_mov_b32 s58, 256")
    a("s_mov_b32 s59, 0x20000")
    a("s_mov_b32 s52, s32")
    a("s_mov_b32 s53, s33")
    a(f"s_mov_b32 s54, {2048*1152}")
    a("s_mov_b32 s55, 0x20000")
    a("s_mov_b32 s60, 0x3f803f80")
    a(f"s_or_b32 s24, s2, {W}")
    a("s_cmp_lg_u32 s24, 0")
    a("s_cbranch_scc1 L_nononce")
    a("s_or_b32 s22, s22, 1")
    a("v_mov_b32 v4, s22")
    a("s_mov_b64 exec, 1")
    a("buffer_store_dword v4, off, s[56:59], 0 sc1")
    a("s_mov_b64 exec, -1")
    a.lab("L_nononce")

    stamp(a, "start")

X0 = "s[52:55]"
def gather(a, vaddr, rs, dst, tmp):
    for j in range(8):
        a(f"ds_read_u16 v{tmp+j}, v{vaddr} offset:{j*rs}")
def gpack(a, dst, tmp):
    for d in range(4):
        a(f"v_lshl_or_b32 v{dst+d}, v{tmp+2*d+1}, 16, v{tmp+2*d}")

def x0_dma(a):
    a("s_call_b64 s[30:31], L_x0")

def x0_sub(a):
    a.lab("L_x0")
    a(f"s_and_b32 s24, {sI}, 8")
    a("s_cmp_eq_u32 s24, 0")
    a("s_cbranch_scc1 L_x0b")
    a(f"s_cmp_lt_u32 {sI}, 16")
    a("s_cselect_b32 s24, s36, s38")
    a("s_cselect_b32 s25, s37, s39")
    a(f"s_mov_b32 s26, {576*36}")
    a("s_mov_b32 s27, 0x20000")
    a(f"s_lshl_b32 s21, {W}, 10")
    a(f"s_add_u32 m0, s21, {L_RAW}")
    dma(a, "s[24:27]", "s21", 3, 8192, 8192, flags="")
    a.lab("L_x0b")
    a(f"s_and_b32 s24, {sI}, 3")
    a("s_lshl_b32 s24, s24, 1")
    a(f"s_lshl_b32 s25, {sX}, 3")
    a("s_add_u32 s24, s24, s25")
    a(f"s_mul_i32 s24, s24, {XT}")
    a(f"s_mul_i32 s25, {W}, {8*1152}")
    a("s_add_u32 s24, s24, s25")
    a(f"s_lshr_b32 s25, {W}, 2")
    a(f"s_mul_i32 s25, s25, {XT}")
    a(f"s_and_b32 s26, {W}, 3")
    a("s_lshl_b32 s27, s26, 10")
    a("s_add_u32 s25, s25, s27")
    a(f"s_add_u32 m0, s25, {L_XA}")
    a("s_and_b32 s26, s26, 1")
    a("s_lshl_b32 s26, s26, 2")
    a(f"v_lshrrev_b32 v13, 7, v{vL16}")
    a("v_lshrrev_b32 v9, 1, v13")
    a("v_add_u32 v9, s26, v9")
    a(f"v_bfe_u32 v8, v{vL16}, 4, 3")
    a("v_xor_b32 v9, v8, v9")
    a("v_mul_u32_u24 v13, 1152, v13")
    a("v_lshl_add_u32 v13, v9, 4, v13")
    for kq in range(9):
        a(f"buffer_load_dwordx4 v13, {X0}, s24 offen lds")
        if kq < 8:
            a("s_add_u32 m0, m0, 4096")
            a("s_add_u32 s24, s24, 128")
    a("s_waitcnt vmcnt(9)")
    a("s_barrier")
    a("buffer_load_dword v101, off, s[56:59], 0 sc1")
    a("s_setpc_b64 s[30:31]")

def prep_flag(a):
    a("s_lshl_b32 s22, s2, 7")
    a(f"s_add_u32 s22, s22, {FPREP:#x}")
    setflag(a, WS, "s22")

def gen_prep(a):
    G0, P0 = 24, 64
    a(f"v_and_b32 v4, 0x13, v{vT}")
    a(f"v_and_b32 v5, 4, v{vT}")
    a("v_lshl_or_b32 v4, v5, 1, v4")
    a(f"v_and_b32 v5, 8, v{vT}")
    a("v_lshrrev_b32 v5, 1, v5")
    a("v_or_b32 v12, v4, v5")
    a("v_lshlrev_b32 v12, 1, v12")
    a(f"v_mov_b32 v11, {LOOB:#x}")
    a(f"s_mov_b32 s100, {OOB:#x}")
    a("s_mov_b32 s101, 0")
    a(f"s_cmp_ge_u32 s2, {NPREP}")
    a("s_cbranch_scc1 L_pn")
    a("s_cmp_ge_u32 s2, 180")
    a("s_cbranch_scc1 L_po")
    a("s_cmp_ge_u32 s2, 36")
    a("s_cbranch_scc1 L_pb")
    a("s_mov_b32 s8, s34")
    a("s_mov_b32 s9, s35")
    a(f"s_mov_b32 s10, {576*1152}")
    a(f"s_mul_i32 s22, s2, {16*1152}")
    a(f"s_lshl_b32 s23, {W}, 10")
    a("s_add_u32 s22, s22, s23")
    a(f"s_add_u32 m0, s23, {L_PREP}")
    dma(a, AUX, "s22", 2, 8192, 8192, flags="")
    a(f"s_cmp_ge_u32 {W}, 4")
    a("s_cbranch_scc1 L_pa1")
    a(f"s_cmp_ge_u32 {W}, 2")
    a("s_cbranch_scc1 L_pa0")
    a("s_add_u32 m0, m0, 8192")
    a("s_add_u32 s22, s22, 8192")
    dma(a, AUX, "s22", 1, 0, 0, flags="")
    a("s_branch L_pa1")
    a.lab("L_pa0")
    a(f"s_cmp_eq_u32 {W}, 2")
    a("s_cselect_b32 s8, s36, s38")
    a("s_cselect_b32 s9, s37, s39")
    a(f"s_mov_b32 s10, {576*36}")
    a("s_mul_i32 s22, s2, 576")
    a("s_add_u32 m0, m0, 8192")
    dma(a, AUX, "s22", 1, 0, 0, flags="")
    a.lab("L_pa1")
    x0_dma(a)
    a(f"v_mul_u32_u24 v10, {8*1152}, v{vH}")
    a(f"v_add_u32 v10, {L_PREP}, v10")
    for r in range(3):
        a(f"s_add_u32 s22, {W}, {8*r}")
        a("s_mul_i32 s23, s22, 86")
        a("s_lshr_b32 s23, s23, 8")
        a("s_mul_i32 s24, s23, 3")
        a("s_sub_u32 s24, s22, s24")
        a("s_mul_i32 s23, s23, 144")
        a("s_mul_i32 s25, s24, 72")
        a("s_cmp_eq_u32 s24, 2")
        a("s_cselect_b32 s25, 32, s25")
        a("s_cselect_b32 s26, 1, 4")
        a("s_cselect_b32 s27, 1, 15")
        a("s_cselect_b32 s28, 8, 32")
        a("s_add_u32 s23, s23, s25")
        a(f"v_lshrrev_b32 v4, s26, v{vT}")
        a("v_mul_u32_u24 v4, 36, v4")
        a(f"v_and_b32 v5, s27, v{vT}")
        a("v_lshl_add_u32 v4, v5, 1, v4")
        a("v_add3_u32 v4, v4, v10, s23")
        a(f"v_cmp_gt_u32 vcc, s28, v{vT}")
        a("s_nop 1")
        a("v_cndmask_b32 v4, v11, v4, vcc")
        gather(a, 4, 1152, P0 + 4 * r, G0 + 8 * r)
    a(f"v_lshlrev_b32 v4, 1, v{vT}")
    a(f"s_cmp_eq_u32 {W}, 1")
    a("s_cselect_b64 vcc, -1, 0")
    a(f"s_lshl_b32 s23, {W}, 10")
    a(f"s_add_u32 s23, s23, {L_PREP+18432}")
    a("v_cndmask_b32 v4, v4, v12, vcc")
    a(f"v_mul_u32_u24 v5, {8*36}, v{vH}")
    a("v_add3_u32 v4, v4, v5, s23")
    a(f"v_cmp_gt_u32 vcc, 18, v{vT}")
    a("s_nop 1")
    a("v_cndmask_b32 v4, v11, v4, vcc")
    a("s_waitcnt lgkmcnt(0)")
    gather(a, 4, 36, P0 + 12, G0 + 24)
    a(f"s_mul_i32 s22, {W}, {WCT}")
    a("s_lshl_b32 s23, s2, 10")
    a("s_add_u32 s22, s22, s23")
    a(f"s_add_u32 s22, s22, {WA_OFF:#x}")
    for r in range(3):
        gpack(a, P0 + 4 * r, G0 + 8 * r)
        a(f"buffer_store_dwordx4 {vr(P0+4*r,4)}, v{vL16}, {WS}, s22 offen sc1")
        a(f"s_add_u32 s22, s22, {8*WCT}")
    a(f"s_cmp_ge_u32 {W}, 2")
    a("s_cbranch_scc1 L_prep_done")
    a("s_waitcnt lgkmcnt(0)")
    gpack(a, P0 + 12, G0 + 24)
    a(f"buffer_store_dwordx4 {vr(P0+12,4)}, v{vL16}, {WS}, s22 offen sc1")
    a("s_branch L_prep_done")
    x0_sub(a)
    a.lab("L_pb")
    a("s_mov_b32 s8, s44")
    a("s_mov_b32 s9, s45")
    a(f"s_mov_b32 s10, {576*3456}")
    a("s_sub_u32 s28, s2, 36")
    a("s_and_b32 s29, s28, 3")
    a("s_lshr_b32 s28, s28, 2")
    a(f"s_mul_i32 s22, s28, {16*3456}")
    a("s_mul_i32 s23, s29, 288")
    a("s_add_u32 s22, s22, s23")
    a(f"s_lshl_b32 s23, {W}, 10")
    a(f"s_add_u32 m0, s23, {L_PREP}")
    for r in range(2):
        a(f"v_add_u32 v4, {512*r}, v0")
        a("v_mul_u32_u24 v5, 607, v4")
        a("v_lshrrev_b32 v5, 15, v5")
        a("v_mul_u32_u24 v6, 54, v5")
        a("v_sub_u32 v4, v4, v6")
        a("v_mul_u32_u24 v6, 57, v4")
        a("v_lshrrev_b32 v6, 10, v6")
        a(f"v_mul_u32_u24 v6, {1152-288}, v6")
        a("v_lshl_add_u32 v4, v4, 4, v6")
        a("v_mul_u32_u24 v5, 3456, v5")
        a("v_add_u32 v4, v4, v5")
        a(f"buffer_load_dwordx4 v4, {AUX}, s22 offen lds")
        if r == 0: a("s_add_u32 m0, m0, 8192")
    x0_dma(a)
    a(f"v_mul_u32_u24 v10, {8*864}, v{vH}")
    a(f"s_mul_i32 s23, {W}, 36")
    a(f"s_add_u32 s23, s23, {L_PREP}")
    a("v_add_u32 v10, s23, v10")
    a(f"v_lshrrev_b32 v4, 4, v{vT}")
    a("v_mul_u32_u24 v4, 288, v4")
    a(f"v_and_b32 v5, 15, v{vT}")
    a("v_lshl_add_u32 v4, v5, 1, v4")
    a("v_add_u32 v4, v4, v10")
    gather(a, 4, 864, P0, G0)
    a("v_add_u32 v4, 576, v12")
    a(f"v_cmp_gt_u32 vcc, 18, v{vT}")
    a(f"v_bfe_u32 v5, v{vT}, 1, 1")
    a("v_mul_u32_u24 v5, 288, v5")
    a("v_cndmask_b32 v4, v11, v4, vcc")
    a(f"v_and_b32 v6, 1, v{vT}")
    a("v_lshl_add_u32 v5, v6, 1, v5")
    a(f"v_lshrrev_b32 v6, 2, v{vT}")
    a("v_cmp_eq_u32 vcc, 6, v6")
    a("v_add_u32 v5, 32, v5")
    a("s_nop 0")
    a("v_cndmask_b32 v4, v4, v5, vcc")
    a("v_add_u32 v4, v4, v10")
    gather(a, 4, 864, P0 + 4, G0 + 8)
    a("s_lshl_b32 s22, s29, 3")
    a(f"s_add_u32 s22, s22, {W}")
    a(f"s_mul_i32 s22, s22, {2*WCT}")
    a("s_lshl_b32 s23, s28, 10")
    a("s_add_u32 s22, s22, s23")
    a(f"s_add_u32 s22, s22, {WB_OFF:#x}")
    a("s_mov_b32 s100, s22")
    a(f"s_mov_b32 s101, {WCT}")
    a("s_waitcnt lgkmcnt(0)")
    gpack(a, RES, G0)
    gpack(a, RES + 4, G0 + 8)
    a("s_branch L_prep_done")
    a.lab("L_po")
    a("s_cmp_ge_u32 s2, 216")
    a("s_cselect_b32 s8, s46, s40")
    a("s_cselect_b32 s9, s47, s41")
    a("s_cselect_b32 s28, 36, 0")
    a(f"s_cselect_b32 s29, {WOB_OFF>>20}, {WOA_OFF>>20}")
    a(f"s_mov_b32 s10, {576*1152}")
    a("s_sub_u32 s28, s2, s28")
    a("s_sub_u32 s28, s28, 180")
    a(f"s_mul_i32 s22, s28, {18*1152}")
    a("s_sub_u32 s23, s28, 32")
    a(f"s_mul_i32 s23, s23, {144*1152}")
    a(f"s_add_u32 s23, s23, {16*1152}")
    a("s_cmp_ge_u32 s28, 32")
    a("s_cselect_b32 s22, s23, s22")
    a(f"s_cselect_b32 s24, {18*1152-2304}, 0")
    a(f"s_lshl_b32 s23, {W}, 10")
    a(f"s_add_u32 m0, s23, {L_PREP}")
    for r in range(3):
        if r == 2:
            a(f"s_cmp_ge_u32 {W}, 2")
            a("s_cbranch_scc1 L_po1")
        a(f"v_add_u32 v4, {512*r}, v0")
        a("v_mul_u32_u24 v5, 1821, v4")
        a("v_lshrrev_b32 v5, 18, v5")
        a("v_mul_lo_u32 v5, v5, s24")
        a("v_lshl_add_u32 v4, v4, 4, v5")
        a(f"buffer_load_dwordx4 v4, {AUX}, s22 offen lds")
        if r < 2: a("s_add_u32 m0, m0, 8192")
    a.lab("L_po1")
    x0_dma(a)
    a(f"v_mul_u32_u24 v10, {8*1152}, v{vH}")
    a(f"s_lshl_b32 s23, {W}, 6")
    a(f"s_add_u32 s23, s23, {L_PREP}")
    a("v_add3_u32 v4, v10, v12, s23")
    for r in range(3):
        gather(a, 4, 1152, P0 + 4 * r, G0 + 8 * r)
        a("v_add_u32 v4, 512, v4")
        if r == 1: a("s_waitcnt lgkmcnt(0)")
    a("s_lshl_b32 s29, s29, 20")
    a(f"s_mul_i32 s22, {W}, {WCT}")
    a("s_lshl_b32 s23, s28, 10")
    a("s_add_u32 s22, s22, s23")
    a("s_add_u32 s22, s22, s29")
    a("s_mov_b32 s100, s22")
    a(f"s_mov_b32 s101, {8*WCT}")
    a("s_waitcnt lgkmcnt(0)")
    gpack(a, RES, G0)
    gpack(a, RES + 4, G0 + 8)
    gpack(a, R, G0 + 16)
    a("s_branch L_prep_done")
    a.lab("L_pn")
    x0_dma(a)
    a.lab("L_prep_done")
    a(f"s_and_b32 s24, {sI}, 8")
    a("s_cmp_eq_u32 s24, 0")
    a("s_cbranch_scc1 L_pd_nokv")
    a(f"v_lshlrev_b32 v4, 1, v{vT}")
    a(f"s_cmp_ge_u32 {sI}, 16")
    a("s_cselect_b64 vcc, -1, 0")
    a(f"s_mul_i32 s23, {W}, 576")
    a(f"s_add_u32 s23, s23, {L_RAW}")
    a("v_cndmask_b32 v4, v4, v12, vcc")
    a(f"v_mul_u32_u24 v5, {8*36}, v{vH}")
    a("v_add3_u32 v4, v4, v5, s23")
    a(f"v_cmp_gt_u32 vcc, 18, v{vT}")
    a(f"s_lshl_b32 s23, {W}, 10")
    a(f"v_add_u32 v5, s23, v{vL16}")
    a("v_cndmask_b32 v4, v11, v4, vcc")
    for r in range(5):
        for j in range(8):
            a(f"ds_read_u16 v{G0+8*r+j}, v4 offset:{r*8*576+j*36}")
        if r % 2 == 1: a("s_waitcnt lgkmcnt(0)")
    a("s_waitcnt lgkmcnt(0)")
    for r in range(5):
        gpack(a, G0 + 8 * r, G0 + 8 * r)
        a(f"ds_write_b128 v5, {vr(G0+8*r,4)} offset:{r*8192}")
    a.lab("L_pd_nokv")
    a("s_mov_b32 s8, s48")
    a("s_mov_b32 s9, s49")
    a(f"s_mov_b32 s10, {2048*1152}")
    a(f"v_mov_b32 v5, {L_FLAG}")
    a(f"s_cmp_lg_u32 {W}, 7")
    a("s_cbranch_scc1 L_pd_w")
    a("s_mov_b32 s21, 0")
    a("s_waitcnt vmcnt(0)")
    a("v_mov_b32 v4, v101")
    a("v_cmp_eq_u32 vcc, 0, v101")
    a("s_cbranch_vccz L_pd_got")
    a.lab("L_pd_poll")
    a("buffer_load_dword v4, off, s[56:59], 0 sc1")
    a("s_add_u32 s21, s21, 1")
    a(f"s_cmp_gt_u32 s21, {sLIM}")
    a("s_waitcnt vmcnt(0)")
    a("s_cbranch_scc1 L_pd_got")
    a("v_cmp_eq_u32 vcc, 0, v4")
    a("s_cbranch_vccnz L_pd_poll")
    a.lab("L_pd_got")
    a("ds_write_b32 v5, v4")
    a("v_mov_b32 v4, 0")
    a("ds_write_b32 v5, v4 offset:4")
    a("ds_write_b32 v5, v4 offset:8")
    a.lab("L_pd_w")
    a("s_waitcnt vmcnt(0) lgkmcnt(0)")
    a("s_barrier")
    a("s_mov_b32 s33, 0")
    a(f"ds_read_b32 v{vNONCE}, v5")
    a("s_waitcnt lgkmcnt(0)")
    a(f"v_readfirstlane_b32 {sNONCE}, v{vNONCE}")
    a("s_getreg_b32 s34, hwreg(HW_REG_XCC_ID)")
    a("s_lshl_b32 s34, s34, 1")
    a(f"s_add_u32 s34, s34, {sNONCE}")
    a(f"s_cmp_lg_u32 {W}, 1")
    a("s_cbranch_scc1 L_nocensus")
    a("v_mov_b32 v5, s34")
    a(f"v_lshlrev_b32 v4, 3, v{vL16}")
    a(f"s_lshl_b32 s22, {sX}, 12")
    a(f"s_lshl_b32 s23, {sI}, 7")
    a("s_add_u32 s22, s22, s23")
    a(f"s_add_u32 s22, s22, {FL+20:#x}")
    a("s_mov_b64 exec, 1")
    a(f"buffer_store_dword v5, off, {WS}, s22 sc1")
    a(f"s_mul_i32 s22, {sX}, {BLK}")
    a(f"s_mul_i32 s23, {sI}, 640")
    a("s_add_u32 s22, s22, s23")
    a(f"s_add_u32 s22, s22, {KVL:#x}")
    a("s_mov_b64 exec, 31")
    a(f"buffer_load_dword v100, v4, {WS}, s22 offen sc1")
    a("s_mov_b64 exec, -1")
    a.lab("L_nocensus")

    a(f"s_cmp_lg_u32 {W}, 3")
    a("s_cbranch_scc1 L_pd_noflag")
    a("s_cmp_ge_u32 s2, 36")
    a("s_cbranch_scc1 L_pd_noflag")
    prep_flag(a)
    a.lab("L_pd_noflag")
    stamp(a, "prep_done")

def wa_role(a, skip):
    a(f"s_cmp_lt_u32 {W}, 4")
    a(f"s_cbranch_scc1 {skip}")
    a(f"s_lshr_b32 s23, {sI}, 2")
    a("s_mul_i32 s22, s23, 3")
    a(f"s_add_u32 s22, s22, {W}")
    a("s_sub_u32 s22, s22, 5")
    a(f"s_cmp_lg_u32 {W}, 4")
    l = a.nl("Lwa")
    a(f"s_cbranch_scc1 {l}")
    a("s_and_b32 s24, s23, 2")
    a("s_cmp_eq_u32 s24, 0")
    a(f"s_cbranch_scc1 {skip}")
    a("s_lshr_b32 s22, s23, 2")
    a("s_add_u32 s22, s22, 24")
    a.lab(l)

def wa_issue(a):
    a(f"s_mul_i32 s22, s22, {WCT}")
    a(f"s_add_u32 s22, s22, {WA_OFF:#x}")
    r_loads(a, WS, "s22", 0, 36)

QM = 24
QE = 28
S_ = [36, 52]
OC = 68
KM = 84
KE = 88
VA, VB = 92, 96
vKa, vKe, vVa = 8, 9, 10

FAIR = 3
CODEPF = 1
WLATE = 12
WAE = 36
WARMJ = 56
QPF = 12
LSTART = 6
BPF = 12
WEARLY = 0
def body(a, cur, rdKM=None, rdKE=None, rdVa=None, rdVb=None, u=0, qk=True, pv1=True, cinit=None, ke64=True, pvwait=2,
         extra=(), fair=None, ozero=False):
    s, n = S_[cur], S_[cur ^ 1]
    e = lambda r: a(f"v_exp_f32 v{s+r}, v{s+r}")
    c = lambda p: a(f"v_cvt_pk_bf16_f32 v{s+p+(4 if p >= 4 else 0)}, v{s+2*p}, v{s+2*p+1}")
    ad = lambda x, d: (f"v{x[0]} offset:{x[1]}" if isinstance(x, tuple) else f"v{d} offset:{x}")
    if fair is not None: a(f"s_setprio {fair[0]}")
    e(0); e(1)
    if pv1:
        a(f"s_waitcnt lgkmcnt({pvwait})")
        a(f"v_mfma_f32_32x32x16_bf16 {vr(OC,16)}, {vr(VB,4)}, {vr(n+8,4)}, {vr(OC,16)}")
    if rdVb is not None:
        a(f"ds_read_b128 {vr(VB,4)}, {ad(rdVb, vVa)}")
    if cinit is not None:
        cinit(n)
    e(2); e(3); e(4); c(0)
    if qk:
        a("s_waitcnt lgkmcnt(2)")
        a(f"v_mfma_f32_32x32x16_bf16 {vr(n,16)}, {vr(KM,4)}, {vr(QM,4)}, {vr(n,16) if cinit is not None else 0}")
    if rdKM is not None:
        a(f"ds_read_b128 {vr(KM,4)}, {ad(rdKM, vKa)}")
    e(5); e(6); e(7); c(1); c(2)
    if qk:
        a(f"v_mfma_f32_32x32x8_bf16 {vr(n,16)}, {vr(KE,2)}, {vr(QE+2*u,2)}, {vr(n,16)}")
    if rdKE is not None:
        a(f"ds_read_b64 {vr(KE,2)}, {ad(rdKE, vKe)}" if ke64 else f"ds_read_b32 v{KE}, {ad(rdKE, vKe)}")
    for x in extra: a(x)
    if fair is not None and fair[1] != fair[0]: a(f"s_setprio {fair[1]}")
    c(3); e(8); e(9); e(10); e(11); c(4)
    later = (rdVb is not None) + (rdKM is not None) + (rdKE is not None)
    a(f"s_waitcnt lgkmcnt({min(later, 2)})")
    a(f"v_mfma_f32_32x32x16_bf16 {vr(OC,16)}, {vr(VA,4)}, {vr(s,4)}, {0 if ozero else vr(OC,16)}")
    if rdVa is not None:
        a(f"ds_read_b128 {vr(VA,4)}, {ad(rdVa, vVa)}")
    e(12); e(13); e(14); e(15); c(5); c(6); c(7)

def tail_pv1(a, cur):
    a("s_waitcnt lgkmcnt(0)")
    a("s_nop 0")
    a(f"v_mfma_f32_32x32x16_bf16 {vr(OC,16)}, {vr(VB,4)}, {vr(S_[cur]+8,4)}, {vr(OC,16)}")

def v_addr(a, base):
    a(f"v_mul_u32_u24 v{vVa}, 304, v{vH}")
    a(f"v_min_u32 v4, 18, v{vT}")
    a(f"v_lshl_add_u32 v{vVa}, v4, 4, v{vVa}")
    a(f"v_add_u32 v{vVa}, {base}, v{vVa}")
    a(f"v_cmp_ge_u32 vcc, 18, v{vT}")
    a(f"v_cmp_eq_u32 s[62:63], 28, v{vT}")
    a("s_or_b64 vcc, vcc, s[62:63]")
    a(f"v_mov_b32 v4, {LOOB:#x}")
    a("s_nop 0")
    a(f"v_cndmask_b32 v{vVa}, v4, v{vVa}, vcc")

def attn_finish(a, tag, sT, sHead, OO):
    a(f"s_mul_i32 s24, {sT}, {XT}")
    a(f"s_add_u32 s24, s24, {OO:#x}")
    a(f"s_lshl_b32 s27, {sHead}, 10")
    a("s_add_u32 s27, s27, s24")
    a(f"s_lshr_b32 s25, {sHead}, 2")
    a("s_lshl_b32 s25, s25, 9")
    a(f"s_and_b32 s26, {sHead}, 3")
    a("s_lshl_b32 s26, s26, 2")
    a("s_add_u32 s25, s25, s26")
    a("s_add_u32 s25, s25, s24")
    a(f"s_add_u32 s25, s25, {32*1024}")
    a(f"v_cmp_eq_u32 vcc, 0, v{vH}")
    a(f"v_lshlrev_b32 v12, 30, v{vH}")
    a(f"v_lshl_add_u32 v12, v{vT}, 4, v12")
    a(f"v_mov_b32 v5, {f2u(2.0**60):#x}")
    a(f"v_cndmask_b32 v4, v{OC+12}, v{OC+10}, vcc")
    a(f"v_cmp_le_f32 vcc, {f2u(2.0**-60):#x}, v4")
    a("v_cmp_le_f32 s[62:63], v4, v5")
    a("s_and_b64 vcc, vcc, s[62:63]")
    a("s_cmp_eq_u64 vcc, -1")
    a(f"s_cbranch_scc0 L_{tag}_slow")
    if FORCESLOW: a(f"s_branch L_{tag}_slow")
    a.lab(f"L_{tag}_fin")
    a("v_rcp_f32 v4, v4")
    a("s_nop 0")
    for r in range(10):
        a(f"v_mul_f32 v{OC+r}, v4, v{OC+r}")
    pack(a, OC, 5)
    lstore(a, [f"buffer_store_dwordx4 {vr(OC,4)}, v{vL16}, {WS}, s27 offen",
               f"buffer_store_dword v{OC+4}, v12, {WS}, s25 offen"])

def mask_init(a, dst, diag):
    for r in range(16):
        m = f"s[{MASK+2*r}:{MASK+2*r+1}]"
        if diag: a(f"v_cndmask_b32 v{dst+r}, v11, 0, {m}")
        else:    a(f"v_cndmask_b32 v{dst+r}, 0, v11, {m}")

def slow_qk(a, u, cin):
    s = S_[0]
    a("s_waitcnt lgkmcnt(0)")
    a("s_nop 1")
    a(f"v_mfma_f32_32x32x16_bf16 {vr(s,16)}, {vr(KM,4)}, {vr(QM,4)}, {vr(s,16) if cin else 0}")
    a(f"v_mfma_f32_32x32x8_bf16 {vr(s,16)}, {vr(KE,2)}, {vr(QE+2*u,2)}, {vr(s,16)}")
    a("s_nop 12")

def slow_max(a):
    s = S_[0]
    for i in range(8):
        a(f"v_max3_f32 v7, v{s+2*i}, v{s+2*i+1}, v7")

def slow_pv(a):
    s = S_[0]
    for r in range(16):
        a(f"v_sub_f32 v{s+r}, v{s+r}, v7")
    for r in range(16):
        a(f"v_exp_f32 v{s+r}, v{s+r}")
    a("s_nop 0")
    pack(a, s, 8)
    a("s_nop 1")
    a(f"v_mfma_f32_32x32x16_bf16 {vr(OC,16)}, {vr(VA,4)}, {vr(s,4)}, {vr(OC,16)}")
    a(f"v_mfma_f32_32x32x16_bf16 {vr(OC,16)}, {vr(VB,4)}, {vr(s+4,4)}, {vr(OC,16)}")
    a("s_nop 7")

def slow_mid(a):
    a("v_mov_b32 v6, v7")
    a("s_nop 1")
    a("v_permlane32_swap_b32 v6, v7")
    a("s_nop 1")
    a("v_max_f32 v7, v6, v7")
    for r in range(16):
        a(f"v_mov_b32 v{OC+r}, 0")

def slow_end(a, tag):
    a("s_nop 12")
    a(f"v_cmp_eq_u32 vcc, 0, v{vH}")
    a("s_nop 1")
    a(f"v_cndmask_b32 v4, v{OC+12}, v{OC+10}, vcc")
    a(f"s_branch L_{tag}_fin")

def out_role(a):
    a(f"s_and_b32 s42, {sI}, 7")
    a(f"s_lshl_b32 s43, {sX}, 3")
    a("s_add_u32 s42, s42, s43")
    a(f"s_lshr_b32 s44, {sI}, 3")
    a("s_mul_i32 s43, s44, 9")
    a("s_add_u32 s43, s43, 1")
    a("s_lshr_b32 s43, s43, 1")
    a(f"s_add_u32 s43, s43, {W}")
    a("s_and_b32 s44, s44, 1")
    a("s_sub_u32 s44, 5, s44")

def gen_pha(a, slow):
    a.lab("L_it")
    stamp(a, "A_begin")
    a(f"s_and_b32 s45, {sI}, 3")
    a("s_lshl_b32 s45, s45, 1")
    a(f"s_lshl_b32 s46, {sX}, 3")
    a("s_add_u32 s45, s45, s46")
    a(f"s_lshr_b32 s46, {sI}, 2")
    a(f"s_cmp_ge_u32 {W}, 5")
    a("s_cbranch_scc1 L_A_q2")
    a(f"s_cmp_eq_u32 {W}, 4")
    a("s_cbranch_scc1 L_A_kv")
    a(f"s_cmp_ge_u32 {W}, 2")
    a("s_cbranch_scc1 L_A_st")
    a(f"s_add_u32 s22, s45, {W}")
    a(f"s_cmp_eq_u32 {sIT}, 0")
    a("s_cbranch_scc1 L_A_ld3")
    a("s_lshl_b32 s23, s22, 9")
    a(f"s_add_u32 s23, s23, {FXA:#x}")
    poll(a, IT, "s23", 4)
    stamp(a, "A_xflag")
    a(f"s_mul_i32 s22, s22, {XT}")
    a(f"s_add_u32 s22, s22, {XS:#x}")
    a(f"s_mul_i32 s23, {W}, {XT}")
    a(f"s_add_u32 m0, s23, {L_XA}")
    dma(a, WS, "s22", 36, 1024, 1024)
    a.lab("L_A_ld2")
    for n in (24, 12, 0):
        a(f"s_waitcnt vmcnt({n})")
        a("s_barrier")
        if n == 24: stamp(a, "A_bar1")
    a.lab("L_A_ld3")
    a(f"s_cmp_lg_u32 {W}, 0")
    a("s_cbranch_scc1 L_A_q")
    a(f"s_lshl_b32 s23, {sX}, 12")
    a(f"s_add_u32 s23, s23, {FKAL:#x}")
    poll(a, IT, "s23", 16)
    stamp(a, "A_kvflag")
    a(f"s_mul_i32 s22, {sX}, {BLK}")
    a(f"s_add_u32 s22, s22, {KVL:#x}")
    a("s_mov_b32 m0, 0")
    dma(a, WS, "s22", 19, 1024, 1024, half_last=True)
    a("s_waitcnt vmcnt(0)")
    a("s_branch L_A_q")
    a.lab("L_A_idle")
    a(f"s_cmp_eq_u32 {sIT}, 0")
    a("s_cbranch_scc1 L_A_q")
    for n in range(3):
        a("s_barrier")
    a("s_branch L_A_q")
    a.lab("L_A_st")
    a(f"s_sub_u32 s24, {W}, 2")
    a(f"s_cmp_eq_u32 {sIT}, 0")
    a("s_cbranch_scc0 L_A_st1")
    a(f"s_mul_i32 s25, s24, {XT}")
    a(f"s_add_u32 s25, s25, {L_XA}")
    xaddr(a, 40, "s25")
    for q in range(4): a(f"v_mov_b32 v{STR+q}, 0")
    a("s_mov_b32 s25, 0")
    a.lab("L_A_st0")
    for k in range(12):
        a(f"ds_read_b128 {vr(R+4+4*k,4)}, v{40+(k&3)} offset:{(k>>2)*4096}")
    for k in range(12):
        a(f"s_waitcnt lgkmcnt({11-k})")
        for d in range(4):
            a(f"v_dot2_f32_bf16 v{STR+2*(d&1)}, v{R+4+4*k+d}, s60, v{STR+2*(d&1)}")
            a(f"v_dot2_f32_bf16 v{STR+1+2*(d&1)}, v{R+4+4*k+d}, v{R+4+4*k+d}, v{STR+1+2*(d&1)}")
    for q in range(4):
        a(f"v_add_u32 v{40+q}, {3*4096}, v{40+q}")
    a("s_add_u32 s25, s25, 1")
    a("s_cmp_lt_u32 s25, 3")
    a("s_cbranch_scc1 L_A_st0")
    a(f"v_add_f32 v{STR}, v{STR}, v{STR+2}")
    a(f"v_add_f32 v{STR+1}, v{STR+1}, v{STR+3}")
    a("s_nop 1")
    a(f"v_permlane32_swap_b32 v{STR}, v{STR+1}")
    a("s_nop 1")
    a(f"v_add_f32 v{STR}, v{STR}, v{STR+1}")
    a("s_branch L_A_st2")
    a.lab("L_A_st1")
    a("s_add_u32 s25, s45, s24")
    a("s_barrier")
    stats_load(a, STR, "s25", STS)
    a("s_barrier")
    a("s_waitcnt vmcnt(0)")
    stats_sum(a, STR)
    a.lab("L_A_st2")
    stats_compute(a, STR, XEXT, RSTD)
    a("s_lshl_b32 s24, s24, 8")
    a(f"s_add_u32 s24, s24, {L_MISC}")
    a(f"v_lshl_add_u32 v4, v{vT}, 2, s24")
    a(f"ds_write_b32 v4, v{RSTD}")
    a(f"ds_write_b32 v4, v{XEXT} offset:128")
    a("s_waitcnt lgkmcnt(0)")
    a(f"s_cmp_eq_u32 {sIT}, 0")
    a("s_cbranch_scc1 L_A_st3")
    a("s_barrier")
    a("s_branch L_A_q")
    a.lab("L_A_st3")
    a(f"v_mov_b32 v5, {L_FLAG+8}")
    a("v_mov_b32 v6, 1")
    a("s_mov_b64 exec, 1")
    a("ds_add_u32 v5, v6")
    a("s_mov_b64 exec, -1")
    a("s_branch L_A_q")
    def bar1():
        l = a.nl("Lb")
        a(f"s_cmp_eq_u32 {sIT}, 0")
        a(f"s_cbranch_scc1 {l}")
        a("s_barrier")
        a.lab(l)
    def gemm3(bases, swap, pre, staged):
        a(f"v_mov_b32 v{XEXT+1}, 0")
        a(f"v_mov_b32 v{XEXT+3}, 0")
        if staged:
            def h2():
                bar1(); pre()
            gemm_stage(a, bases, 0, 36, swap, True, quad=True, hooks={0: bar1, 12: bar1, 20: (lambda: census_issue(a, 44)), 24: h2})
        else:
            for _ in range(3): bar1()
            gemm_stage(a, bases, 0, 36, swap, True, cs=True, pre=pre, quad=True)
        l = a.nl("Lst")
        a(f"s_cmp_eq_u32 {sIT}, 0")
        a(f"s_cbranch_scc0 {l}")
        if staged:
            a("s_call_b64 s[30:31], L_A_cs")
        a(f"v_mov_b32 v46, v5" if staged else "v_mov_b32 v96, v5")
        a(f"v_mov_b32 v47, v6" if staged else "v_mov_b32 v97, v6")
        a(f"s_mov_b32 s50, {L_FLAG+8}")
        a("s_mov_b32 s51, 2")
        a("s_call_b64 s[30:31], L_B_wait")
        a(f"v_mov_b32 v5, v46" if staged else "v_mov_b32 v5, v96")
        a(f"v_mov_b32 v6, v47" if staged else "v_mov_b32 v6, v97")
        pre()
        a("s_waitcnt lgkmcnt(0)")
        a.lab(l)
    def first_w():
        l, e = a.nl("Lfw"), a.nl("Lfe")
        a(f"s_cmp_eq_u32 {sIT}, 0")
        a(f"s_cbranch_scc0 {l}")
        a(f"s_mov_b32 s23, {FPREP:#x}")
        poll(a, WS, "s23", 36, vtmp=4, voff=13)
        stamp(a, "A_wflag")
        wa_role(a, l)
        a(f"s_mul_i32 s40, s22, {WCT}")
        a(f"s_add_u32 s40, s40, {WA_OFF:#x}")
        r_loads(a, WS, "s40", 0, QPF)
        a(f"s_branch {e}")
        a.lab(l)
        a("s_waitcnt vmcnt(0)")
        a.lab(e)
    a.lab("L_A_kv")
    a("s_and_b32 s24, s46, 2")
    a("s_cmp_eq_u32 s24, 0")
    a("s_cbranch_scc1 L_A_idle")
    a("s_and_b32 s24, s46, 1")
    a("s_add_u32 s47, s45, s24")
    a("s_lshl_b32 s27, s24, 8")
    a(f"s_add_u32 s27, s27, {L_MISC}")
    a(f"s_mul_i32 s24, s24, {XT}")
    a(f"s_add_u32 s24, s24, {L_XA}")
    xaddr(a, 40, "s24")
    a(f"v_lshl_add_u32 v6, v{vT}, 2, s27")
    a(f"v_lshl_add_u32 v5, v{vH}, 4, s27")
    a("s_lshr_b32 s28, s47, 2")
    a(f"s_mul_i32 s28, s28, {GRP}")
    a(f"s_add_u32 s28, s28, {KVA:#x}")
    a("s_and_b32 s29, s47, 3")
    a("s_setprio 3")
    a("s_waitcnt vmcnt(0)")
    a(f"s_cmp_eq_u32 {sIT}, 0")
    a("s_cbranch_scc0 L_A_kv1")
    for ks in range(36):
        a(f"ds_read_b128 {vr(R+4*ks,4)}, v{vL16} offset:{ks*1024}")
        if ks % 12 == 11: a("s_waitcnt lgkmcnt(0)")
    a.lab("L_A_kv1")
    a("s_cmp_ge_u32 s46, 4")
    a("s_cbranch_scc1 L_A_v")
    def pre_k():
        a(f"ds_read_b32 v{RSTD}, v6")
        a(f"ds_read_b32 v{XEXT}, v6 offset:128")
    gemm3([40], False, pre_k, True)
    a(f"v_mfma_f32_32x32x8_bf16 {vr(ACC,16)}, {vr(WEXT,2)}, {vr(XEXT,2)}, {vr(ACC,16)}")
    a("s_lshl_b32 s30, s29, 10")
    a("s_add_u32 s30, s30, s28")
    a(f"s_add_u32 s31, s30, {KVL-KVA:#x}")
    a("s_lshr_b32 s24, s29, 1")
    a("s_lshl_b32 s24, s24, 8")
    a("s_and_b32 s25, s29, 1")
    a("s_lshl_b32 s25, s25, 2")
    a("s_add_u32 s24, s24, s25")
    a("s_add_u32 s24, s24, s28")
    a("s_add_u32 s24, s24, 4096")
    a(f"s_add_u32 s25, s24, {KVL-KVA:#x}")
    a(f"v_lshlrev_b32 v4, 30, v{vH}")
    a(f"v_lshl_add_u32 v4, v{vT}, 3, v4")
    for r in range(10):
        a(f"v_mul_f32 v{ACC+r}, v{RSTD}, v{ACC+r}")
    pack(a, ACC, 5)
    a("s_waitcnt vmcnt(0)")
    census_eval(a, 44, sLOC)
    lstore(a, [f"buffer_store_dwordx4 {vr(ACC,4)}, v{vL16}, {WS}, s31 offen", f"buffer_store_dword v{ACC+4}, v4, {WS}, s25 offen"])
    a("s_add_u32 s30, s30, s33")
    a("s_add_u32 s24, s24, s33")
    a(f"buffer_store_dwordx4 {vr(ACC,4)}, v{vL16}, {IT}, s30 offen sc1")
    a(f"buffer_store_dword v{ACC+4}, v4, {IT}, s24 offen sc1")
    a("s_mov_b32 s26, 0")
    a("s_branch L_A_kvflag")
    a.lab("L_A_v")
    def pre_v():
        a(f"ds_read_b32 v{XEXT}, v6 offset:128")
        for q in range(4):
            a(f"ds_read_b128 {vr(STR+4*q,4)}, v5 offset:{32*q}")
    gemm3([40], True, pre_v, True)
    a(f"v_mfma_f32_32x32x8_bf16 {vr(ACC,16)}, {vr(XEXT,2)}, {vr(WEXT,2)}, {vr(ACC,16)}")
    a(f"s_mul_i32 s30, s29, {VT}")
    a("s_add_u32 s30, s30, s28")
    a("s_add_u32 s30, s30, 4608")
    a(f"s_add_u32 s31, s30, {KVL-KVA:#x}")
    a(f"v_mul_u32_u24 v4, 304, v{vH}")
    a(f"v_lshl_add_u32 v4, v{vT}, 4, v4")
    a(f"v_mov_b32 v5, {OOB:#x}")
    a(f"v_cmp_ge_u32 vcc, 18, v{vT}")
    a("s_nop 1")
    a("v_cndmask_b32 v4, v5, v4, vcc")
    a("s_nop 1")
    for r in range(16):
        a(f"v_mul_f32 v{ACC+r}, v{STR+r}, v{ACC+r}")
    pack(a, ACC, 8)
    a("s_mov_b32 s24, 0x40000")
    a("s_mov_b32 s25, 0x40000")
    a("s_mov_b64 exec, s[24:25]")
    for p in range(8):
        a(f"v_mov_b32 v{ACC+p}, s60")
    a("s_mov_b64 exec, -1")
    a("s_waitcnt vmcnt(0)")
    census_eval(a, 44, sLOC)
    lstore(a, [f"buffer_store_dwordx4 {vr(ACC,4)}, v4, {WS}, s31 offen", f"buffer_store_dwordx4 {vr(ACC+4,4)}, v4, {WS}, s31 offen offset:608"])
    a("s_add_u32 s30, s30, s33")
    for so in ("s30",):
        a(f"buffer_store_dwordx4 {vr(ACC,4)}, v4, {IT}, {so} offen sc1")
        a(f"buffer_store_dwordx4 {vr(ACC+4,4)}, v4, {IT}, {so} offen offset:608 sc1")
    a("s_mov_b32 s26, 128")
    a.lab("L_A_kvflag")
    stamp(a, "A_kvst")
    a("s_lshl_b32 s24, s47, 8")
    a("s_add_u32 s24, s24, s26")
    a(f"s_lshl_b32 s25, {sX}, 11")
    a("s_add_u32 s25, s25, s24")
    a(f"s_add_u32 s25, s25, {FKAL:#x}")
    a(f"s_add_u32 s24, s24, {FKA:#x}")
    a("s_waitcnt vmcnt(2)")
    stamp(a, "A_kvack")
    setflag(a, IT, "s25", local=True)
    a("s_waitcnt vmcnt(1)")
    setflag(a, IT, "s24")
    a("s_setprio 0")
    a("s_branch L_A_q")
    a.lab("L_A_q2")
    xaddr(a, 88, L_XA)
    for q in range(4):
        a(f"v_add_u32 v{92+q}, {XT}, v{88+q}")
    a(f"v_lshlrev_b32 v5, 2, v{vT}")
    a(f"v_add_u32 v5, {L_MISC}, v5")
    first_w()
    def pre_q():
        for t in range(2):
            a(f"ds_read_b32 v{RSTD+t}, v5 offset:{256*t}")
            a(f"ds_read_b32 v{XEXT+2*t}, v5 offset:{256*t+128}")
    gemm3([88, 92], False, pre_q, False)
    for t in range(2):
        a(f"v_mfma_f32_32x32x8_bf16 {vr(ACC+16*t,16)}, {vr(WEXT,2)}, {vr(XEXT+2*t,2)}, {vr(ACC+16*t,16)}")
    for t in range(2):
        a(f"v_mul_f32 v{RSTD+t}, {f2u(QSCALE):#x}, v{RSTD+t}")
    a(f"s_sub_u32 s24, {W}, 5")
    a(f"s_mul_i32 s24, s24, {4*1152}")
    a(f"s_add_u32 s24, s24, {L_Q}")
    a(f"v_add_u32 v4, s24, v{vL16}")
    a(f"v_mul_u32_u24 v5, {4*1152}, v{vH}")
    a(f"v_lshl_add_u32 v5, v{vT}, 2, v5")
    a(f"v_add_u32 v5, {L_Q+1024}, v5")
    a("s_nop 3")
    for t in range(2):
        for r in range(16):
            a(f"v_mul_f32 v{ACC+16*t+r}, v{RSTD+t}, v{ACC+16*t+r}")
        pack(a, ACC + 16 * t, 8)
    a(f"s_cmp_eq_u32 {W}, 7")
    a("s_cbranch_scc1 L_A_qext")
    for t in range(2):
        for hh in range(2):
            a(f"ds_write_b128 v4, {vr(ACC+16*t+4*hh,4)} offset:{(2*hh+t)*1152}")
    a("s_branch L_A_q")
    a.lab("L_A_qext")
    for t in range(2):
        for p in range(2):
            a(f"ds_write_b32 v5, v{ACC+16*t+p} offset:{(2*p+t)*1152}")
    a.lab("L_A_q")
    a("s_waitcnt vmcnt(0) lgkmcnt(0)")
    a("s_barrier")
    stamp(a, "A_attn0")
    a(f"v_lshlrev_b32 v11, 3, v{vL16}")
    a(f"s_add_u32 s47, {sX}, {W}")
    a("s_and_b32 s47, s47, 7")
    a("s_lshl_b32 s23, s47, 11")
    a(f"s_add_u32 s23, s23, {FKA:#x}")
    a(f"v_mov_b32 v12, v{vNONCE}")
    set_exec(a, 0xffff)
    poll_issue(a, IT, "s23", 16, 12, 11)
    a("s_mov_b64 exec, -1")
    a(f"s_mul_i32 s24, {W}, 1152")
    a(f"s_add_u32 s24, s24, {L_Q}")
    a(f"v_add_u32 v4, s24, v{vL16}")
    a(f"v_lshl_add_u32 v5, v{vT}, 2, s24")
    a(f"ds_read_b128 {vr(QM,4)}, v4")
    a(f"ds_read_b32 v6, v5 offset:1024")
    a(f"v_mov_b32 v{vKa}, v{vL16}")
    a(f"v_lshlrev_b32 v{vKe}, 8, v{vH}")
    a(f"v_lshl_add_u32 v{vKe}, v{vT}, 3, v{vKe}")
    a(f"ds_read_b128 {vr(KM,4)}, v{vKa}")
    a(f"ds_read_b64 {vr(KE,2)}, v{vKe} offset:4096")
    v_addr(a, 4608)
    a(f"v_cmp_eq_u32 vcc, 0, v{vH}")
    for r in (1, 2, 5, 6):
        a(f"v_mov_b32 v{QE+r}, 0")
    a("s_waitcnt lgkmcnt(0)")
    a(f"v_cndmask_b32 v{QE}, 0, v6, vcc")
    a(f"v_cndmask_b32 v{QE+3}, 0, v6, vcc")
    a(f"v_cndmask_b32 v{QE+4}, v6, 0, vcc")
    a(f"v_cndmask_b32 v{QE+7}, v6, 0, vcc")
    a(f"v_mfma_f32_32x32x16_bf16 {vr(S_[0],16)}, {vr(KM,4)}, {vr(QM,4)}, 0")
    a(f"v_mfma_f32_32x32x8_bf16 {vr(S_[0],16)}, {vr(KE,2)}, {vr(QE,2)}, {vr(S_[0],16)}")
    a(f"ds_read_b128 {vr(KM,4)}, v{vKa} offset:1024")
    a(f"ds_read_b128 {vr(VA,4)}, v{vVa}")
    a(f"s_and_b32 s22, {W}, 1")
    a("s_add_u32 s45, s45, s22")
    a("s_lshl_b32 s46, s46, 2")
    a(f"s_lshr_b32 s22, {W}, 1")
    a("s_add_u32 s46, s46, s22")
    out_role(a)
    a(f"s_lshl_b32 s41, {sI}, 1")
    a(f"s_add_u32 s41, s41, {W}")
    a("s_sub_u32 s41, s41, 5")
    a(f"s_mul_i32 s41, s41, {WCT}")
    a(f"s_add_u32 s41, s41, {WB_OFF:#x}")
    a(f"s_sub_u32 s22, {W}, 5")
    a("s_cmp_lt_u32 s22, 2")
    a(f"s_cselect_b32 s41, s41, {OOB:#x}")
    a(f"s_mul_i32 s22, s43, {XT}")
    a(f"s_add_u32 s22, s22, {WOA_OFF:#x}")
    a(f"s_cmp_lt_u32 {W}, s44")
    a("s_cselect_b32 s41, s22, s41")
    base = {vKa: 0, vKe: 0, vVa: 0}
    def off(reg, o):
        if o - base[reg] > 65535:
            d = 6 * GRP
            a(f"v_add_u32 v{reg}, {d}, v{reg}")
            base[reg] += d
        assert 0 <= o - base[reg] <= 65535
        return o - base[reg]
    def call_if(lo, hi, target):
        l = a.nl("Lc")
        if lo == hi:
            a(f"s_cmp_eq_u32 {W}, {lo}")
        else:
            a(f"s_sub_u32 s22, {W}, {lo}")
            a(f"s_cmp_le_u32 s22, {hi-lo}")
        a(f"s_cbranch_scc0 {l}")
        a(f"s_call_b64 s[30:31], {target}")
        a.lab(l)
    ko = lambda t: (t >> 2) * GRP + (t & 3) * 1024
    vo = lambda t: (t >> 2) * GRP + (t & 3) * VT
    for j in range(64):
        if j + 1 < 64: off(vVa, vo(j + 1))
        kw = dict(rdKM=off(vKa, ko(j + 2)) if j + 2 < 64 else None,
                  rdKE=off(vKe, ((j + 2) >> 2) * GRP + 4096) if (j + 2 < 64 and (j + 2) % 4 == 0) else None,
                  rdVa=off(vVa, vo(j + 1)) if j + 1 < 64 else None, rdVb=off(vVa, vo(j) + 608))
        ex = []
        if 38 <= j < 56:
            for ks in (2 * (j - 38), 2 * (j - 38) + 1):
                if ks % 4 == 0: ex.append(f"s_add_u32 s61, s41, {(ks//4)*4096}")
                ex.append(f"buffer_load_dwordx4 {vr(R+4*ks,4)}, v{vL16}, {WS}, s61 offen offset:{(ks%4)*1024}")
        body(a, j & 1, u=(j + 1) & 3, qk=(j < 63), pv1=(j > 0), pvwait=(1 if j == 63 else 2), extra=ex, ozero=(j == 0),
             fair=[None, (1, 0), (3 - (j & 3),) * 2, (3 - 2 * (j & 1), 2 - 2 * (j & 1)), (3 - ((j >> 1) & 3),) * 2][FAIR], **kw)
        if j == 0: call_if(7, 7, "L_A_touch0")
        if j == 1: call_if(1, 2, "L_A_fetch")
        if j == 5:
            a("s_waitcnt vmcnt(0)")
            a("s_barrier")
            stamp(a, "A_n2b")
            call_if(3, 4, "L_A_fetch")
            call_if(0, 2, "L_defer")
        if j == 9: call_if(5, 6, "L_A_fetch")
        if j == 13: call_if(7, 7, "L_A_fetch")
        if j == 21:
            a("s_waitcnt vmcnt(0)")
            a("s_barrier")
            stamp(a, "A_n4b")
            stamp(a, "A_n4b", True)
            call_if(1, 1, "L_A_pflag")
        if j == 22: call_if(0, 3, "L_A_touch")
        if j == 26: call_if(4, 6, "L_A_touch")
        if j == 34: call_if(7, 7, "L_A_touch")
        if j == 27: call_if(7, 7, "L_A_check0")
        if j == 32: call_if(7, 7, "L_A_check")
        if j == WARMJ: call_if(7, 7, "L_A_warm")
        if j == 37:
            l = a.nl("Lc")
            a(f"s_cmp_eq_u32 {sIT}, 0")
            a(f"s_cbranch_scc0 {l}")
            a(f"s_mov_b32 s50, {L_FLAG+4}")
            a("s_mov_b32 s51, 1")
            a("s_call_b64 s[30:31], L_B_wait")
            a(f"v_readfirstlane_b32 {sLOC}, v6")
            a.lab(l)
    tail_pv1(a, 1)
    a("s_setprio 0")
    stamp(a, "A_attn1")
    stamp(a, "A_attn1", True)
    attn_finish(a, "A", "s45", "s46", OS)
    a("s_waitcnt vmcnt(0)")
    a("s_barrier")
    a(f"s_cmp_lg_u32 {W}, 0")
    a("s_cbranch_scc1 L_A_end")
    a("s_lshr_b32 s22, s45, 1")
    a("s_lshl_b32 s22, s22, 10")
    a("s_lshl_b32 s23, s46, 5")
    a("s_add_u32 s22, s22, s23")
    a(f"s_add_u32 s22, s22, {FOA:#x}")
    setflag(a, IT, "s22", local=True)
    a.lab("L_A_end")
    stamp(a, "A_end")
    b = slow
    RET = "s_setpc_b64 s[30:31]"
    b.lab("L_defer")
    b(f"s_cmp_eq_u32 {sIT}, 0")
    b("s_cbranch_scc0 L_ret")
    b(f"buffer_store_dwordx4 {vr(RES,4)}, v{vL16}, {WS}, s100 offen sc1")
    b("s_add_u32 s100, s100, s101")
    b(f"buffer_store_dwordx4 {vr(RES+4,4)}, v{vL16}, {WS}, s100 offen sc1")
    b("s_cmp_lt_u32 s2, 180")
    b("s_cbranch_scc1 L_ret")
    b(f"s_cmp_ge_u32 {W}, 2")
    b("s_cbranch_scc1 L_ret")
    b("s_add_u32 s100, s100, s101")
    b(f"buffer_store_dwordx4 {vr(R,4)}, v{vL16}, {WS}, s100 offen sc1")
    b.lab("L_ret")
    b(RET)
    b.lab("L_A_warm")
    b(f"s_mul_i32 s24, {sI}, 20736")
    b(f"s_add_u32 s24, s24, {WOB_OFF:#x}")
    for q in range(3):
        b(f"buffer_load_dword v{100+q}, v11, {WS}, s24 offen")
        b("s_add_u32 s24, s24, 8192")
    b(f"s_cmp_eq_u32 {sIT}, 0")
    b("s_cbranch_scc0 L_ret")
    b(f"s_mul_i32 s24, {sI}, 29952")
    b(f"s_add_u32 s24, s24, {WA_OFF:#x}")
    for q in range(4):
        b(f"buffer_load_dword v{104+q}, v11, {WS}, s24 offen")
        b("s_add_u32 s24, s24, 8192")
    b(RET)
    b.lab("L_A_cs")
    census_issue(b, 44)
    for ks in range(36): cs_dot(b, ks)
    cs_pack(b, WEXT)
    b(RET)
    b.lab("L_A_pflag")
    b(f"s_cmp_eq_u32 {sIT}, 0")
    b("s_cbranch_scc0 L_ret")
    b("s_cmp_lt_u32 s2, 36")
    b("s_cbranch_scc1 L_ret")
    prep_flag(b)
    b(RET)
    b.lab("L_A_fetch")
    b("s_waitcnt vmcnt(0)")
    poll_test(b, 16, 12)
    b("s_cbranch_vccz L_A_fetch2")
    b("s_lshl_b32 s23, s47, 11")
    b(f"s_add_u32 s23, s23, {FKA:#x}")
    poll(b, IT, "s23", 16, vtmp=4, voff=11, setoff=False)
    b.lab("L_A_fetch2")
    b(f"s_mul_i32 s22, s47, {BLK}")
    b("s_add_u32 s22, s22, s33")
    b(f"s_mul_i32 m0, {W}, {BLK}")
    dma(b, IT, "s22", 19, 1024, 1024, half_last=True)
    b(f"s_cmp_ge_u32 {W}, 3")
    b("s_cbranch_scc1 L_defer")
    b(RET)
    b.lab("L_A_check0")
    b(f"s_cmp_eq_u32 {sIT}, 0")
    b("s_cbranch_scc0 L_ret")
    b(f"s_mov_b32 s22, {FPREP:#x}")
    poll_issue(b, WS, "s22", 256, 104, 11)
    census_issue(b, 108)
    b(RET)
    b.lab("L_A_check")
    b(f"s_cmp_eq_u32 {sIT}, 0")
    b("s_cbranch_scc0 L_ret")
    b("s_waitcnt vmcnt(0)")
    poll_test(b, 256, 104)
    b("s_cbranch_vccz L_A_check2")
    b(f"s_mov_b32 s22, {FPREP:#x}")
    poll(b, WS, "s22", 256, vtmp=4, voff=11, setoff=False)
    b.lab("L_A_check2")
    census_eval(b, 108, "s22")
    b("v_mov_b32 v4, s22")
    b(f"v_mov_b32 v5, {L_FLAG}")
    b("ds_write_b32 v5, v4 offset:4")
    b("s_waitcnt lgkmcnt(0)")
    b(RET)
    b.lab("L_A_touch0")
    b(f"s_cmp_eq_u32 {sIT}, 0")
    b("s_cbranch_scc0 L_ret")
    b(f"s_mov_b32 s22, {FPREP:#x}")
    poll_issue(b, WS, "s22", 256, 100, 11)
    b(RET)
    b.lab("L_A_touch")
    b(f"s_cmp_eq_u32 {sIT}, 0")
    b("s_cbranch_scc0 L_ret")
    b(f"s_lshl_b32 s22, {sI}, 6")
    b(f"s_lshl_b32 s23, {sX}, 3")
    b("s_add_u32 s22, s22, s23")
    b(f"s_add_u32 s22, s22, {W}")
    b("s_lshl_b32 s23, s22, 7")
    b(f"s_add_u32 s23, s23, {FKB:#x}")
    b(f"s_mul_i32 s22, s22, {KVT}")
    b(f"s_add_u32 s22, s22, {KVB:#x}")
    set_exec(b, (1 << 20) - 1)
    b(f"buffer_load_dword v100, v11, {IT}, s22 offen sc1")
    b("s_mov_b64 exec, 1")
    b(f"buffer_load_dword v100, off, {IT}, s23 sc1")
    b("s_mov_b64 exec, -1")
    b(f"s_mul_i32 s22, s45, {XT}")
    b(f"s_add_u32 s22, s22, {OS:#x}")
    b("s_lshl_b32 s23, s46, 10")
    b("s_add_u32 s23, s23, s22")
    b(f"buffer_load_dwordx4 v[100:103], v{vL16}, {WS}, s23 offen sc1")
    b("s_lshr_b32 s23, s46, 3")
    b("s_lshl_b32 s23, s23, 10")
    b("s_add_u32 s23, s23, s22")
    b(f"s_add_u32 s23, s23, {32*1024}")
    b(f"buffer_load_dwordx4 v[100:103], v{vL16}, {WS}, s23 offen sc1")
    b(f"s_cmp_ge_u32 {W}, s44")
    b("s_cbranch_scc1 L_ret")
    b(f"s_mul_i32 s22, s42, {XT}")
    b("s_lshl_b32 s23, s43, 6")
    b("s_add_u32 s22, s22, s23")
    b(f"v_mul_u32_u24 v5, 1152, v{vT}")
    b(f"v_lshl_add_u32 v5, v{vH}, 4, v5")
    b(f"buffer_load_dwordx4 {vr(RES,4)}, v5, {X0}, s22 offen")
    b(f"buffer_load_dwordx4 {vr(RES+4,4)}, v5, {X0}, s22 offen offset:32")
    b(f"s_mul_i32 s22, s42, {XT}")
    b("s_lshl_b32 s23, s43, 11")
    b("s_add_u32 s22, s22, s23")
    b(f"s_add_u32 s22, s22, {XS:#x}")
    b(f"buffer_load_dwordx4 v[100:103], v{vL16}, {WS}, s22 offen sc1")
    b(f"buffer_load_dwordx4 v[100:103], v{vL16}, {WS}, s22 offen offset:1024 sc1")
    b(f"s_mul_i32 s22, s42, {18*256}")
    b("s_lshl_b32 s23, s43, 8")
    b("s_add_u32 s22, s22, s23")
    b(f"s_add_u32 s22, s22, {STS:#x}")
    b(f"v_lshrrev_b32 v4, 2, v{vL16}")
    b(f"buffer_load_dword v100, v4, {WS}, s22 offen sc1")
    b(RET)
    b.lab("L_A_slow")
    for ps in range(2):
        b(f"v_mov_b32 v{vKa}, v{vL16}")
        b(f"v_lshlrev_b32 v{vKe}, 8, v{vH}")
        b(f"v_lshl_add_u32 v{vKe}, v{vT}, 3, v{vKe}")
        if ps == 0:
            b(f"v_mov_b32 v7, {f2u(float('-inf')):#x}")
        else:
            v_addr(b, 4608)
        b("s_mov_b32 s41, 0")
        b.lab(f"L_A_slow{ps}")
        b(f"ds_read_b64 {vr(KE,2)}, v{vKe} offset:4096")
        for u in range(4):
            b(f"ds_read_b128 {vr(KM,4)}, v{vKa} offset:{u*1024}")
            if ps:
                b(f"ds_read_b128 {vr(VA,4)}, v{vVa} offset:{u*VT}")
                b(f"ds_read_b128 {vr(VB,4)}, v{vVa} offset:{u*VT+608}")
            slow_qk(b, u, False)
            if ps: slow_pv(b)
            else: slow_max(b)
        b(f"v_add_u32 v{vKa}, {GRP}, v{vKa}")
        b(f"v_add_u32 v{vKe}, {GRP}, v{vKe}")
        b(f"v_add_u32 v{vVa}, {GRP}, v{vVa}")
        b("s_add_u32 s41, s41, 1")
        b("s_cmp_lt_u32 s41, 16")
        b(f"s_cbranch_scc1 L_A_slow{ps}")
        if ps == 0: slow_mid(b)
    slow_end(b, "A")

def gen_out(a, isB):
    tag = "OB" if isB else "OA"
    OO = OS
    a(f"s_cmp_lt_u32 {W}, s44")
    a(f"s_cbranch_scc1 L_{tag}_c")
    a(f"s_cmp_eq_u32 {W}, 7")
    a(f"s_cbranch_scc1 L_{tag}_ld")
    if not isB:
        a(f"s_cmp_eq_u32 {W}, 4")
        a(f"s_cbranch_scc1 L_{tag}_idle")
        a(f"s_sub_u32 s22, {W}, 5")
        a(f"s_mul_i32 s23, s22, {WCT}")
        a(f"s_add_u32 s23, s23, {L_WB}")
        a(f"v_add_u32 v4, s23, v{vL16}")
        for ks in range(36):
            a(f"ds_write_b128 v4, {vr(R+4*ks,4)} offset:{ks*1024}")
        for _ in range(3): a("s_barrier")
        a(f"s_cmp_eq_u32 {sIT}, 0")
        a("s_cbranch_scc0 L_OA_cs")
        for ks in range(36):
            cs_dot(a, ks)
        cs_pack(a, RES)
        a.lab("L_OA_cs")
        a("s_lshl_b32 s22, s22, 8")
        a(f"s_add_u32 s22, s22, {L_WBX}")
        a(f"v_lshrrev_b32 v4, 2, v{vL16}")
        a("v_add_u32 v4, s22, v4")
        a(f"ds_write_b32 v4, v{RES}")
        a(f"v_mov_b32 v4, {L_FLAG+16}")
        for r in range(4): a(f"v_mov_b32 v{8+r}, 0")
        a("ds_write_b128 v4, v[8:11]")
        a("ds_write_b128 v4, v[8:11] offset:16")
        a("s_waitcnt lgkmcnt(0)")
        a(f"s_branch L_{tag}_e")
    else:
        a(f"s_cmp_eq_u32 {sIT}, 0")
        a(f"s_cbranch_scc0 L_{tag}_idle")
        wa_role(a, f"L_{tag}_idle")
        a(f"s_mul_i32 s22, s22, {WCT}")
        a(f"s_add_u32 s22, s22, {WA_OFF:#x}")
        if WAE: r_loads(a, WS, "s22", 0, WAE)
        for n in range(3):
            a("s_barrier")
        if WAE < 36: r_loads(a, WS, "s22", WAE, 36)
        a(f"s_branch L_{tag}_e")
    a.lab(f"L_{tag}_idle")
    for n in range(3):
        a("s_barrier")
    a(f"s_branch L_{tag}_e")
    a.lab(f"L_{tag}_ld")
    if not isB:
        a("s_lshr_b32 s23, s42, 1")
        a("s_lshl_b32 s23, s23, 10")
        a(f"s_add_u32 s23, s23, {FOA:#x}")
        poll(a, IT, "s23", 8)
    else:
        a(f"s_lshl_b32 s23, {sX}, 12")
        a(f"s_add_u32 s23, s23, {FOB:#x}")
        poll(a, IT, "s23", 32)
    stamp(a, tag + "_flag")
    a(f"s_mul_i32 s22, s42, {XT}")
    a(f"s_add_u32 s22, s22, {OO:#x}")
    a("s_mov_b32 m0, 0")
    dma(a, WS, "s22", 36, 1024, 1024)
    for n in (24, 12, 0):
        a(f"s_waitcnt vmcnt({n})")
        a("s_barrier")
    stamp(a, tag + "_x")
    if isB:
        a(f"s_cmp_eq_u32 {sIT}, 0")
        a(f"s_cbranch_scc0 L_{tag}_e")
        wa_role(a, f"L_{tag}_e")
        wa_issue(a)
    a(f"s_branch L_{tag}_e")
    a.lab(f"L_{tag}_c")
    for p in range(8):
        a(f"v_lshlrev_b32 v{ACC+2*p}, 16, v{RES+p}")
        a(f"v_and_b32 v{ACC+2*p+1}, 0xffff0000, v{RES+p}")
    hb = lambda: a("s_barrier")
    gemm_stage(a, [vL16], 0, 36, False, False, hooks={0: hb, 12: hb, 24: hb, (36 - WLATE + 6 if WLATE > 6 else 35): (lambda: a("s_waitcnt vmcnt(0)"))})
    x_addr(a, "s42", "s43", XS, STS)
    a("s_nop 3")
    pack(a, ACC, 8, RES)
    if isB:
        a(f"s_cmp_eq_u32 {sIT}, 1")
        a("s_cbranch_scc1 L_final")
        store_x_and_stats(a, RES, WS)
    else:
        store_x_and_stats(a, RES, WS)
    a("s_waitcnt vmcnt(0)")
    a.lab(f"L_{tag}_e")
    if isB:
        a(f"s_cmp_eq_u32 {sIT}, 1")
        a("s_cbranch_scc1 L_fin2")
    a("s_barrier")
    a(f"s_cmp_lg_u32 {W}, 0")
    a(f"s_cbranch_scc1 L_{tag}_nf")
    a("s_lshl_b32 s22, s42, 9")
    a(f"s_lshr_b32 s23, {sI}, 3")
    a("s_lshl_b32 s23, s23, 7")
    a("s_add_u32 s22, s22, s23")
    a(f"s_add_u32 s22, s22, {(ITS + FXA) if isB else FXB:#x}")
    setflag(a, IT, "s22", local=True)
    a.lab(f"L_{tag}_nf")
    stamp(a, tag + "_end")

def gen_phb(a, slow):
    a(f"s_add_u32 s48, {W}, 4")
    a(f"s_sub_u32 s22, 7, {W}")
    a(f"s_cmp_lt_u32 {W}, 4")
    a("s_cselect_b32 s48, s48, s22")
    a(f"s_lshl_b32 s45, {sX}, 3")
    a("s_add_u32 s45, s45, s48")
    a(f"s_mov_b32 s46, {sI}")
    a("s_setprio 1")
    a(f"s_cmp_lt_u32 {W}, 4")
    a("s_cbranch_scc0 L_B_pr")
    a("s_setprio 2")
    a.lab("L_B_pr")
    BX = 104
    MK = 72
    aVG, aVL, aEX, aFAC = 4, 5, 11, 13
    a("s_add_u32 s28, s48, 8")
    a(f"s_mul_i32 s28, s28, {KVT}")
    a(f"s_add_u32 s28, s28, {L_KVB}")
    a("s_lshl_b32 s49, s46, 6")
    a("s_add_u32 s49, s49, s45")
    a(f"s_mul_i32 s29, s49, {KVT}")
    a(f"s_add_u32 s29, s29, {KVB:#x}")
    a("s_lshl_b32 s49, s49, 7")
    a(f"s_add_u32 s49, s49, {FKB:#x}")
    a(f"s_lshl_b32 s27, {W}, 8")
    a(f"s_add_u32 s27, s27, {L_MISC}")
    a("s_add_u32 s47, s48, 1")
    a(f"s_cmp_eq_u32 {sX}, 0")
    a("s_cselect_b32 s47, s47, 9")
    a(f"s_mul_i32 s41, s43, {XT}")
    a(f"s_add_u32 s41, s41, {WOB_OFF:#x}")
    a(f"s_cmp_lt_u32 {W}, s44")
    a(f"s_cselect_b32 s41, s41, {OOB:#x}")
    a(f"v_lshrrev_b32 v5, 2, v{vL16}")
    a(f"v_add_u32 v4, {L_WBX}, v5")
    a(f"ds_read_b32 v106, v4")
    a(f"ds_read_b32 v108, v4 offset:256")
    a("v_mov_b32 v107, 0")
    a("v_mov_b32 v109, 0")
    a(f"s_sub_u32 s24, s28, {8*KVT}")
    a(f"v_add_u32 v{vKa}, s24, v{vL16}")
    a(f"v_lshl_add_u32 v{vKe}, v{vT}, 2, s24")
    a("s_add_u32 s24, s24, 1152")
    v_addr(a, "s24")
    a(f"v_mov_b32 v11, {NEGBIG:#x}")
    mask_init(a, MK, True)
    a("s_lshl_b32 s23, s45, 9")
    a(f"s_add_u32 s23, s23, {FXB:#x}")
    poll(a, IT, "s23", 4)
    stamp(a, "B_xflag")
    a(f"s_and_b32 s24, {W}, 3")
    a("s_lshl_b32 s24, s24, 2")
    a(f"s_add_u32 s50, s24, {L_FLAG+32}")
    a(f"s_cmp_lt_u32 {W}, 4")
    a("s_cbranch_scc1 L_B_x")
    a("s_mov_b32 s51, 1")
    a("s_call_b64 s[30:31], L_B_wait")
    a.lab("L_B_x")
    stats_load(a, STR, "s45", STS)
    a(f"s_mul_i32 s22, s45, {XT}")
    a(f"s_add_u32 s22, s22, {XS:#x}")
    PF = BPF
    r_loads(a, WS, "s22", 0, PF, LD)
    a(f"v_add_u32 v6, {L_WB}, v{vL16}")
    a(f"v_add_u32 v7, {L_WB+WCT}, v{vL16}")
    a("s_waitcnt lgkmcnt(0)")
    items = [(ks, t) for ks in range(36) for t in range(2)]
    n = len(items); depth = 4
    def rd(i):
        ks, t = items[i]
        a(f"ds_read_b128 {vr(XB_+4*(i%depth),4)}, v{6+t} offset:{ks*1024}")
    for i in range(depth - 1): rd(i)
    for i in range(n):
        ks, t = items[i]
        if i == 0:
            main_a = a; a = A()
            stats_sum(a, STR)
            stats_compute(a, STR, BX, RSTD)
            a("s_waitcnt lgkmcnt(0)")
            a(f"v_lshl_add_u32 v4, v{vT}, 2, s27")
            a(f"ds_write_b32 v4, v{RSTD}")
            a(f"v_lshl_add_u32 v4, v{vH}, 4, s27")
            a("s_waitcnt lgkmcnt(0)")
            for q in range(4):
                a(f"ds_read_b128 {vr(STR+4*q,4)}, v4 offset:{32*q}")
            a(f"v_mul_u32_u24 v{aVG}, 304, v{vH}")
            a(f"v_lshl_add_u32 v{aVG}, v{vT}, 4, v{aVG}")
            a(f"v_add_u32 v{aVL}, s28, v{aVG}")
            a(f"v_cmp_ge_u32 vcc, 18, v{vT}")
            a(f"v_mov_b32 v{aEX}, {OOB:#x}")
            a(f"v_lshrrev_b32 v{aFAC}, 1, v{vT}")
            a(f"v_cndmask_b32 v{aVG}, v{aEX}, v{aVG}, vcc")
            a(f"v_mov_b32 v{aEX}, {LOOB:#x}")
            a(f"v_cndmask_b32 v{aVL}, v{aEX}, v{aVL}, vcc")
            a(f"v_cmp_eq_u32 vcc, 12, v{aFAC}")
            a(f"v_cmp_eq_u32 s[62:63], 13, v{aFAC}")
            a("s_add_u32 s24, s27, 128")
            a("s_add_u32 s25, s28, 1024")
            a(f"v_mov_b32 v{aFAC}, s24")
            a(f"v_cndmask_b32 v{aEX}, v{aEX}, v{aFAC}, vcc")
            a(f"v_mov_b32 v{aFAC}, s25")
            a(f"v_cndmask_b32 v{aEX}, v{aEX}, v{aFAC}, s[62:63]")
            a(f"v_and_b32 v{aFAC}, 1, v{vT}")
            a(f"v_lshl_add_u32 v{aEX}, v{aFAC}, 1, v{aEX}")
            a(f"v_lshl_add_u32 v{aEX}, v{vH}, 4, v{aEX}")
            a(f"v_mov_b32 v{aFAC}, {f2u(QSCALE):#x}")
            a(f"v_cndmask_b32 v{aFAC}, 1.0, v{aFAC}, vcc")
            a("s_waitcnt lgkmcnt(0)")
            for r in range(16):
                a(f"v_mul_f32 v{STR+r}, v{aFAC}, v{STR+r}")
            a(f"v_mul_f32 v{RSTD+1}, {f2u(QSCALE):#x}, v{RSTD}")
            a(f"v_mfma_f32_32x32x8_bf16 {vr(ACC,16)}, v[106:107], {vr(BX,2)}, {vr(ACC,16)}")
            a(f"v_mfma_f32_32x32x8_bf16 {vr(ACC+16,16)}, {vr(BX,2)}, v[108:109], {vr(ACC+16,16)}")
            side = list(a.l); a = main_a
        if i + depth - 1 < n:
            rd(i + depth - 1); out = depth - 1
        else:
            out = n - 1 - i
        if t == 0:
            a(f"s_waitcnt vmcnt({min(35, ks + PF - 1) - ks}) lgkmcnt({out})")
        else:
            a(f"s_waitcnt lgkmcnt({out})")
        acc = vr(ACC + 16 * t, 16); x = vr(R + 4 * ks, 4); w = vr(XB_ + 4 * (i % depth), 4)
        c = "0" if ks == 0 else acc
        a(f"v_mfma_f32_32x32x16_bf16 {acc}, {x}, {w}, {c}" if t else f"v_mfma_f32_32x32x16_bf16 {acc}, {w}, {x}, {c}")
        if t == 0 and ks + PF < 36:
            r_loads(a, WS, "s22", ks + PF, ks + PF + 1, LD)
        if i >= 2:
            for _ in range(4):
                if side: a.l.append(side.pop(0))
        if t == 0 and ks == LSTART:
            a("v_mov_b32 v15, s50" if not STAMPS else "v_mov_b32 v111, s50")
            a(f"ds_write_b32 v15, v{vNONCE}" if not STAMPS else f"ds_write_b32 v111, v{vNONCE}")
            if STAMPS: a("v_mov_b32 v111, 0")
    assert not side
    stamp(a, "B_gemm")
    V1 = ACC + 16
    a(f"v_add_u32 v6, s28, v{vL16}")
    a(f"v_lshlrev_b32 v7, 30, v{vH}")
    a(f"v_lshl_add_u32 v7, v{vT}, 2, v7")
    a(f"v_lshl_add_u32 v56, v{vT}, 2, s24")
    a(f"v_lshl_add_u32 v57, v{vT}, 2, s25")
    a(f"s_and_b32 s24, {W}, 4")
    a(f"s_add_u32 s24, s24, {L_FLAG+16}")
    a("v_mov_b32 v58, s24")
    a("v_mov_b32 v59, 1")
    a("s_mov_b32 s24, 0x40000")
    a("s_mov_b32 s25, 0x40000")
    a("s_nop 0")
    for r in range(8, 16):
        a(f"v_mul_f32 v{ACC+r}, v{RSTD}, v{ACC+r}")
    for p in range(4):
        a(f"v_cvt_pk_bf16_f32 v{KM+p-24}, v{ACC+8+2*p}, v{ACC+9+2*p}")
    a(f"ds_write_b128 v6, v[60:63]")
    a(f"buffer_store_dwordx4 v[60:63], v{vL16}, {IT}, s29 offen sc1")
    for r in range(16):
        a(f"v_mul_f32 v{V1+r}, v{STR+r}, v{V1+r}")
        if r % 2 == 1:
            a(f"v_cvt_pk_bf16_f32 v{V1+r//2}, v{V1+r-1}, v{V1+r}")
    for r in range(16):
        op = "ds_write_b16" if r % 2 == 0 else "ds_write_b16_d16_hi"
        a(f"{op} v{aEX}, v{V1+r//2} offset:{((r&3)+8*(r>>2))*4}")
    a("s_mov_b64 exec, s[24:25]")
    for p in range(8):
        a(f"v_mov_b32 v{V1+p}, s60")
    a("s_mov_b64 exec, -1")
    a("ds_read_b32 v64, v57")
    a("ds_read_b32 v65, v56")
    a(f"ds_write_b128 v{aVL}, {vr(V1,4)} offset:1152")
    a(f"ds_write_b128 v{aVL}, {vr(V1+4,4)} offset:{1152+608}")
    a(f"buffer_store_dwordx4 {vr(V1,4)}, v{aVG}, {IT}, s29 offen offset:1152 sc1")
    a(f"buffer_store_dwordx4 {vr(V1+4,4)}, v{aVG}, {IT}, s29 offen offset:{1152+608} sc1")
    for r in range(8):
        a(f"v_mul_f32 v{ACC+r}, v{RSTD+1}, v{ACC+r}")
    pack(a, ACC, 4)
    a(f"v_cmp_eq_u32 vcc, 0, v{vH}")
    a(f"v_mov_b32 v{QE+1}, 0")
    a(f"v_mov_b32 v{KE+1}, 0")
    a(f"v_mov_b32 v11, {NEGBIG:#x}")
    a("s_waitcnt lgkmcnt(0)")
    a(f"buffer_store_dword v64, v7, {IT}, s29 offen offset:1024 sc1")
    a(f"v_lshlrev_b32 v66, 3, v{vL16}")
    a(f"v_mov_b32 v109, v{vNONCE}")
    a("s_sub_u32 s22, s49, 1024")
    a("s_mov_b64 exec, 15")
    a(f"buffer_load_dword v109, v66, {IT}, s22 offen sc1")
    a("s_mov_b32 s36, 0")
    a("s_mov_b64 exec, 1")
    a("ds_add_u32 v58, v59")
    a("s_mov_b64 exec, -1")
    a(f"v_cndmask_b32 v{QE}, 0, v65, vcc")
    a(f"v_mov_b32 v{KE}, v64")
    a(f"v_mfma_f32_32x32x16_bf16 {vr(S_[0],16)}, v[60:63], {vr(QM,4)}, {vr(MK,16)}")
    a("s_nop 0")
    a(f"v_mfma_f32_32x32x8_bf16 {vr(S_[0],16)}, {vr(KE,2)}, {vr(QE,2)}, {vr(S_[0],16)}")
    stamp(a, "B_attn0")
    to = lambda i: (8 - i) * KVT
    def wait(word, val):
        a(f"s_mov_b32 s50, {L_FLAG+16+4*word}")
        a(f"s_mov_b32 s51, {val}")
        a("s_call_b64 s[30:31], L_B_wait")
    def wait_if(tile, word, val):
        l = a.nl("Lw")
        a(f"s_cmp_eq_u32 s48, {tile}")
        a(f"s_cbranch_scc0 {l}")
        wait(word, val)
        a.lab(l)
    def first_qk(k0, masked):
        a(f"ds_read_b128 {vr(KM,4)}, v{k0[0]} offset:{k0[2]}")
        a(f"ds_read_b32 v{KE}, v{k0[1]} offset:{k0[2]+1024}")
        a("s_waitcnt lgkmcnt(0)")
        a(f"v_mfma_f32_32x32x16_bf16 {vr(S_[0],16)}, {vr(KM,4)}, {vr(QM,4)}, {vr(S_[0],16) if masked else 0}")
        a(f"v_mfma_f32_32x32x8_bf16 {vr(S_[0],16)}, {vr(KE,2)}, {vr(QE,2)}, {vr(S_[0],16)}")
    a(f"s_cmp_eq_u32 {sX}, 0")
    a("s_cbranch_scc1 L_B_pub")
    a(f"s_cmp_ge_u32 {W}, 4")
    a("s_cbranch_scc1 L_B_L")
    a.lab("L_B_pub")
    a("s_waitcnt vmcnt(0)")
    stamp(a, "B_ack")
    setflag(a, IT, "s49")
    a(f"s_cmp_eq_u32 {sX}, 0")
    a("s_cbranch_scc1 L_B_L0")
    a("s_setprio 0")
    for st in (1, 2, 3):
        a(f"s_cmp_ge_u32 s48, {st+4}")
        a(f"s_mov_b32 s22, {to(st)-4*KVT}")
        a(f"s_cselect_b32 s22, {to(st)}, s22")
        for q, r in enumerate((vKa, vKe, vVa)):
            a(f"v_add_u32 v{100+3*(st-1)+q}, s22, v{r}")
    a(f"s_cmp_eq_u32 {W}, 0")
    a("s_cbranch_scc0 L_B_E1")
    a("s_mov_b32 s50, 2")
    a("s_call_b64 s[30:31], L_B_fetch")
    a("s_call_b64 s[30:31], L_B_fetched")
    stamp(a, "B_rem")
    a.lab("L_B_E1")
    if WEARLY: r_loads(a, WS, "s41", 0, WEARLY)
    WN = 36 - WLATE
    wsp = [WEARLY + (WN - WEARLY) * q // 8 for q in range(9)]
    def wl(k0, k1):
        ex = []
        for ks in range(k0, k1):
            if ks == k0 or ks % 4 == 0: ex.append(f"s_add_u32 s61, s41, {(ks//4)*4096}")
            ex.append(f"buffer_load_dwordx4 {vr(R+4*ks,4)}, v{vL16}, {WS}, s61 offen offset:{(ks%4)*1024}")
        return ex
    def wlg(cond, k0, k1):
        l = a.nl("Lg")
        return [cond, f"s_cbranch_scc0 {l}"] + wl(k0, k1) + [f"{l}:"]
    wait(0, 4)
    K = lambda st: (vKa, to(0)) if st == 0 else ((vKa, 0) if st == 4 else (100 + 3 * (st - 1), 0))
    E = lambda st: (vKe, to(0) + 1024) if st == 0 else ((vKe, 1024) if st == 4 else (101 + 3 * (st - 1), 1024))
    Vv = lambda st, o: (vVa, to(0) + o) if st == 0 else ((vVa, o) if st == 4 else (102 + 3 * (st - 1), o))
    a(f"ds_read_b128 {vr(KM,4)}, v{K(1)[0]} offset:{K(1)[1]}")
    a(f"ds_read_b32 v{KE}, v{E(1)[0]} offset:{E(1)[1]}")
    a(f"ds_read_b128 {vr(VA,4)}, v{vVa} offset:{to(0)}")
    for j in range(5):
        if j <= 2: wait_if(5 + j, 2, 1)
        body(a, j & 1, rdKM=K(j + 2) if j + 2 <= 4 else None, rdKE=E(j + 2) if j + 2 <= 4 else None,
             rdVa=Vv(j + 1, 0) if j + 1 <= 4 else None, rdVb=Vv(j, 608), u=0, qk=(j < 4), pv1=(j > 0),
             cinit=((lambda n: mask_init(a, n, False)) if j == 3 else None), ke64=False, pvwait=(1 if j == 4 else 2),
             ozero=(j == 0), extra=wl(wsp[j], wsp[j + 1]))
    tail_pv1(a, 0)
    a("s_sub_u32 s22, 8, s48")
    a(f"s_mul_i32 s22, s22, {KVT}")
    for q, r in enumerate((vKa, vKe, vVa)):
        a(f"v_add_u32 v{100+q}, s22, v{r}")
    for r in range(16):
        a(f"v_mov_b32 v{S_[0]+r}, 0")
    a("s_mov_b32 s40, 4")
    wait(1, 4)
    a.lab("L_B_run2")
    tb = lambda i: i * KVT
    first_qk((100, 101, tb(0)), True)
    a(f"ds_read_b128 {vr(KM,4)}, v100 offset:{tb(1)}")
    a(f"ds_read_b32 v{KE}, v101 offset:{tb(1)+1024}")
    a(f"ds_read_b128 {vr(VA,4)}, v102 offset:{tb(0)}")
    a("s_nop 8")
    for j in range(4):
        body(a, j & 1, rdKM=(100, tb(j + 2)) if j + 2 <= 3 else None, rdKE=(101, tb(j + 2) + 1024) if j + 2 <= 3 else None,
             rdVa=(102, tb(j + 1)) if j + 1 <= 3 else None, rdVb=(102, tb(j) + 608), u=0, qk=(j < 3), pv1=(j > 0),
             ke64=False, pvwait=(1 if j == 3 else 2), extra=(wlg(f"s_cmp_lt_u32 {W}, 4", wsp[5 + j], wsp[6 + j]) if j < 3 else ()))
        if j < 3:
            a(f"s_cmp_eq_u32 s40, {j+1}")
            a(f"s_cbranch_scc1 L_B_t{j&1}")
    a("s_branch L_B_t1")
    a.lab("L_B_L0")
    a(f"s_cmp_lt_u32 {W}, 4")
    a("s_cbranch_scc1 L_B_L0b")
    a(f"s_cmp_lt_u32 {W}, s44")
    a("s_cbranch_scc0 L_B_L0b")
    r_loads(a, WS, "s41", 0, WN)
    a.lab("L_B_L0b")
    wait(0, 4)
    a("s_mov_b32 s40, s47")
    a("s_mov_b32 s48, 99")
    a("s_branch L_B_L1")
    a.lab("L_B_L")
    a("s_add_u32 s40, s48, 5")
    a(f"v_mov_b32 v5, {L_FLAG+16}")
    a("ds_read_b128 v[100:103], v5")
    a("s_waitcnt lgkmcnt(0)")
    a("v_cmp_gt_u32 vcc, 4, v101")
    a("v_cmp_gt_u32 s[62:63], 1, v102")
    a("s_or_b64 vcc, vcc, s[62:63]")
    a("s_mov_b32 s50, 1")
    a("s_cbranch_vccz L_B_L4")
    a("s_waitcnt vmcnt(0)")
    setflag(a, IT, "s49")
    a("s_call_b64 s[30:31], L_B_try")
    wait(2, 1)
    a.lab("L_B_L1")
    wait(1, 4)
    a("s_mov_b32 s50, 0")
    a.lab("L_B_L4")
    a(f"s_cmp_eq_u32 {sX}, 0")
    a("s_cselect_b32 s51, 4, s44")
    a(f"s_cmp_lt_u32 {W}, s51")
    a("s_cselect_b32 s51, 77, 0")
    a(f"ds_read_b128 {vr(KM,4)}, v{vKa} offset:{to(1)}")
    a(f"ds_read_b32 v{KE}, v{vKe} offset:{to(1)+1024}")
    a(f"ds_read_b128 {vr(VA,4)}, v{vVa} offset:{to(0)}")
    for j in range(8):
        if j == 1:
            l = a.nl("Lf")
            a("s_cmp_eq_u32 s50, 1")
            a(f"s_cbranch_scc0 {l}")
            a("s_waitcnt vmcnt(0)")
            stamp(a, "B_ack")
            setflag(a, IT, "s49")
            a("s_call_b64 s[30:31], L_B_try")
            a.lab(l)
        if j == 2:
            l = a.nl("Lf")
            a("s_cmp_eq_u32 s48, 0")
            a(f"s_cbranch_scc0 {l}")
            a("s_mov_b32 s50, 3")
            a("s_call_b64 s[30:31], L_B_fetch")
            a.lab(l)
        body(a, j & 1, rdKM=to(j + 2) if j + 2 <= 7 else None, rdKE=to(j + 2) + 1024 if j + 2 <= 7 else None,
             rdVa=to(j + 1) if j + 1 <= 7 else None, rdVb=to(j) + 608, u=0, qk=(j < 7), pv1=(j > 0),
             ke64=False, pvwait=(1 if j == 7 else 2), ozero=(j == 0),
             extra=(wlg("s_cmp_eq_u32 s51, 77", WN * (j - 1) // 4, WN * j // 4) if 1 <= j < 5 else ()))
        if j < 7:
            a(f"s_cmp_eq_u32 s40, {j+1}")
            a(f"s_cbranch_scc1 L_B_u{j&1}")
    a.lab("L_B_u1")
    tail_pv1(a, 1)
    a.lab("L_B_L2")
    a(f"s_cmp_eq_u32 {sX}, 0")
    a("s_cbranch_scc1 L_B_done")
    for q, r in enumerate((vKa, vKe, vVa)):
        a(f"v_mov_b32 v{100+q}, v{r}")
    a("s_sub_u32 s40, 4, s48")
    a("s_cmp_eq_u32 s48, 0")
    a("s_cbranch_scc0 L_B_L3")
    a("s_call_b64 s[30:31], L_B_fetched")
    stamp(a, "B_rem2")
    a.lab("L_B_L3")
    a("s_nop 7")
    mask_init(a, S_[0], False)
    wait(3, 1)
    a("s_branch L_B_run2")
    a.lab("L_B_t0")
    tail_pv1(a, 0)
    a.lab("L_B_done")
    stamp(a, "B_attn1")
    attn_finish(a, "B", "s45", "s46", OS)
    a(f"s_cmp_lt_u32 {W}, s44")
    a("s_cbranch_scc0 L_B_nl")
    r_loads(a, WS, "s41", WN, 36)
    a(f"s_waitcnt vmcnt({WLATE})")
    a("s_branch L_B_nl2")
    a.lab("L_B_nl")
    a("s_waitcnt vmcnt(0)")
    a.lab("L_B_nl2")
    a("s_barrier")
    a(f"s_cmp_lg_u32 {W}, 0")
    a("s_cbranch_scc1 L_B_end")
    a(f"s_lshl_b32 s22, {sX}, 12")
    a("s_lshl_b32 s23, s46, 7")
    a("s_add_u32 s22, s22, s23")
    a(f"s_add_u32 s22, s22, {FOB:#x}")
    setflag(a, IT, "s22", local=True)
    a.lab("L_B_end")
    a("s_setprio 0")
    stamp(a, "B_end")
    b = slow
    b.lab("L_B_t1")
    tail_pv1(b, 1)
    b("s_branch L_B_done")
    b.lab("L_B_u0")
    tail_pv1(b, 0)
    b("s_branch L_B_L2")
    RET = "s_setpc_b64 s[30:31]"
    b.lab("L_B_wait")
    b("v_mov_b32 v5, s50")
    b("s_mov_b32 s21, 0")
    b.lab("L_B_spin")
    b("ds_read_b32 v6, v5")
    b("s_add_u32 s21, s21, 1")
    b("s_cmp_gt_u32 s21, 0x400000")
    b("s_waitcnt lgkmcnt(0)")
    b("s_cbranch_scc1 L_B_spun")
    b("v_cmp_gt_u32 vcc, s51, v6")
    b("s_cbranch_vccz L_B_spun")
    b("s_sleep 1")
    b("s_branch L_B_spin")
    b.lab("L_B_spun")
    b(RET)
    b.lab("L_B_try")
    b("s_cmp_eq_u32 s48, 0")
    b("s_cbranch_scc0 L_ret")
    poll_test(b, 4, 109)
    b("s_cbranch_vccnz L_ret")
    b("s_branch L_B_fetch2")
    b.lab("L_B_fetch")
    b("s_cmp_eq_u32 s36, 1")
    b("s_cbranch_scc1 L_ret")
    poll_test(b, 4, 109)
    b("s_cbranch_vccz L_B_fetch2")
    b("s_sub_u32 s22, s49, 1024")
    poll(b, IT, "s22", 4)
    b.lab("L_B_fetch2")
    b("s_mov_b32 s36, 1")
    stamp(b, "B_poll")
    b(f"s_sub_u32 s22, s29, {8*KVT}")
    b(f"s_mul_i32 s23, s48, {KVT}")
    b(f"s_add_u32 m0, s23, {L_KVB}")
    dma(b, IT, "s22", 9, 1024, 1024)
    b("s_add_u32 m0, m0, 1024")
    b("s_add_u32 s22, s22, 1024")
    set_exec(b, 0xffff)
    b(f"buffer_load_dwordx4 v{vL16}, {IT}, s22 offen sc1 lds")
    b("s_mov_b64 exec, -1")
    b(RET)
    b.lab("L_B_fetched")
    b("s_lshl_b32 s50, s50, 2")
    b(f"s_add_u32 s50, s50, {L_FLAG+16}")
    b("v_mov_b32 v5, s50")
    b("v_mov_b32 v6, 1")
    b("s_waitcnt vmcnt(0)")
    b("ds_write_b32 v5, v6")
    b("s_waitcnt lgkmcnt(0)")
    b(RET)
    b.lab("L_B_slow")
    for ps in range(2):
        if ps == 0:
            b(f"v_mov_b32 v7, {f2u(float('-inf')):#x}")
        for j in range(9):
            b(f"ds_read_b128 {vr(KM,4)}, v{vKa} offset:{to(j)}")
            b(f"ds_read_b32 v{KE}, v{vKe} offset:{to(j)+1024}")
            if ps:
                b(f"ds_read_b128 {vr(VA,4)}, v{vVa} offset:{to(j)}")
                b(f"ds_read_b128 {vr(VB,4)}, v{vVa} offset:{to(j)+608}")
            if j in (0, 8): mask_init(b, S_[0], j == 0)
            slow_qk(b, 0, j in (0, 8))
            if ps: slow_pv(b)
            else: slow_max(b)
            if j < 8:
                b(f"s_cmp_eq_u32 s47, {j+1}")
                b(f"s_cbranch_scc1 L_B_slowd{ps}")
        b.lab(f"L_B_slowd{ps}")
        if ps == 0: slow_mid(b)
    slow_end(b, "B")

def main(out):
    ref = open(f"cdna_kernels/{NAME}.s.ref").read().splitlines()
    hdr = [l for l in ref if l.startswith(";") and "@launch" not in l]
    a = A(); slow = A(); slow.n = 100000
    gen_start(a)
    gen_prep(a)
    gen_pha(a, slow)
    gen_out(a, False)
    gen_phb(a, slow)
    gen_out(a, True)
    a(f"s_mov_b32 {sIT}, 1")
    a(f"s_mov_b32 s33, {KVA2-ITS:#x}")
    a(f"s_add_u32 s16, s16, {ITS:#x}")
    a("s_addc_u32 s17, s17, 0")
    a("s_branch L_it")
    a.lab("L_final")
    a(f"v_mul_u32_u24 v4, 1152, v{vT}")
    a(f"v_lshl_add_u32 v4, v{vH}, 4, v4")
    a(f"s_mul_i32 s24, s42, {32*1152}")
    a("s_lshl_b32 s25, s43, 6")
    a("s_add_u32 s24, s24, s25")
    for q in range(2):
        a(f"buffer_store_dwordx4 {vr(RES+4*q,4)}, v4, {AUX}, s24 offen offset:{32*q}")
    a.lab("L_fin2")
    if STAMPS:
        a("s_waitcnt vmcnt(0)")
        stamp(a, "end")
        a("v_lshlrev_b32 v4, 2, v0")
        a("s_lshl_b32 s22, s2, 11")
        a(f"s_add_u32 s22, s22, {DBG_OFF:#x}")
        a(f"buffer_store_dword v{vSTAMP}, v4, {WS}, s22 offen")
        if DBGOUT:
            sel = [(0, "prep_done"), (0, "A_attn0"), (0, "A_end"), (0, "OA_end"), (0, "B_end"), (0, "OB_end"), (1, "A_attn0"), (1, "A_n4b"), (1, "A_attn1"), (1, "OA_end"), (1, "B_end"), (1, "end")]
            a(f"s_or_b32 s22, s2, {W}")
            a("s_cmp_eq_u32 s22, 0")
            a("s_cbranch_scc0 L_end")
            a(f"v_readlane_b32 s23, v{vSTAMP}, 0")
            a("s_mov_b64 exec, 1")
            for q, (it, nm) in enumerate(sel):
                a(f"v_readlane_b32 s22, v{vSTAMP}, {32*it + STN.index(nm)}")
                a("s_nop 3")
                a("s_sub_u32 s22, s22, s23")
                a("v_mov_b32 v4, s22")
                a(f"buffer_store_dword v4, off, s[56:59], 0 offset:{4*(q+1)}")
                a("s_waitcnt vmcnt(0)")
            a(f"v_readlane_b32 s22, v{vSTAMP}, {32 + STN.index('c:A_attn1')}")
            a(f"v_readlane_b32 s23, v{vSTAMP}, {32 + STN.index('c:A_n4b')}")
            a("s_nop 3")
            a("s_sub_u32 s22, s22, s23")
            a("v_mov_b32 v4, s22")
            a(f"buffer_store_dword v4, off, s[56:59], 0 offset:52")
        open(out + ".stamps", "w").write("\n".join(STN))
        assert len(STN) <= 32
    a.lab("L_end")
    a("s_endpgm")
    K = NAME + "_kernel"
    txt = "\n".join(hdr) + "\n; @launch grid=(256,1,1) block=(512,1,1) lds=163840\n"
    txt += f'.amdgcn_target "amdgcn-amd-amdhsa--gfx950"\n.text\n.globl {K}\n.p2align 8\n.type {K},@function\n{K}:\n'
    txt += a.text() + slow.text() + "CODE_END:\n"
    txt += f""".section .rodata,"a"
.p2align 6
.amdhsa_kernel {K}
  .amdhsa_next_free_vgpr 256
  .amdhsa_next_free_sgpr 102
  .amdhsa_accum_offset 256
  .amdhsa_group_segment_fixed_size 0
  .amdhsa_kernarg_size 88
  .amdhsa_user_sgpr_count 2
  .amdhsa_user_sgpr_kernarg_segment_ptr 1
  .amdhsa_system_sgpr_workgroup_id_x 1
  .amdhsa_float_denorm_mode_32 3
.end_amdhsa_kernel
"""
    open(out, "w").write(txt)

if __name__ == "__main__":
    if "stamps" in sys.argv: STAMPS = True
    if "nolocal" in sys.argv: NOLOCAL = True
    for x in sys.argv[2:]:
        if "=" in x:
            k, v = x.split("="); globals()[k] = int(v)
    main(sys.argv[1])
```

```python
import math, struct, sys

NAME = "interleave_layers__grouped_kv_mqa__sliding_block__prompt"
def f2u(x): return struct.unpack("<I", struct.pack("<f", x))[0]

FR = 1024
XT = 36 * FR
WCT = 36 * FR
KVA = 0x0
KVA2 = 0x28000
KVB = 0x60000
FL = 0x510000
ITS = 32
FKAL, FOA, FXB, FOB, FXA = FL, FL + 4, FL + 8, FL + 12, FL + 16
FKA, FKB = FL + 0x8000, FL + 0x10000
XS, OS, STS, KVL = 0x600000, 0x840000, 0xA80000, 0xAD0000
WA_OFF, WB_OFF, WOA_OFF, WOB_OFF, FPREP = 0xB00000, 0xC00000, 0xF00000, 0x1000000, 0x10C0000
DBG_OFF = 0x4000000
WS_SIZE = 0x10000000
OOB = 0x40000000
LOOB = 0x40000
GRP = 9472
KVA_SZ = 16 * GRP
BLK = 2 * GRP
VT = 1216
KVT = 2368
QSCALE = (18 ** -0.5) * math.log2(math.e)
NEGBIG = f2u(-1e30)
L_XA = 40960
L_WB = 40960
L_KVB = 118784
L_Q = 151552
L_MISC = 160768
L_FLAG = 162816
NPREP = 252
L_PREP = 114688
L_RAW = 135168
L_WBX = L_WB + 2 * WCT

STAMPS = False
FORCESLOW = 0
DBGOUT = 0
NOLOCAL = False
STN = []
ST = " sc1"
LD = " sc1"

class A:
    def __init__(self):
        self.l = []; self.n = 0; self.ns = 0; self.stn = []
    def __call__(self, s): self.l.append("    " + s)
    def lab(self, s): self.l.append(s + ":")
    def nl(self, p="L"):
        self.n += 1
        return f"{p}_{self.n}"
    def text(self): return "\n".join(self.l) + "\n"

def vr(a, n): return f"v[{a}:{a+n-1}]" if n > 1 else f"v{a}"

W = "s3"
WS, AUX, IT = "s[4:7]", "s[8:11]", "s[16:19]"
sX, sI, sNONCE, sIT, sLIM, sLOC = "s12", "s13", "s14", "s15", "s20", "s99"
vL16, vT, vH = 1, 2, 3
vNONCE, vSTAMP = 14, 15
RES = 16
R = 112
WEXT = 110
MASK = 64

def stamp(a, name, cyc=False):
    if not STAMPS: return
    if cyc: name = "c:" + name
    if name not in STN: STN.append(name)
    k = STN.index(name)
    a("s_memtime s[96:97]" if cyc else "s_memrealtime s[96:97]")
    a(f"s_mul_i32 s98, {sIT}, 32")
    a(f"s_add_u32 s98, s98, {k}")
    a("s_waitcnt lgkmcnt(0)")
    a(f"s_mov_b32 m0, s98")
    a(f"v_writelane_b32 v{vSTAMP}, s96, m0")

def set_exec(a, mask):
    lo, hi = mask & 0xffffffff, mask >> 32
    if mask <= 64:
        a(f"s_mov_b64 exec, {mask}")
    else:
        a(f"s_mov_b32 exec_lo, {lo:#x}" if lo != 0xffffffff else "s_mov_b32 exec_lo, -1")
        a(f"s_mov_b32 exec_hi, {hi:#x}")

def poll_issue(a, srd, soff, n, vtmp, voff):
    for q in range((n + 63) // 64):
        if q == 0:
            a(f"buffer_load_dword v{vtmp}, v{voff}, {srd}, {soff} offen sc1")
        else:
            a(f"s_add_u32 s61, {soff}, {8192*q}")
            a(f"buffer_load_dword v{vtmp+q}, v{voff}, {srd}, s61 offen sc1")

def poll_test(a, n, vtmp):
    a(f"v_cmp_ne_u32 vcc, {sNONCE}, v{vtmp}")
    for q in range(1, (n + 63) // 64):
        a(f"v_cmp_ne_u32 s[62:63], {sNONCE}, v{vtmp+q}")
        a("s_or_b64 vcc, vcc, s[62:63]")

def poll(a, srd, soff, n, vtmp=4, voff=5, setoff=True):
    l, d = a.nl("Lp"), a.nl("Lpd")
    if setoff: a(f"v_lshlrev_b32 v{voff}, 3, v{vL16}")
    if n < 64: set_exec(a, (1 << n) - 1)
    a("s_mov_b32 s21, 0")
    a.lab(l)
    poll_issue(a, srd, soff, n, vtmp, voff)
    a("s_add_u32 s21, s21, 1")
    a(f"s_cmp_gt_u32 s21, {sLIM}")
    a(f"s_cselect_b32 {sLIM}, 0, {sLIM}")
    a("s_waitcnt vmcnt(0)")
    a(f"s_cbranch_scc1 {d}")
    poll_test(a, n, vtmp)
    a(f"s_cbranch_vccnz {l}")
    a.lab(d)
    if n < 64: a("s_mov_b64 exec, -1")

def census_issue(a, v):
    a(f"v_lshlrev_b32 v{v+1}, 7, v{vT}")
    a(f"s_lshl_b32 s22, {sX}, 12")
    a(f"s_add_u32 s22, s22, {FL+20:#x}")
    a(f"buffer_load_dword v{v}, v{v+1}, {WS}, s22 offen sc1")

def census_eval(a, v, dst):
    a(f"v_cmp_ne_u32 vcc, s34, v{v}")
    a("s_cmp_eq_u64 vcc, 0")
    a(f"s_cselect_b32 {dst}, 1, 2")
    if NOLOCAL: a(f"s_mov_b32 {dst}, 2")

def lstore(a, insts):
    l, e = a.nl("Ls"), a.nl("Lse")
    a(f"s_cmp_eq_u32 {sLOC}, 1")
    a(f"s_cbranch_scc1 {l}")
    for i in insts: a(i + " sc1")
    a(f"s_branch {e}")
    a.lab(l)
    for i in insts: a(i)
    a.lab(e)

def setflag(a, srd, soff, local=False):
    a("s_mov_b64 exec, 1")
    if local: lstore(a, [f"buffer_store_dword v{vNONCE}, off, {srd}, {soff}"])
    else: a(f"buffer_store_dword v{vNONCE}, off, {srd}, {soff} sc1")
    a("s_mov_b64 exec, -1")

def dma(a, srd, sG, n, gstep, lstep, flags=LD, half_last=False, last_mask=0):
    if gstep == 1024 and lstep == 1024:
        a("s_nop 0")
        for r in range(n):
            last = (r == n - 1)
            if last and half_last: a("s_mov_b32 exec_hi, 0")
            if last and last_mask: set_exec(a, last_mask)
            a(f"buffer_load_dwordx4 v{vL16}, {srd}, {sG} offen offset:{(r%4)*1024}{flags} lds")
            if last and (half_last or last_mask): a("s_mov_b64 exec, -1")
            if r % 4 == 3 and not last:
                a("s_add_u32 m0, m0, 4096")
                a(f"s_add_u32 {sG}, {sG}, 4096")
        return
    for r in range(n):
        if half_last and r == n - 1:
            a("s_mov_b32 exec_hi, 0")
        else:
            a("s_nop 0")
        a(f"buffer_load_dwordx4 v{vL16}, {srd}, {sG} offen{flags} lds")
        if half_last and r == n - 1:
            a("s_mov_b64 exec, -1")
        if r + 1 < n:
            a(f"s_add_u32 m0, m0, {lstep}")
            a(f"s_add_u32 {sG}, {sG}, {gstep}")

def wreg(ks): return 13 if ks & 1 else 0
def wodd(a):
    a(f"s_cmp_eq_u32 {W}, 4")
    a(f"s_cselect_b32 s22, {OOB:#x}, 0")
    a(f"v_add_u32 v13, s22, v{vL16}")

def r_loads(a, srd, sOff, k0, k1, flags="", wo=False):
    for ks in range(k0, k1):
        if ks == k0 or ks % 4 == 0:
            a(f"s_add_u32 s61, {sOff}, {(ks//4)*4096}")
        a(f"buffer_load_dwordx4 {vr(R+4*ks,4)}, v{wreg(ks) if wo else vL16}, {srd}, s61 offen offset:{(ks%4)*1024}{flags}")

def cs_dot(a, ks):
    for d in range(4):
        a(f"v_dot2_f32_bf16 v{CS+d}, v{R+4*ks+d}, s60, {0 if ks == 0 else 'v%d' % (CS+d)}")

def cs_pack(a, dst):
    a("s_nop 2")
    a(f"v_add_f32 v{CS}, v{CS}, v{CS+1}")
    a(f"v_add_f32 v{CS+2}, v{CS+2}, v{CS+3}")
    a(f"v_add_f32 v{CS}, v{CS}, v{CS+2}")
    a(f"v_cvt_pk_bf16_f32 v{dst}, v{CS}, v{CS}")
    a(f"v_lshlrev_b32 v{dst}, 16, v{dst}")
    a(f"v_sub_f32 v{CS}, v{CS}, v{dst}")
    a(f"v_cvt_pk_bf16_f32 v{dst}, v{dst}, v{CS}")

def x_addr(a, sT, sC, XO, SO):
    a(f"s_mul_i32 s26, {sT}, {XT}")
    a(f"s_lshl_b32 s27, {sC}, 11")
    a("s_add_u32 s26, s26, s27")
    a(f"s_add_u32 s26, s26, {XO:#x}")
    a(f"s_mul_i32 s27, {sT}, {20*256}")
    a(f"s_lshl_b32 s28, {sC}, 8")
    a("s_add_u32 s27, s27, s28")
    a(f"s_add_u32 s27, s27, {SO:#x}")
    a(f"v_lshrrev_b32 v8, 2, v{vL16}")

def store_x_and_stats(a, P, srd):
    lstore(a, [f"buffer_store_dwordx4 {vr(P,4)}, v{vL16}, {srd}, s26 offen",
               f"buffer_store_dwordx4 {vr(P+4,4)}, v{vL16}, {srd}, s26 offen offset:1024"])
    for i in range(8):
        q = 4 + 2 * (i & 1)
        a(f"v_dot2_f32_bf16 v{q}, v{P+i}, s60, {0 if i < 2 else 'v%d' % q}")
        a(f"v_dot2_f32_bf16 v{q+1}, v{P+i}, v{P+i}, {0 if i < 2 else 'v%d' % (q+1)}")
    a("s_nop 2")
    a("v_add_f32 v4, v4, v6")
    a("v_add_f32 v5, v5, v7")
    a("s_nop 1")
    a("v_permlane32_swap_b32 v4, v5")
    a("s_nop 1")
    a("v_add_f32 v4, v4, v5")
    lstore(a, [f"buffer_store_dword v4, v8, {srd}, s27 offen"])

def stats_load(a, b, sT, SO):
    a(f"v_lshrrev_b32 v4, 2, v{vL16}")
    a(f"s_mul_i32 s40, {sT}, {20*256}")
    a(f"s_add_u32 s40, s40, {SO:#x}")
    for c in range(20):
        if c == 16: a("s_add_u32 s40, s40, 4096")
        a(f"buffer_load_dword v{b+c}, v4, {WS}, s40 offen offset:{(c%16)*256}{LD}")

def stats_sum(a, b):
    for i in range(10):
        a(f"v_add_f32 v{b+i}, v{b+i}, v{b+10+i}")
    for i, j in ((0, 1), (2, 3), (4, 5), (6, 7), (8, 9), (0, 2), (4, 6), (0, 4), (0, 8)):
        a(f"v_add_f32 v{b+i}, v{b+i}, v{b+j}")

def stats_compute(a, b, xext, rstd):
    a(f"v_mov_b32 v{b+1}, v{b}")
    a("s_nop 1")
    a(f"v_permlane32_swap_b32 v{b}, v{b+1}")
    a("s_nop 1")
    a(f"v_mul_f32 v{b}, {f2u(1.0/576):#x}, v{b}")
    a(f"v_mul_f32 v{b+1}, {f2u(1.0/576):#x}, v{b+1}")
    a(f"v_fma_f32 v{b+1}, -v{b}, v{b}, v{b+1}")
    a(f"v_max_f32 v{b+1}, 0, v{b+1}")
    a(f"v_cvt_pk_bf16_f32 v{xext}, -v{b}, -v{b}")
    a(f"v_mov_b32 v{xext+1}, 0")
    a(f"v_cvt_pk_bf16_f32 v{b+1}, v{b+1}, v{b+1}")
    a(f"v_lshlrev_b32 v{b+1}, 16, v{b+1}")
    a(f"v_add_f32 v{b+1}, {f2u(1e-5):#x}, v{b+1}")
    a(f"v_cvt_pk_bf16_f32 v{b+1}, v{b+1}, v{b+1}")
    a(f"v_lshlrev_b32 v{b+1}, 16, v{b+1}")
    a(f"v_sqrt_f32 v{b+1}, v{b+1}")
    a("s_nop 0")
    a(f"v_cvt_pk_bf16_f32 v{b+1}, v{b+1}, v{b+1}")
    a(f"v_lshlrev_b32 v{b+1}, 16, v{b+1}")
    a(f"v_rcp_f32 v{rstd}, v{b+1}")
    a("s_nop 0")

def rstd_bcast(a, rstd, dst):
    a(f"s_lshl_b32 s27, {W}, 8")
    a(f"s_add_u32 s27, s27, {L_MISC}")
    a(f"v_lshl_add_u32 v6, v{vT}, 2, s27")
    a(f"ds_write_b32 v6, v{rstd}")
    a(f"v_lshl_add_u32 v6, v{vH}, 4, s27")
    a("s_waitcnt lgkmcnt(0)")
    for q in range(4):
        a(f"ds_read_b128 {vr(dst+4*q,4)}, v6 offset:{32*q}")

ACC = 24
XB_ = 56
STR = 88
CS = 106
DEPTH = 8
XEXT = 8
RSTD = 12

def xaddr(a, dst, base):
    l, e = a.nl("Lxa"), a.nl("Lxe")
    a(f"s_cmp_eq_u32 {sIT}, 0")
    a(f"s_cbranch_scc1 {l}")
    a(f"v_add_u32 v{dst}, {base}, v{vL16}")
    for q in range(1, 4):
        a(f"v_add_u32 v{dst+q}, {1024*q}, v{dst}")
    a(f"s_branch {e}")
    a.lab(l)
    a(f"v_bfe_u32 v4, v{vT}, 1, 3")
    a(f"v_xor_b32 v4, v4, v{vH}")
    a(f"v_lshlrev_b32 v{dst+3}, 7, v{vT}")
    a(f"v_add_u32 v{dst+3}, {base}, v{dst+3}")
    for q in range(4):
        if q: a(f"v_xor_b32 v4, {(2*q) ^ (2*q-2)}, v4")
        a(f"v_lshl_add_u32 v{dst+q}, v4, 4, v{dst+3}")
    a.lab(e)

def gemm_stage(a, bases, k0, k1, swap, first_zero, cs=False, pre=None, quad=False, hooks={}):
    TT = len(bases)
    items = [(ks, t) for ks in range(k0, k1) for t in range(TT)]
    n = len(items); depth = DEPTH
    def rd(i):
        ks, t = items[i]
        if i in hooks: hooks[i]()
        if quad: a(f"ds_read_b128 {vr(XB_+4*(i%depth),4)}, v{bases[t]+(ks&3)} offset:{(ks>>2)*4096}")
        else: a(f"ds_read_b128 {vr(XB_+4*(i%depth),4)}, v{bases[t]} offset:{ks*1024}")
    if pre: pre()
    for i in range(depth - 1): rd(i)
    if cs: a(f"s_cmp_eq_u32 {sIT}, 1")
    for i in range(n):
        ks, t = items[i]
        if i + depth - 1 < n:
            rd(i + depth - 1); out = depth - 1
        else:
            out = n - 1 - i
        if cs and t == 0 and ks % 4 == 0:
            l = a.nl("Lcs")
            a(f"s_cbranch_scc1 {l}")
            if ks + QPF < 36: r_loads(a, WS, "s40", ks + QPF, ks + QPF + 4)
            a(f"s_waitcnt vmcnt({min(36, ks + QPF + 4) - ks - 4})")
            for k in range(ks, ks + 4): cs_dot(a, k)
            if ks == 32: cs_pack(a, WEXT)
            a(f"s_cmp_eq_u32 {sIT}, 1")
            a.lab(l)
        a(f"s_waitcnt lgkmcnt({out})")
        acc = vr(ACC + 16 * t, 16); w = vr(R + 4 * ks, 4); x = vr(XB_ + 4 * (i % depth), 4)
        c = "0" if (first_zero and ks == 0) else acc
        a(f"v_mfma_f32_32x32x16_bf16 {acc}, {x}, {w}, {c}" if swap else f"v_mfma_f32_32x32x16_bf16 {acc}, {w}, {x}, {c}")

def pack(a, base, n=8, dst=None):
    dst = base if dst is None else dst
    for p in range(n):
        a(f"v_cvt_pk_bf16_f32 v{dst+p}, v{base+2*p}, v{base+2*p+1}")

def gen_start(a):
    a("s_cmp_ge_u32 s2, 256")
    a("s_cbranch_scc1 L_end")
    a("s_load_dwordx16 s[32:47], s[0:1], 0")
    a("s_load_dwordx4 s[48:51], s[0:1], 64")
    a("s_load_dwordx2 s[4:5], s[0:1], 80")
    a("s_memrealtime s[22:23]")
    a("v_lshrrev_b32 v4, 6, v0")
    a("v_and_b32 v5, 63, v0")
    a("v_readfirstlane_b32 s3, v4")
    a(f"v_lshlrev_b32 v{vL16}, 4, v5")
    a(f"v_and_b32 v{vT}, 31, v5")
    a(f"v_lshrrev_b32 v{vH}, 5, v5")
    a(f"s_mov_b32 s6, {WS_SIZE:#x}")
    a("s_mov_b32 s7, 0x20000")
    a("s_mov_b32 s11, 0x20000")
    a(f"s_mov_b32 s18, {WS_SIZE-2*ITS:#x}")
    a("s_mov_b32 s19, 0x20000")
    a(f"s_and_b32 {sX}, s2, 7")
    a(f"s_lshr_b32 {sI}, s2, 3")
    a(f"s_mov_b32 {sIT}, 0")
    a(f"s_mov_b32 {sLIM}, 200000")
    a(f"s_mov_b32 {sLOC}, 0")
    a(f"v_mov_b32 v{vSTAMP}, 0")
    a(f"v_mov_b32 v{WEXT+1}, 0")
    if CODEPF:
        a(f"s_cmp_lg_u32 {W}, 5")
        a("s_cbranch_scc1 L_nocodepf")
        a("s_getpc_b64 s[26:27]")
        a(f"s_lshl_b32 s24, {sI}, 11")
        a(f"s_cmp_ge_u32 s24, CODE_END - L_nocodepf - 2048")
        a("s_cbranch_scc1 L_nocodepf")
        a("s_add_u32 s26, s26, s24")
        a("s_addc_u32 s27, s27, 0")
        a(f"v_lshlrev_b32 v4, 1, v{vL16}")
        a("v_mov_b32 v5, s27")
        a("v_add_co_u32 v4, vcc, s26, v4")
        a("s_nop 1")
        a("v_addc_co_u32 v5, vcc, 0, v5, vcc")
        a("global_load_dword v100, v[4:5], off")
        a.lab("L_nocodepf")
    a(f"v_lshlrev_b32 v4, 2, v{vH}")
    a(f"v_sub_u32 v4, v{vT}, v4")
    for r in range(16):
        a(f"v_cmp_le_i32 s[{MASK+2*r}:{MASK+2*r+1}], {(r&3)+8*(r>>2)}, v4")
    a("s_waitcnt lgkmcnt(0)")
    a("s_mov_b32 s16, s4")
    a("s_mov_b32 s17, s5")
    a("s_mov_b32 s56, s50")
    a("s_mov_b32 s57, s51")
    a("s_mov_b32 s58, 256")
    a("s_mov_b32 s59, 0x20000")
    a("s_mov_b32 s52, s32")
    a("s_mov_b32 s53, s33")
    a(f"s_mov_b32 s54, {2048*1152}")
    a("s_mov_b32 s55, 0x20000")
    a("s_mov_b32 s60, 0x3f803f80")
    a(f"s_or_b32 s24, s2, {W}")
    a("s_cmp_lg_u32 s24, 0")
    a("s_cbranch_scc1 L_nononce")
    a("s_or_b32 s22, s22, 1")
    a("v_mov_b32 v4, s22")
    a("s_mov_b64 exec, 1")
    a("buffer_store_dword v4, off, s[56:59], 0 sc1")
    a("s_mov_b64 exec, -1")
    a.lab("L_nononce")

    stamp(a, "start")

X0 = "s[52:55]"
def gather(a, vaddr, rs, dst, tmp):
    for j in range(8):
        a(f"ds_read_u16 v{tmp+j}, v{vaddr} offset:{j*rs}")
def gpack(a, dst, tmp):
    for d in range(4):
        a(f"v_lshl_or_b32 v{dst+d}, v{tmp+2*d+1}, 16, v{tmp+2*d}")

def x0_dma(a):
    a("s_call_b64 s[30:31], L_x0")

def x0_sub(a):
    a.lab("L_x0")
    a(f"s_and_b32 s24, {sI}, 8")
    a("s_cmp_eq_u32 s24, 0")
    a("s_cbranch_scc1 L_x0b")
    a(f"s_cmp_lt_u32 {sI}, 16")
    a("s_cselect_b32 s24, s36, s38")
    a("s_cselect_b32 s25, s37, s39")
    a(f"s_mov_b32 s26, {576*36}")
    a("s_mov_b32 s27, 0x20000")
    a(f"s_lshl_b32 s21, {W}, 10")
    a(f"s_add_u32 m0, s21, {L_RAW}")
    dma(a, "s[24:27]", "s21", 3, 8192, 8192, flags="")
    a.lab("L_x0b")
    a(f"s_and_b32 s24, {sI}, 3")
    a("s_lshl_b32 s24, s24, 1")
    a(f"s_lshl_b32 s25, {sX}, 3")
    a("s_add_u32 s24, s24, s25")
    a(f"s_mul_i32 s24, s24, {XT}")
    a(f"s_mul_i32 s25, {W}, {8*1152}")
    a("s_add_u32 s24, s24, s25")
    a(f"s_lshr_b32 s25, {W}, 2")
    a(f"s_mul_i32 s25, s25, {XT}")
    a(f"s_and_b32 s26, {W}, 3")
    a("s_lshl_b32 s27, s26, 10")
    a("s_add_u32 s25, s25, s27")
    a(f"s_add_u32 m0, s25, {L_XA}")
    a("s_and_b32 s26, s26, 1")
    a("s_lshl_b32 s26, s26, 2")
    a(f"v_lshrrev_b32 v13, 7, v{vL16}")
    a("v_lshrrev_b32 v9, 1, v13")
    a("v_add_u32 v9, s26, v9")
    a(f"v_bfe_u32 v8, v{vL16}, 4, 3")
    a("v_xor_b32 v9, v8, v9")
    a("v_mul_u32_u24 v13, 1152, v13")
    a("v_lshl_add_u32 v13, v9, 4, v13")
    for kq in range(9):
        a(f"buffer_load_dwordx4 v13, {X0}, s24 offen lds")
        if kq < 8:
            a("s_add_u32 m0, m0, 4096")
            a("s_add_u32 s24, s24, 128")
    a("s_waitcnt vmcnt(9)")
    a("s_barrier")
    a("buffer_load_dword v101, off, s[56:59], 0 sc1")
    a("s_setpc_b64 s[30:31]")

def q16(a, d):
    a(f"v_and_b32 v4, 0xf0, v{vL16}")
    a(f"v_and_b32 v5, 0x100, v{vL16}")
    a("v_lshl_add_u32 v4, v5, 1, v4")
    a(f"v_lshl_add_u32 v{d}, v{vH}, 10, v4")

def rowaddr16(a, d):
    a(f"v_and_b32 v4, 15, v{vT}")
    a("v_mul_u32_u24 v4, 1152, v4")
    a(f"v_and_b32 v5, 16, v{vT}")
    a("v_add_u32 v4, v4, v5")
    a(f"v_lshl_add_u32 v{d}, v{vH}, 3, v4")
    a(f"s_mul_i32 s22, s42, {XT}")
    a("s_lshl_b32 s23, s43, 6")
    a("s_add_u32 s22, s22, s23")
    a("s_lshl_b32 s23, s44, 5")
    a("s_add_u32 s22, s22, s23")
    a(f"s_add_u32 s23, s22, {16*1152}")

def half_addr(a):
    a("s_lshl_b32 s26, s43, 1")
    a("s_add_u32 s26, s26, s44")
    a("s_lshl_b32 s26, s26, 10")
    a(f"s_mul_i32 s27, s42, {XT}")
    a("s_add_u32 s26, s26, s27")
    a(f"s_add_u32 s26, s26, {XS:#x}")
    a(f"s_lshr_b32 s27, {sI}, 4")
    a("s_add_u32 s27, s27, 18")
    a("s_cmp_eq_u32 s44, 1")
    a("s_cselect_b32 s27, s27, s43")
    a("s_lshl_b32 s27, s27, 8")
    a(f"s_mul_i32 s28, s42, {20*256}")
    a("s_add_u32 s27, s27, s28")
    a(f"s_add_u32 s27, s27, {STS:#x}")

def prep_flag(a):
    a("s_lshl_b32 s22, s2, 7")
    a(f"s_add_u32 s22, s22, {FPREP:#x}")
    setflag(a, WS, "s22")

def gen_prep(a):
    G0, P0 = 24, 64
    a(f"v_and_b32 v4, 0x13, v{vT}")
    a(f"v_and_b32 v5, 4, v{vT}")
    a("v_lshl_or_b32 v4, v5, 1, v4")
    a(f"v_and_b32 v5, 8, v{vT}")
    a("v_lshrrev_b32 v5, 1, v5")
    a("v_or_b32 v12, v4, v5")
    a("v_lshlrev_b32 v12, 1, v12")
    a(f"v_mov_b32 v11, {LOOB:#x}")
    a(f"s_mov_b32 s100, {OOB:#x}")
    a("s_mov_b32 s101, 0")
    a(f"s_cmp_ge_u32 s2, {NPREP}")
    a("s_cbranch_scc1 L_pn")
    a("s_cmp_ge_u32 s2, 180")
    a("s_cbranch_scc1 L_po")
    a("s_cmp_ge_u32 s2, 36")
    a("s_cbranch_scc1 L_pb")
    a("s_mov_b32 s8, s34")
    a("s_mov_b32 s9, s35")
    a(f"s_mov_b32 s10, {576*1152}")
    a(f"s_mul_i32 s22, s2, {16*1152}")
    a(f"s_lshl_b32 s23, {W}, 10")
    a("s_add_u32 s22, s22, s23")
    a(f"s_add_u32 m0, s23, {L_PREP}")
    dma(a, AUX, "s22", 2, 8192, 8192, flags="")
    a(f"s_cmp_ge_u32 {W}, 4")
    a("s_cbranch_scc1 L_pa1")
    a(f"s_cmp_ge_u32 {W}, 2")
    a("s_cbranch_scc1 L_pa0")
    a("s_add_u32 m0, m0, 8192")
    a("s_add_u32 s22, s22, 8192")
    dma(a, AUX, "s22", 1, 0, 0, flags="")
    a("s_branch L_pa1")
    a.lab("L_pa0")
    a(f"s_cmp_eq_u32 {W}, 2")
    a("s_cselect_b32 s8, s36, s38")
    a("s_cselect_b32 s9, s37, s39")
    a(f"s_mov_b32 s10, {576*36}")
    a("s_mul_i32 s22, s2, 576")
    a("s_add_u32 m0, m0, 8192")
    dma(a, AUX, "s22", 1, 0, 0, flags="")
    a.lab("L_pa1")
    x0_dma(a)
    a(f"v_mul_u32_u24 v10, {8*1152}, v{vH}")
    a(f"v_add_u32 v10, {L_PREP}, v10")
    for r in range(3):
        a(f"s_add_u32 s22, {W}, {8*r}")
        a("s_mul_i32 s23, s22, 86")
        a("s_lshr_b32 s23, s23, 8")
        a("s_mul_i32 s24, s23, 3")
        a("s_sub_u32 s24, s22, s24")
        a("s_mul_i32 s23, s23, 144")
        a("s_mul_i32 s25, s24, 72")
        a("s_cmp_eq_u32 s24, 2")
        a("s_cselect_b32 s25, 32, s25")
        a("s_cselect_b32 s26, 1, 4")
        a("s_cselect_b32 s27, 1, 15")
        a("s_cselect_b32 s28, 8, 32")
        a("s_add_u32 s23, s23, s25")
        a(f"v_lshrrev_b32 v4, s26, v{vT}")
        a("v_mul_u32_u24 v4, 36, v4")
        a(f"v_and_b32 v5, s27, v{vT}")
        a("v_lshl_add_u32 v4, v5, 1, v4")
        a("v_add3_u32 v4, v4, v10, s23")
        a(f"v_cmp_gt_u32 vcc, s28, v{vT}")
        a("s_nop 1")
        a("v_cndmask_b32 v4, v11, v4, vcc")
        gather(a, 4, 1152, P0 + 4 * r, G0 + 8 * r)
    a(f"v_lshlrev_b32 v4, 1, v{vT}")
    a(f"s_cmp_eq_u32 {W}, 1")
    a("s_cselect_b64 vcc, -1, 0")
    a(f"s_lshl_b32 s23, {W}, 10")
    a(f"s_add_u32 s23, s23, {L_PREP+18432}")
    a("v_cndmask_b32 v4, v4, v12, vcc")
    a(f"v_mul_u32_u24 v5, {8*36}, v{vH}")
    a("v_add3_u32 v4, v4, v5, s23")
    a(f"v_cmp_gt_u32 vcc, 18, v{vT}")
    a("s_nop 1")
    a("v_cndmask_b32 v4, v11, v4, vcc")
    a("s_waitcnt lgkmcnt(0)")
    gather(a, 4, 36, P0 + 12, G0 + 24)
    a(f"s_mul_i32 s22, {W}, {WCT}")
    a("s_lshl_b32 s23, s2, 10")
    a("s_add_u32 s22, s22, s23")
    a(f"s_add_u32 s22, s22, {WA_OFF:#x}")
    for r in range(3):
        gpack(a, P0 + 4 * r, G0 + 8 * r)
        a(f"buffer_store_dwordx4 {vr(P0+4*r,4)}, v{vL16}, {WS}, s22 offen sc1")
        a(f"s_add_u32 s22, s22, {8*WCT}")
    a(f"s_cmp_ge_u32 {W}, 2")
    a("s_cbranch_scc1 L_prep_done")
    a("s_waitcnt lgkmcnt(0)")
    gpack(a, P0 + 12, G0 + 24)
    a(f"buffer_store_dwordx4 {vr(P0+12,4)}, v{vL16}, {WS}, s22 offen sc1")
    a("s_branch L_prep_done")
    x0_sub(a)
    a.lab("L_pb")
    a("s_mov_b32 s8, s44")
    a("s_mov_b32 s9, s45")
    a(f"s_mov_b32 s10, {576*3456}")
    a("s_sub_u32 s28, s2, 36")
    a("s_and_b32 s29, s28, 3")
    a("s_lshr_b32 s28, s28, 2")
    a(f"s_mul_i32 s22, s28, {16*3456}")
    a("s_mul_i32 s23, s29, 288")
    a("s_add_u32 s22, s22, s23")
    a(f"s_lshl_b32 s23, {W}, 10")
    a(f"s_add_u32 m0, s23, {L_PREP}")
    for r in range(2):
        a(f"v_add_u32 v4, {512*r}, v0")
        a("v_mul_u32_u24 v5, 607, v4")
        a("v_lshrrev_b32 v5, 15, v5")
        a("v_mul_u32_u24 v6, 54, v5")
        a("v_sub_u32 v4, v4, v6")
        a("v_mul_u32_u24 v6, 57, v4")
        a("v_lshrrev_b32 v6, 10, v6")
        a(f"v_mul_u32_u24 v6, {1152-288}, v6")
        a("v_lshl_add_u32 v4, v4, 4, v6")
        a("v_mul_u32_u24 v5, 3456, v5")
        a("v_add_u32 v4, v4, v5")
        a(f"buffer_load_dwordx4 v4, {AUX}, s22 offen lds")
        if r == 0: a("s_add_u32 m0, m0, 8192")
    x0_dma(a)
    a(f"v_mul_u32_u24 v10, {8*864}, v{vH}")
    a(f"s_mul_i32 s23, {W}, 36")
    a(f"s_add_u32 s23, s23, {L_PREP}")
    a("v_add_u32 v10, s23, v10")
    a(f"v_lshrrev_b32 v4, 4, v{vT}")
    a("v_mul_u32_u24 v4, 288, v4")
    a(f"v_and_b32 v5, 15, v{vT}")
    a("v_lshl_add_u32 v4, v5, 1, v4")
    a("v_add_u32 v4, v4, v10")
    gather(a, 4, 864, P0, G0)
    a("v_add_u32 v4, 576, v12")
    a(f"v_cmp_gt_u32 vcc, 18, v{vT}")
    a(f"v_bfe_u32 v5, v{vT}, 1, 1")
    a("v_mul_u32_u24 v5, 288, v5")
    a("v_cndmask_b32 v4, v11, v4, vcc")
    a(f"v_and_b32 v6, 1, v{vT}")
    a("v_lshl_add_u32 v5, v6, 1, v5")
    a(f"v_lshrrev_b32 v6, 2, v{vT}")
    a("v_cmp_eq_u32 vcc, 6, v6")
    a("v_add_u32 v5, 32, v5")
    a("s_nop 0")
    a("v_cndmask_b32 v4, v4, v5, vcc")
    a("v_add_u32 v4, v4, v10")
    gather(a, 4, 864, P0 + 4, G0 + 8)
    a("s_lshl_b32 s22, s29, 3")
    a(f"s_add_u32 s22, s22, {W}")
    a(f"s_mul_i32 s22, s22, {2*WCT}")
    a("s_lshl_b32 s23, s28, 10")
    a("s_add_u32 s22, s22, s23")
    a(f"s_add_u32 s22, s22, {WB_OFF:#x}")
    a("s_mov_b32 s100, s22")
    a(f"s_mov_b32 s101, {WCT}")
    a("s_waitcnt lgkmcnt(0)")
    gpack(a, RES, G0)
    gpack(a, RES + 4, G0 + 8)
    a("s_branch L_prep_done")
    a.lab("L_po")
    a("s_cmp_ge_u32 s2, 216")
    a("s_cselect_b32 s8, s46, s40")
    a("s_cselect_b32 s9, s47, s41")
    a("s_cselect_b32 s28, 36, 0")
    a(f"s_cselect_b32 s29, {WOB_OFF>>20}, {WOA_OFF>>20}")
    a(f"s_mov_b32 s10, {576*1152}")
    a("s_sub_u32 s28, s2, s28")
    a("s_sub_u32 s28, s28, 180")
    a(f"s_mul_i32 s22, s28, {18*1152}")
    a("s_sub_u32 s23, s28, 32")
    a(f"s_mul_i32 s23, s23, {144*1152}")
    a(f"s_add_u32 s23, s23, {16*1152}")
    a("s_cmp_ge_u32 s28, 32")
    a("s_cselect_b32 s22, s23, s22")
    a(f"s_cselect_b32 s24, {18*1152-2304}, 0")
    a(f"s_lshl_b32 s23, {W}, 10")
    a(f"s_add_u32 m0, s23, {L_PREP}")
    for r in range(3):
        if r == 2:
            a(f"s_cmp_ge_u32 {W}, 2")
            a("s_cbranch_scc1 L_po1")
        a(f"v_add_u32 v4, {512*r}, v0")
        a("v_mul_u32_u24 v5, 1821, v4")
        a("v_lshrrev_b32 v5, 18, v5")
        a("v_mul_lo_u32 v5, v5, s24")
        a("v_lshl_add_u32 v4, v4, 4, v5")
        a(f"buffer_load_dwordx4 v4, {AUX}, s22 offen lds")
        if r < 2: a("s_add_u32 m0, m0, 8192")
    a.lab("L_po1")
    x0_dma(a)
    a(f"v_mul_u32_u24 v10, {8*1152}, v{vH}")
    a(f"s_lshl_b32 s23, {W}, 6")
    a(f"s_add_u32 s23, s23, {L_PREP}")
    a("v_add3_u32 v4, v10, v12, s23")
    for r in range(3):
        gather(a, 4, 1152, P0 + 4 * r, G0 + 8 * r)
        a("v_add_u32 v4, 512, v4")
        if r == 1: a("s_waitcnt lgkmcnt(0)")
    a("s_lshl_b32 s29, s29, 20")
    a(f"s_mul_i32 s22, {W}, {WCT}")
    a("s_lshl_b32 s23, s28, 10")
    a("s_add_u32 s22, s22, s23")
    a("s_add_u32 s22, s22, s29")
    a("s_mov_b32 s100, s22")
    a(f"s_mov_b32 s101, {8*WCT}")
    a("s_waitcnt lgkmcnt(0)")
    gpack(a, RES, G0)
    gpack(a, RES + 4, G0 + 8)
    gpack(a, R, G0 + 16)
    a("s_branch L_prep_done")
    a.lab("L_pn")
    x0_dma(a)
    a.lab("L_prep_done")
    a(f"s_and_b32 s24, {sI}, 8")
    a("s_cmp_eq_u32 s24, 0")
    a("s_cbranch_scc1 L_pd_nokv")
    a(f"v_lshlrev_b32 v4, 1, v{vT}")
    a(f"s_cmp_ge_u32 {sI}, 16")
    a("s_cselect_b64 vcc, -1, 0")
    a(f"s_mul_i32 s23, {W}, 576")
    a(f"s_add_u32 s23, s23, {L_RAW}")
    a("v_cndmask_b32 v4, v4, v12, vcc")
    a(f"v_mul_u32_u24 v5, {8*36}, v{vH}")
    a("v_add3_u32 v4, v4, v5, s23")
    a(f"v_cmp_gt_u32 vcc, 18, v{vT}")
    a(f"s_lshl_b32 s23, {W}, 10")
    a(f"v_add_u32 v5, s23, v{vL16}")
    a("v_cndmask_b32 v4, v11, v4, vcc")
    for r in range(5):
        for j in range(8):
            a(f"ds_read_u16 v{G0+8*r+j}, v4 offset:{r*8*576+j*36}")
        if r % 2 == 1: a("s_waitcnt lgkmcnt(0)")
    a("s_waitcnt lgkmcnt(0)")
    for r in range(5):
        gpack(a, G0 + 8 * r, G0 + 8 * r)
        a(f"ds_write_b128 v5, {vr(G0+8*r,4)} offset:{r*8192}")
    a.lab("L_pd_nokv")
    a("s_mov_b32 s8, s48")
    a("s_mov_b32 s9, s49")
    a(f"s_mov_b32 s10, {2048*1152}")
    a(f"v_mov_b32 v5, {L_FLAG}")
    a(f"s_cmp_lg_u32 {W}, 7")
    a("s_cbranch_scc1 L_pd_w")
    a("s_mov_b32 s21, 0")
    a("s_waitcnt vmcnt(0)")
    a("v_mov_b32 v4, v101")
    a("v_cmp_eq_u32 vcc, 0, v101")
    a("s_cbranch_vccz L_pd_got")
    a.lab("L_pd_poll")
    a("buffer_load_dword v4, off, s[56:59], 0 sc1")
    a("s_add_u32 s21, s21, 1")
    a(f"s_cmp_gt_u32 s21, {sLIM}")
    a("s_waitcnt vmcnt(0)")
    a("s_cbranch_scc1 L_pd_got")
    a("v_cmp_eq_u32 vcc, 0, v4")
    a("s_cbranch_vccnz L_pd_poll")
    a.lab("L_pd_got")
    a("ds_write_b32 v5, v4")
    a("v_mov_b32 v4, 0")
    a("ds_write_b32 v5, v4 offset:4")
    a("ds_write_b32 v5, v4 offset:8")
    a.lab("L_pd_w")
    a("s_waitcnt vmcnt(0) lgkmcnt(0)")
    a("s_barrier")
    a("s_mov_b32 s33, 0")
    a(f"ds_read_b32 v{vNONCE}, v5")
    a("s_waitcnt lgkmcnt(0)")
    a(f"v_readfirstlane_b32 {sNONCE}, v{vNONCE}")
    a("s_getreg_b32 s34, hwreg(HW_REG_XCC_ID)")
    a("s_lshl_b32 s34, s34, 1")
    a(f"s_add_u32 s34, s34, {sNONCE}")
    a(f"s_cmp_lg_u32 {W}, 1")
    a("s_cbranch_scc1 L_nocensus")
    a("v_mov_b32 v5, s34")
    a(f"v_lshlrev_b32 v4, 3, v{vL16}")
    a(f"s_lshl_b32 s22, {sX}, 12")
    a(f"s_lshl_b32 s23, {sI}, 7")
    a("s_add_u32 s22, s22, s23")
    a(f"s_add_u32 s22, s22, {FL+20:#x}")
    a("s_mov_b64 exec, 1")
    a(f"buffer_store_dword v5, off, {WS}, s22 sc1")
    a(f"s_mul_i32 s22, {sX}, {BLK}")
    a(f"s_mul_i32 s23, {sI}, 640")
    a("s_add_u32 s22, s22, s23")
    a(f"s_add_u32 s22, s22, {KVL:#x}")
    a("s_mov_b64 exec, 31")
    a(f"buffer_load_dword v100, v4, {WS}, s22 offen sc1")
    a("s_mov_b64 exec, -1")
    a.lab("L_nocensus")

    a(f"s_cmp_lg_u32 {W}, 3")
    a("s_cbranch_scc1 L_pd_noflag")
    a("s_cmp_ge_u32 s2, 36")
    a("s_cbranch_scc1 L_pd_noflag")
    prep_flag(a)
    a.lab("L_pd_noflag")
    a(f"v_mov_b32 v0, v{vL16}")
    a(f"s_cmp_eq_u32 {W}, 4")
    a("s_cbranch_scc0 L_v0")
    a(f"s_lshr_b32 s22, {sI}, 3")
    a("s_and_b32 s22, s22, 1")
    a("s_lshl_b32 s22, s22, 8")
    q16(a, 0)
    a("v_add_u32 v0, s22, v0")
    a.lab("L_v0")
    stamp(a, "prep_done")

def wa_role(a, skip):
    a(f"s_cmp_lt_u32 {W}, 4")
    a(f"s_cbranch_scc1 {skip}")
    a(f"s_lshr_b32 s23, {sI}, 2")
    a("s_mul_i32 s22, s23, 3")
    a(f"s_add_u32 s22, s22, {W}")
    a("s_sub_u32 s22, s22, 5")
    a(f"s_cmp_lg_u32 {W}, 4")
    l = a.nl("Lwa")
    a(f"s_cbranch_scc1 {l}")
    a("s_and_b32 s24, s23, 2")
    a("s_cmp_eq_u32 s24, 0")
    a(f"s_cbranch_scc1 {skip}")
    a("s_lshr_b32 s22, s23, 2")
    a("s_add_u32 s22, s22, 24")
    a.lab(l)

def wa_issue(a):
    a(f"s_mul_i32 s22, s22, {WCT}")
    a(f"s_add_u32 s22, s22, {WA_OFF:#x}")
    r_loads(a, WS, "s22", 0, 36)

QM = 24
QE = 28
S_ = [36, 52]
OC = 68
KM = 84
KE = 88
VA, VB = 92, 96
vKa, vKe, vVa = 8, 9, 10

FAIR = 3
CODEPF = 1
WLATE = 12
WAE = 36
WARMJ = 56
WBE = 20
QPF = 12
LSTART = 6
BPF = 12
WEARLY = 0
def body(a, cur, rdKM=None, rdKE=None, rdVa=None, rdVb=None, u=0, qk=True, pv1=True, cinit=None, ke64=True, pvwait=2,
         extra=(), fair=None, ozero=False):
    s, n = S_[cur], S_[cur ^ 1]
    e = lambda r: a(f"v_exp_f32 v{s+r}, v{s+r}")
    c = lambda p: a(f"v_cvt_pk_bf16_f32 v{s+p+(4 if p >= 4 else 0)}, v{s+2*p}, v{s+2*p+1}")
    ad = lambda x, d: (f"v{x[0]} offset:{x[1]}" if isinstance(x, tuple) else f"v{d} offset:{x}")
    if fair is not None: a(f"s_setprio {fair[0]}")
    e(0); e(1)
    if pv1:
        a(f"s_waitcnt lgkmcnt({pvwait})")
        a(f"v_mfma_f32_32x32x16_bf16 {vr(OC,16)}, {vr(VB,4)}, {vr(n+8,4)}, {vr(OC,16)}")
    if rdVb is not None:
        a(f"ds_read_b128 {vr(VB,4)}, {ad(rdVb, vVa)}")
    if cinit is not None:
        cinit(n)
    e(2); e(3); e(4); c(0)
    if qk:
        a("s_waitcnt lgkmcnt(2)")
        a(f"v_mfma_f32_32x32x16_bf16 {vr(n,16)}, {vr(KM,4)}, {vr(QM,4)}, {vr(n,16) if cinit is not None else 0}")
    if rdKM is not None:
        a(f"ds_read_b128 {vr(KM,4)}, {ad(rdKM, vKa)}")
    e(5); e(6); e(7); c(1); c(2)
    if qk:
        a(f"v_mfma_f32_32x32x8_bf16 {vr(n,16)}, {vr(KE,2)}, {vr(QE+2*u,2)}, {vr(n,16)}")
    if rdKE is not None:
        a(f"ds_read_b64 {vr(KE,2)}, {ad(rdKE, vKe)}" if ke64 else f"ds_read_b32 v{KE}, {ad(rdKE, vKe)}")
    for x in extra: a(x)
    if fair is not None and fair[1] != fair[0]: a(f"s_setprio {fair[1]}")
    c(3); e(8); e(9); e(10); e(11); c(4)
    later = (rdVb is not None) + (rdKM is not None) + (rdKE is not None)
    a(f"s_waitcnt lgkmcnt({min(later, 2)})")
    a(f"v_mfma_f32_32x32x16_bf16 {vr(OC,16)}, {vr(VA,4)}, {vr(s,4)}, {0 if ozero else vr(OC,16)}")
    if rdVa is not None:
        a(f"ds_read_b128 {vr(VA,4)}, {ad(rdVa, vVa)}")
    e(12); e(13); e(14); e(15); c(5); c(6); c(7)

def tail_pv1(a, cur):
    a("s_waitcnt lgkmcnt(0)")
    a("s_nop 0")
    a(f"v_mfma_f32_32x32x16_bf16 {vr(OC,16)}, {vr(VB,4)}, {vr(S_[cur]+8,4)}, {vr(OC,16)}")

def v_addr(a, base):
    a(f"v_mul_u32_u24 v{vVa}, 304, v{vH}")
    a(f"v_min_u32 v4, 18, v{vT}")
    a(f"v_lshl_add_u32 v{vVa}, v4, 4, v{vVa}")
    a(f"v_add_u32 v{vVa}, {base}, v{vVa}")
    a(f"v_cmp_ge_u32 vcc, 18, v{vT}")
    a(f"v_cmp_eq_u32 s[62:63], 28, v{vT}")
    a("s_or_b64 vcc, vcc, s[62:63]")
    a(f"v_mov_b32 v4, {LOOB:#x}")
    a("s_nop 0")
    a(f"v_cndmask_b32 v{vVa}, v4, v{vVa}, vcc")

def attn_finish(a, tag, sT, sHead, OO):
    a(f"s_mul_i32 s24, {sT}, {XT}")
    a(f"s_add_u32 s24, s24, {OO:#x}")
    a(f"s_lshl_b32 s27, {sHead}, 10")
    a("s_add_u32 s27, s27, s24")
    a(f"s_lshr_b32 s25, {sHead}, 2")
    a("s_lshl_b32 s25, s25, 9")
    a(f"s_and_b32 s26, {sHead}, 3")
    a("s_lshl_b32 s26, s26, 2")
    a("s_add_u32 s25, s25, s26")
    a("s_add_u32 s25, s25, s24")
    a(f"s_add_u32 s25, s25, {32*1024}")
    a(f"v_cmp_eq_u32 vcc, 0, v{vH}")
    a(f"v_lshlrev_b32 v12, 30, v{vH}")
    a(f"v_lshl_add_u32 v12, v{vT}, 4, v12")
    a(f"v_mov_b32 v5, {f2u(2.0**60):#x}")
    a(f"v_cndmask_b32 v4, v{OC+12}, v{OC+10}, vcc")
    a(f"v_cmp_le_f32 vcc, {f2u(2.0**-60):#x}, v4")
    a("v_cmp_le_f32 s[62:63], v4, v5")
    a("s_and_b64 vcc, vcc, s[62:63]")
    a("s_cmp_eq_u64 vcc, -1")
    a(f"s_cbranch_scc0 L_{tag}_slow")
    if FORCESLOW: a(f"s_branch L_{tag}_slow")
    a.lab(f"L_{tag}_fin")
    a("v_rcp_f32 v4, v4")
    a("s_nop 0")
    for r in range(10):
        a(f"v_mul_f32 v{OC+r}, v4, v{OC+r}")
    pack(a, OC, 5)
    lstore(a, [f"buffer_store_dwordx4 {vr(OC,4)}, v{vL16}, {WS}, s27 offen",
               f"buffer_store_dword v{OC+4}, v12, {WS}, s25 offen"])

def mask_init(a, dst, diag):
    for r in range(16):
        m = f"s[{MASK+2*r}:{MASK+2*r+1}]"
        if diag: a(f"v_cndmask_b32 v{dst+r}, v11, 0, {m}")
        else:    a(f"v_cndmask_b32 v{dst+r}, 0, v11, {m}")

def slow_qk(a, u, cin):
    s = S_[0]
    a("s_waitcnt lgkmcnt(0)")
    a("s_nop 1")
    a(f"v_mfma_f32_32x32x16_bf16 {vr(s,16)}, {vr(KM,4)}, {vr(QM,4)}, {vr(s,16) if cin else 0}")
    a(f"v_mfma_f32_32x32x8_bf16 {vr(s,16)}, {vr(KE,2)}, {vr(QE+2*u,2)}, {vr(s,16)}")
    a("s_nop 12")

def slow_max(a):
    s = S_[0]
    for i in range(8):
        a(f"v_max3_f32 v7, v{s+2*i}, v{s+2*i+1}, v7")

def slow_pv(a):
    s = S_[0]
    for r in range(16):
        a(f"v_sub_f32 v{s+r}, v{s+r}, v7")
    for r in range(16):
        a(f"v_exp_f32 v{s+r}, v{s+r}")
    a("s_nop 0")
    pack(a, s, 8)
    a("s_nop 1")
    a(f"v_mfma_f32_32x32x16_bf16 {vr(OC,16)}, {vr(VA,4)}, {vr(s,4)}, {vr(OC,16)}")
    a(f"v_mfma_f32_32x32x16_bf16 {vr(OC,16)}, {vr(VB,4)}, {vr(s+4,4)}, {vr(OC,16)}")
    a("s_nop 7")

def slow_mid(a):
    a("v_mov_b32 v6, v7")
    a("s_nop 1")
    a("v_permlane32_swap_b32 v6, v7")
    a("s_nop 1")
    a("v_max_f32 v7, v6, v7")
    for r in range(16):
        a(f"v_mov_b32 v{OC+r}, 0")

def slow_end(a, tag):
    a("s_nop 12")
    a(f"v_cmp_eq_u32 vcc, 0, v{vH}")
    a("s_nop 1")
    a(f"v_cndmask_b32 v4, v{OC+12}, v{OC+10}, vcc")
    a(f"s_branch L_{tag}_fin")

def out_role(a):
    a(f"s_and_b32 s42, {sI}, 7")
    a(f"s_lshl_b32 s43, {sX}, 3")
    a("s_add_u32 s42, s42, s43")
    a(f"s_lshr_b32 s44, {sI}, 3")
    a("s_mul_i32 s43, s44, 9")
    a("s_add_u32 s43, s43, 1")
    a("s_lshr_b32 s43, s43, 1")
    a(f"s_add_u32 s43, s43, {W}")
    a("s_lshr_b32 s22, s44, 1")
    a("s_mul_i32 s22, s22, 9")
    a("s_add_u32 s22, s22, 4")
    a(f"s_cmp_eq_u32 {W}, 4")
    a("s_cselect_b32 s43, s22, s43")
    a("s_and_b32 s44, s44, 1")

def gen_pha(a, slow):
    a.lab("L_it")
    stamp(a, "A_begin")
    a(f"s_and_b32 s45, {sI}, 3")
    a("s_lshl_b32 s45, s45, 1")
    a(f"s_lshl_b32 s46, {sX}, 3")
    a("s_add_u32 s45, s45, s46")
    a(f"s_lshr_b32 s46, {sI}, 2")
    a(f"s_cmp_ge_u32 {W}, 5")
    a("s_cbranch_scc1 L_A_q2")
    a(f"s_cmp_eq_u32 {W}, 4")
    a("s_cbranch_scc1 L_A_kv")
    a(f"s_cmp_ge_u32 {W}, 2")
    a("s_cbranch_scc1 L_A_st")
    a(f"s_add_u32 s22, s45, {W}")
    a(f"s_cmp_eq_u32 {sIT}, 0")
    a("s_cbranch_scc1 L_A_ld3")
    a("s_lshl_b32 s23, s22, 9")
    a(f"s_add_u32 s23, s23, {FXA:#x}")
    poll(a, IT, "s23", 4)
    stamp(a, "A_xflag")
    a(f"s_mul_i32 s22, s22, {XT}")
    a(f"s_add_u32 s22, s22, {XS:#x}")
    a(f"s_mul_i32 s23, {W}, {XT}")
    a(f"s_add_u32 m0, s23, {L_XA}")
    dma(a, WS, "s22", 36, 1024, 1024)
    a.lab("L_A_ld2")
    for n in (24, 12, 0):
        a(f"s_waitcnt vmcnt({n})")
        a("s_barrier")
        if n == 24: stamp(a, "A_bar1")
    a.lab("L_A_ld3")
    a(f"s_cmp_lg_u32 {W}, 0")
    a("s_cbranch_scc1 L_A_q")
    a(f"s_lshl_b32 s23, {sX}, 12")
    a(f"s_add_u32 s23, s23, {FKAL:#x}")
    poll(a, IT, "s23", 16)
    stamp(a, "A_kvflag")
    a(f"s_mul_i32 s22, {sX}, {BLK}")
    a(f"s_add_u32 s22, s22, {KVL:#x}")
    a("s_mov_b32 m0, 0")
    dma(a, WS, "s22", 19, 1024, 1024, half_last=True)
    a("s_waitcnt vmcnt(0)")
    a("s_branch L_A_q")
    a.lab("L_A_idle")
    a(f"s_cmp_eq_u32 {sIT}, 0")
    a("s_cbranch_scc1 L_A_q")
    for n in range(3):
        a("s_barrier")
    a("s_branch L_A_q")
    a.lab("L_A_st")
    a(f"s_sub_u32 s24, {W}, 2")
    a(f"s_cmp_eq_u32 {sIT}, 0")
    a("s_cbranch_scc0 L_A_st1")
    a(f"s_mul_i32 s25, s24, {XT}")
    a(f"s_add_u32 s25, s25, {L_XA}")
    xaddr(a, 40, "s25")
    for q in range(4): a(f"v_mov_b32 v{STR+q}, 0")
    a("s_mov_b32 s25, 0")
    a.lab("L_A_st0")
    for k in range(12):
        a(f"ds_read_b128 {vr(R+4+4*k,4)}, v{40+(k&3)} offset:{(k>>2)*4096}")
    for k in range(12):
        a(f"s_waitcnt lgkmcnt({11-k})")
        for d in range(4):
            a(f"v_dot2_f32_bf16 v{STR+2*(d&1)}, v{R+4+4*k+d}, s60, v{STR+2*(d&1)}")
            a(f"v_dot2_f32_bf16 v{STR+1+2*(d&1)}, v{R+4+4*k+d}, v{R+4+4*k+d}, v{STR+1+2*(d&1)}")
    for q in range(4):
        a(f"v_add_u32 v{40+q}, {3*4096}, v{40+q}")
    a("s_add_u32 s25, s25, 1")
    a("s_cmp_lt_u32 s25, 3")
    a("s_cbranch_scc1 L_A_st0")
    a(f"v_add_f32 v{STR}, v{STR}, v{STR+2}")
    a(f"v_add_f32 v{STR+1}, v{STR+1}, v{STR+3}")
    a("s_nop 1")
    a(f"v_permlane32_swap_b32 v{STR}, v{STR+1}")
    a("s_nop 1")
    a(f"v_add_f32 v{STR}, v{STR}, v{STR+1}")
    a("s_branch L_A_st2")
    a.lab("L_A_st1")
    a("s_add_u32 s25, s45, s24")
    a("s_barrier")
    stats_load(a, STR, "s25", STS)
    a("s_barrier")
    a("s_waitcnt vmcnt(0)")
    stats_sum(a, STR)
    a.lab("L_A_st2")
    stats_compute(a, STR, XEXT, RSTD)
    a("s_lshl_b32 s24, s24, 8")
    a(f"s_add_u32 s24, s24, {L_MISC}")
    a(f"v_lshl_add_u32 v4, v{vT}, 2, s24")
    a(f"ds_write_b32 v4, v{RSTD}")
    a(f"ds_write_b32 v4, v{XEXT} offset:128")
    a("s_waitcnt lgkmcnt(0)")
    a(f"s_cmp_eq_u32 {sIT}, 0")
    a("s_cbranch_scc1 L_A_st3")
    a("s_barrier")
    a("s_branch L_A_q")
    a.lab("L_A_st3")
    a(f"v_mov_b32 v5, {L_FLAG+8}")
    a("v_mov_b32 v6, 1")
    a("s_mov_b64 exec, 1")
    a("ds_add_u32 v5, v6")
    a("s_mov_b64 exec, -1")
    a("s_branch L_A_q")
    def bar1():
        l = a.nl("Lb")
        a(f"s_cmp_eq_u32 {sIT}, 0")
        a(f"s_cbranch_scc1 {l}")
        a("s_barrier")
        a.lab(l)
    def gemm3(bases, swap, pre, staged):
        a(f"v_mov_b32 v{XEXT+1}, 0")
        a(f"v_mov_b32 v{XEXT+3}, 0")
        if staged:
            def h2():
                bar1(); pre()
            gemm_stage(a, bases, 0, 36, swap, True, quad=True, hooks={0: bar1, 12: bar1, 20: (lambda: census_issue(a, 44)), 24: h2})
        else:
            for _ in range(3): bar1()
            gemm_stage(a, bases, 0, 36, swap, True, cs=True, pre=pre, quad=True)
        l = a.nl("Lst")
        a(f"s_cmp_eq_u32 {sIT}, 0")
        a(f"s_cbranch_scc0 {l}")
        if staged:
            a("s_call_b64 s[30:31], L_A_cs")
        a(f"v_mov_b32 v46, v5" if staged else "v_mov_b32 v96, v5")
        a(f"v_mov_b32 v47, v6" if staged else "v_mov_b32 v97, v6")
        a(f"s_mov_b32 s50, {L_FLAG+8}")
        a("s_mov_b32 s51, 2")
        a("s_call_b64 s[30:31], L_B_wait")
        a(f"v_mov_b32 v5, v46" if staged else "v_mov_b32 v5, v96")
        a(f"v_mov_b32 v6, v47" if staged else "v_mov_b32 v6, v97")
        pre()
        a("s_waitcnt lgkmcnt(0)")
        a.lab(l)
    def first_w():
        l, e = a.nl("Lfw"), a.nl("Lfe")
        a(f"s_cmp_eq_u32 {sIT}, 0")
        a(f"s_cbranch_scc0 {l}")
        a(f"s_mov_b32 s23, {FPREP:#x}")
        poll(a, WS, "s23", 36, vtmp=4, voff=13)
        stamp(a, "A_wflag")
        wa_role(a, l)
        a(f"s_mul_i32 s40, s22, {WCT}")
        a(f"s_add_u32 s40, s40, {WA_OFF:#x}")
        r_loads(a, WS, "s40", 0, QPF)
        a(f"s_branch {e}")
        a.lab(l)
        a("s_waitcnt vmcnt(0)")
        a.lab(e)
    a.lab("L_A_kv")
    a("s_and_b32 s24, s46, 2")
    a("s_cmp_eq_u32 s24, 0")
    a("s_cbranch_scc1 L_A_idle")
    a("s_and_b32 s24, s46, 1")
    a("s_add_u32 s47, s45, s24")
    a("s_lshl_b32 s27, s24, 8")
    a(f"s_add_u32 s27, s27, {L_MISC}")
    a(f"s_mul_i32 s24, s24, {XT}")
    a(f"s_add_u32 s24, s24, {L_XA}")
    xaddr(a, 40, "s24")
    a(f"v_lshl_add_u32 v6, v{vT}, 2, s27")
    a(f"v_lshl_add_u32 v5, v{vH}, 4, s27")
    a("s_lshr_b32 s28, s47, 2")
    a(f"s_mul_i32 s28, s28, {GRP}")
    a(f"s_add_u32 s28, s28, {KVA:#x}")
    a("s_and_b32 s29, s47, 3")
    a("s_setprio 3")
    a("s_waitcnt vmcnt(0)")
    a(f"s_cmp_eq_u32 {sIT}, 0")
    a("s_cbranch_scc0 L_A_kv1")
    for ks in range(36):
        a(f"ds_read_b128 {vr(R+4*ks,4)}, v{vL16} offset:{ks*1024}")
        if ks % 12 == 11: a("s_waitcnt lgkmcnt(0)")
    a.lab("L_A_kv1")
    a("s_cmp_ge_u32 s46, 4")
    a("s_cbranch_scc1 L_A_v")
    def pre_k():
        a(f"ds_read_b32 v{RSTD}, v6")
        a(f"ds_read_b32 v{XEXT}, v6 offset:128")
    gemm3([40], False, pre_k, True)
    a(f"v_mfma_f32_32x32x8_bf16 {vr(ACC,16)}, {vr(WEXT,2)}, {vr(XEXT,2)}, {vr(ACC,16)}")
    a("s_lshl_b32 s30, s29, 10")
    a("s_add_u32 s30, s30, s28")
    a(f"s_add_u32 s31, s30, {KVL-KVA:#x}")
    a("s_lshr_b32 s24, s29, 1")
    a("s_lshl_b32 s24, s24, 8")
    a("s_and_b32 s25, s29, 1")
    a("s_lshl_b32 s25, s25, 2")
    a("s_add_u32 s24, s24, s25")
    a("s_add_u32 s24, s24, s28")
    a("s_add_u32 s24, s24, 4096")
    a(f"s_add_u32 s25, s24, {KVL-KVA:#x}")
    a(f"v_lshlrev_b32 v4, 30, v{vH}")
    a(f"v_lshl_add_u32 v4, v{vT}, 3, v4")
    for r in range(10):
        a(f"v_mul_f32 v{ACC+r}, v{RSTD}, v{ACC+r}")
    pack(a, ACC, 5)
    a("s_waitcnt vmcnt(0)")
    census_eval(a, 44, sLOC)
    lstore(a, [f"buffer_store_dwordx4 {vr(ACC,4)}, v{vL16}, {WS}, s31 offen", f"buffer_store_dword v{ACC+4}, v4, {WS}, s25 offen"])
    a("s_add_u32 s30, s30, s33")
    a("s_add_u32 s24, s24, s33")
    a(f"buffer_store_dwordx4 {vr(ACC,4)}, v{vL16}, {IT}, s30 offen sc1")
    a(f"buffer_store_dword v{ACC+4}, v4, {IT}, s24 offen sc1")
    a("s_mov_b32 s26, 0")
    a("s_branch L_A_kvflag")
    a.lab("L_A_v")
    def pre_v():
        a(f"ds_read_b32 v{XEXT}, v6 offset:128")
        for q in range(4):
            a(f"ds_read_b128 {vr(STR+4*q,4)}, v5 offset:{32*q}")
    gemm3([40], True, pre_v, True)
    a(f"v_mfma_f32_32x32x8_bf16 {vr(ACC,16)}, {vr(XEXT,2)}, {vr(WEXT,2)}, {vr(ACC,16)}")
    a(f"s_mul_i32 s30, s29, {VT}")
    a("s_add_u32 s30, s30, s28")
    a("s_add_u32 s30, s30, 4608")
    a(f"s_add_u32 s31, s30, {KVL-KVA:#x}")
    a(f"v_mul_u32_u24 v4, 304, v{vH}")
    a(f"v_lshl_add_u32 v4, v{vT}, 4, v4")
    a(f"v_mov_b32 v5, {OOB:#x}")
    a(f"v_cmp_ge_u32 vcc, 18, v{vT}")
    a("s_nop 1")
    a("v_cndmask_b32 v4, v5, v4, vcc")
    a("s_nop 1")
    for r in range(16):
        a(f"v_mul_f32 v{ACC+r}, v{STR+r}, v{ACC+r}")
    pack(a, ACC, 8)
    a("s_mov_b32 s24, 0x40000")
    a("s_mov_b32 s25, 0x40000")
    a("s_mov_b64 exec, s[24:25]")
    for p in range(8):
        a(f"v_mov_b32 v{ACC+p}, s60")
    a("s_mov_b64 exec, -1")
    a("s_waitcnt vmcnt(0)")
    census_eval(a, 44, sLOC)
    lstore(a, [f"buffer_store_dwordx4 {vr(ACC,4)}, v4, {WS}, s31 offen", f"buffer_store_dwordx4 {vr(ACC+4,4)}, v4, {WS}, s31 offen offset:608"])
    a("s_add_u32 s30, s30, s33")
    for so in ("s30",):
        a(f"buffer_store_dwordx4 {vr(ACC,4)}, v4, {IT}, {so} offen sc1")
        a(f"buffer_store_dwordx4 {vr(ACC+4,4)}, v4, {IT}, {so} offen offset:608 sc1")
    a("s_mov_b32 s26, 128")
    a.lab("L_A_kvflag")
    stamp(a, "A_kvst")
    a("s_lshl_b32 s24, s47, 8")
    a("s_add_u32 s24, s24, s26")
    a(f"s_lshl_b32 s25, {sX}, 11")
    a("s_add_u32 s25, s25, s24")
    a(f"s_add_u32 s25, s25, {FKAL:#x}")
    a(f"s_add_u32 s24, s24, {FKA:#x}")
    a("s_waitcnt vmcnt(2)")
    stamp(a, "A_kvack")
    setflag(a, IT, "s25", local=True)
    a("s_waitcnt vmcnt(1)")
    setflag(a, IT, "s24")
    a("s_setprio 0")
    a("s_branch L_A_q")
    a.lab("L_A_q2")
    xaddr(a, 88, L_XA)
    for q in range(4):
        a(f"v_add_u32 v{92+q}, {XT}, v{88+q}")
    a(f"v_lshlrev_b32 v5, 2, v{vT}")
    a(f"v_add_u32 v5, {L_MISC}, v5")
    first_w()
    def pre_q():
        for t in range(2):
            a(f"ds_read_b32 v{RSTD+t}, v5 offset:{256*t}")
            a(f"ds_read_b32 v{XEXT+2*t}, v5 offset:{256*t+128}")
    gemm3([88, 92], False, pre_q, False)
    for t in range(2):
        a(f"v_mfma_f32_32x32x8_bf16 {vr(ACC+16*t,16)}, {vr(WEXT,2)}, {vr(XEXT+2*t,2)}, {vr(ACC+16*t,16)}")
    for t in range(2):
        a(f"v_mul_f32 v{RSTD+t}, {f2u(QSCALE):#x}, v{RSTD+t}")
    a(f"s_sub_u32 s24, {W}, 5")
    a(f"s_mul_i32 s24, s24, {4*1152}")
    a(f"s_add_u32 s24, s24, {L_Q}")
    a(f"v_add_u32 v4, s24, v{vL16}")
    a(f"v_mul_u32_u24 v5, {4*1152}, v{vH}")
    a(f"v_lshl_add_u32 v5, v{vT}, 2, v5")
    a(f"v_add_u32 v5, {L_Q+1024}, v5")
    a("s_nop 3")
    for t in range(2):
        for r in range(16):
            a(f"v_mul_f32 v{ACC+16*t+r}, v{RSTD+t}, v{ACC+16*t+r}")
        pack(a, ACC + 16 * t, 8)
    a(f"s_cmp_eq_u32 {W}, 7")
    a("s_cbranch_scc1 L_A_qext")
    for t in range(2):
        for hh in range(2):
            a(f"ds_write_b128 v4, {vr(ACC+16*t+4*hh,4)} offset:{(2*hh+t)*1152}")
    a("s_branch L_A_q")
    a.lab("L_A_qext")
    for t in range(2):
        for p in range(2):
            a(f"ds_write_b32 v5, v{ACC+16*t+p} offset:{(2*p+t)*1152}")
    a.lab("L_A_q")
    a("s_waitcnt vmcnt(0) lgkmcnt(0)")
    a("s_barrier")
    stamp(a, "A_attn0")
    a(f"v_lshlrev_b32 v11, 3, v{vL16}")
    a(f"s_add_u32 s47, {sX}, {W}")
    a("s_and_b32 s47, s47, 7")
    a("s_lshl_b32 s23, s47, 11")
    a(f"s_add_u32 s23, s23, {FKA:#x}")
    a(f"v_mov_b32 v12, v{vNONCE}")
    set_exec(a, 0xffff)
    poll_issue(a, IT, "s23", 16, 12, 11)
    a("s_mov_b64 exec, -1")
    a(f"s_mul_i32 s24, {W}, 1152")
    a(f"s_add_u32 s24, s24, {L_Q}")
    a(f"v_add_u32 v4, s24, v{vL16}")
    a(f"v_lshl_add_u32 v5, v{vT}, 2, s24")
    a(f"ds_read_b128 {vr(QM,4)}, v4")
    a(f"ds_read_b32 v6, v5 offset:1024")
    a(f"v_mov_b32 v{vKa}, v{vL16}")
    a(f"v_lshlrev_b32 v{vKe}, 8, v{vH}")
    a(f"v_lshl_add_u32 v{vKe}, v{vT}, 3, v{vKe}")
    a(f"ds_read_b128 {vr(KM,4)}, v{vKa}")
    a(f"ds_read_b64 {vr(KE,2)}, v{vKe} offset:4096")
    v_addr(a, 4608)
    a(f"v_cmp_eq_u32 vcc, 0, v{vH}")
    for r in (1, 2, 5, 6):
        a(f"v_mov_b32 v{QE+r}, 0")
    a("s_waitcnt lgkmcnt(0)")
    a(f"v_cndmask_b32 v{QE}, 0, v6, vcc")
    a(f"v_cndmask_b32 v{QE+3}, 0, v6, vcc")
    a(f"v_cndmask_b32 v{QE+4}, v6, 0, vcc")
    a(f"v_cndmask_b32 v{QE+7}, v6, 0, vcc")
    a(f"v_mfma_f32_32x32x16_bf16 {vr(S_[0],16)}, {vr(KM,4)}, {vr(QM,4)}, 0")
    a(f"v_mfma_f32_32x32x8_bf16 {vr(S_[0],16)}, {vr(KE,2)}, {vr(QE,2)}, {vr(S_[0],16)}")
    a(f"ds_read_b128 {vr(KM,4)}, v{vKa} offset:1024")
    a(f"ds_read_b128 {vr(VA,4)}, v{vVa}")
    a(f"s_and_b32 s22, {W}, 1")
    a("s_add_u32 s45, s45, s22")
    a("s_lshl_b32 s46, s46, 2")
    a(f"s_lshr_b32 s22, {W}, 1")
    a("s_add_u32 s46, s46, s22")
    out_role(a)
    wodd(a)
    a(f"s_lshl_b32 s41, {sI}, 1")
    a(f"s_add_u32 s41, s41, {W}")
    a("s_sub_u32 s41, s41, 5")
    a(f"s_mul_i32 s41, s41, {WCT}")
    a(f"s_add_u32 s41, s41, {WB_OFF:#x}")
    a(f"s_sub_u32 s22, {W}, 5")
    a("s_cmp_lt_u32 s22, 2")
    a(f"s_cselect_b32 s41, s41, {OOB:#x}")
    a(f"s_mul_i32 s22, s43, {XT}")
    a(f"s_add_u32 s22, s22, {WOA_OFF:#x}")
    a(f"s_cmp_lt_u32 {W}, 5")
    a("s_cselect_b32 s41, s22, s41")
    base = {vKa: 0, vKe: 0, vVa: 0}
    def off(reg, o):
        if o - base[reg] > 65535:
            d = 6 * GRP
            a(f"v_add_u32 v{reg}, {d}, v{reg}")
            base[reg] += d
        assert 0 <= o - base[reg] <= 65535
        return o - base[reg]
    def call_if(lo, hi, target):
        l = a.nl("Lc")
        if lo == hi:
            a(f"s_cmp_eq_u32 {W}, {lo}")
        else:
            a(f"s_sub_u32 s22, {W}, {lo}")
            a(f"s_cmp_le_u32 s22, {hi-lo}")
        a(f"s_cbranch_scc0 {l}")
        a(f"s_call_b64 s[30:31], {target}")
        a.lab(l)
    ko = lambda t: (t >> 2) * GRP + (t & 3) * 1024
    vo = lambda t: (t >> 2) * GRP + (t & 3) * VT
    for j in range(64):
        if j + 1 < 64: off(vVa, vo(j + 1))
        kw = dict(rdKM=off(vKa, ko(j + 2)) if j + 2 < 64 else None,
                  rdKE=off(vKe, ((j + 2) >> 2) * GRP + 4096) if (j + 2 < 64 and (j + 2) % 4 == 0) else None,
                  rdVa=off(vVa, vo(j + 1)) if j + 1 < 64 else None, rdVb=off(vVa, vo(j) + 608))
        ex = []
        if 38 <= j < 56:
            for ks in (2 * (j - 38), 2 * (j - 38) + 1):
                if ks % 4 == 0: ex.append(f"s_add_u32 s61, s41, {(ks//4)*4096}")
                ex.append(f"buffer_load_dwordx4 {vr(R+4*ks,4)}, v{wreg(ks)}, {WS}, s61 offen offset:{(ks%4)*1024}")
        body(a, j & 1, u=(j + 1) & 3, qk=(j < 63), pv1=(j > 0), pvwait=(1 if j == 63 else 2), extra=ex, ozero=(j == 0),
             fair=[None, (1, 0), (3 - (j & 3),) * 2, (3 - 2 * (j & 1), 2 - 2 * (j & 1)), (3 - ((j >> 1) & 3),) * 2][FAIR], **kw)
        if j == 0: call_if(7, 7, "L_A_touch0")
        if j == 1: call_if(1, 2, "L_A_fetch")
        if j == 5:
            a("s_waitcnt vmcnt(0)")
            a("s_barrier")
            stamp(a, "A_n2b")
            call_if(3, 4, "L_A_fetch")
            call_if(0, 2, "L_defer")
        if j == 9: call_if(5, 6, "L_A_fetch")
        if j == 13: call_if(7, 7, "L_A_fetch")
        if j == 21:
            a("s_waitcnt vmcnt(0)")
            a("s_barrier")
            stamp(a, "A_n4b")
            stamp(a, "A_n4b", True)
            call_if(1, 1, "L_A_pflag")
        if j == 22: call_if(0, 3, "L_A_touch")
        if j == 26: call_if(4, 6, "L_A_touch")
        if j == 34: call_if(7, 7, "L_A_touch")
        if j == 27: call_if(7, 7, "L_A_check0")
        if j == 32: call_if(7, 7, "L_A_check")
        if j == WARMJ: call_if(7, 7, "L_A_warm")
        if j == 37:
            l = a.nl("Lc")
            a(f"s_cmp_eq_u32 {sIT}, 0")
            a(f"s_cbranch_scc0 {l}")
            a(f"s_mov_b32 s50, {L_FLAG+4}")
            a("s_mov_b32 s51, 1")
            a("s_call_b64 s[30:31], L_B_wait")
            a(f"v_readfirstlane_b32 {sLOC}, v6")
            a.lab(l)
    tail_pv1(a, 1)
    a("s_setprio 0")
    stamp(a, "A_attn1")
    stamp(a, "A_attn1", True)
    attn_finish(a, "A", "s45", "s46", OS)
    a("s_waitcnt vmcnt(0)")
    a("s_barrier")
    a(f"s_cmp_lg_u32 {W}, 0")
    a("s_cbranch_scc1 L_A_end")
    a("s_lshr_b32 s22, s45, 1")
    a("s_lshl_b32 s22, s22, 10")
    a("s_lshl_b32 s23, s46, 5")
    a("s_add_u32 s22, s22, s23")
    a(f"s_add_u32 s22, s22, {FOA:#x}")
    setflag(a, IT, "s22", local=True)
    a.lab("L_A_end")
    stamp(a, "A_end")
    b = slow
    RET = "s_setpc_b64 s[30:31]"
    b.lab("L_defer")
    b(f"s_cmp_eq_u32 {sIT}, 0")
    b("s_cbranch_scc0 L_ret")
    b(f"buffer_store_dwordx4 {vr(RES,4)}, v{vL16}, {WS}, s100 offen sc1")
    b("s_add_u32 s100, s100, s101")
    b(f"buffer_store_dwordx4 {vr(RES+4,4)}, v{vL16}, {WS}, s100 offen sc1")
    b("s_cmp_lt_u32 s2, 180")
    b("s_cbranch_scc1 L_ret")
    b(f"s_cmp_ge_u32 {W}, 2")
    b("s_cbranch_scc1 L_ret")
    b("s_add_u32 s100, s100, s101")
    b(f"buffer_store_dwordx4 {vr(R,4)}, v{vL16}, {WS}, s100 offen sc1")
    b.lab("L_ret")
    b(RET)
    b.lab("L_A_warm")
    b(f"s_mul_i32 s24, {sI}, 20736")
    b(f"s_add_u32 s24, s24, {WOB_OFF:#x}")
    for q in range(3):
        b(f"buffer_load_dword v{100+q}, v11, {WS}, s24 offen")
        b("s_add_u32 s24, s24, 8192")
    b(f"s_cmp_eq_u32 {sIT}, 0")
    b("s_cbranch_scc0 L_ret")
    b(f"s_mul_i32 s24, {sI}, 29952")
    b(f"s_add_u32 s24, s24, {WA_OFF:#x}")
    for q in range(4):
        b(f"buffer_load_dword v{104+q}, v11, {WS}, s24 offen")
        b("s_add_u32 s24, s24, 8192")
    b(RET)
    b.lab("L_A_cs")
    census_issue(b, 44)
    for ks in range(36): cs_dot(b, ks)
    cs_pack(b, WEXT)
    b(RET)
    b.lab("L_A_pflag")
    b(f"s_cmp_eq_u32 {sIT}, 0")
    b("s_cbranch_scc0 L_ret")
    b("s_cmp_lt_u32 s2, 36")
    b("s_cbranch_scc1 L_ret")
    prep_flag(b)
    b(RET)
    b.lab("L_A_fetch")
    b("s_waitcnt vmcnt(0)")
    poll_test(b, 16, 12)
    b("s_cbranch_vccz L_A_fetch2")
    b("s_lshl_b32 s23, s47, 11")
    b(f"s_add_u32 s23, s23, {FKA:#x}")
    poll(b, IT, "s23", 16, vtmp=4, voff=11, setoff=False)
    b.lab("L_A_fetch2")
    b(f"s_mul_i32 s22, s47, {BLK}")
    b("s_add_u32 s22, s22, s33")
    b(f"s_mul_i32 m0, {W}, {BLK}")
    dma(b, IT, "s22", 19, 1024, 1024, half_last=True)
    b(f"s_cmp_ge_u32 {W}, 3")
    b("s_cbranch_scc1 L_defer")
    b(RET)
    b.lab("L_A_check0")
    b(f"s_cmp_eq_u32 {sIT}, 0")
    b("s_cbranch_scc0 L_ret")
    b(f"s_mov_b32 s22, {FPREP:#x}")
    poll_issue(b, WS, "s22", 256, 104, 11)
    census_issue(b, 108)
    b(RET)
    b.lab("L_A_check")
    b(f"s_cmp_eq_u32 {sIT}, 0")
    b("s_cbranch_scc0 L_ret")
    b("s_waitcnt vmcnt(0)")
    poll_test(b, 256, 104)
    b("s_cbranch_vccz L_A_check2")
    b(f"s_mov_b32 s22, {FPREP:#x}")
    poll(b, WS, "s22", 256, vtmp=4, voff=11, setoff=False)
    b.lab("L_A_check2")
    census_eval(b, 108, "s22")
    b("v_mov_b32 v4, s22")
    b(f"v_mov_b32 v5, {L_FLAG}")
    b("ds_write_b32 v5, v4 offset:4")
    b("s_waitcnt lgkmcnt(0)")
    b(RET)
    b.lab("L_A_touch4")
    rowaddr16(b, 6)
    b(f"buffer_load_dwordx2 {vr(RES,2)}, v6, {X0}, s22 offen")
    b(f"buffer_load_dwordx2 {vr(RES+2,2)}, v6, {X0}, s23 offen")
    half_addr(b)
    b(f"buffer_load_dwordx4 v[100:103], v{vL16}, {WS}, s26 offen sc1")
    b(f"v_lshrrev_b32 v4, 2, v{vL16}")
    b(f"buffer_load_dword v100, v4, {WS}, s27 offen sc1")
    b(RET)
    b.lab("L_A_touch0")
    b(f"s_cmp_eq_u32 {sIT}, 0")
    b("s_cbranch_scc0 L_ret")
    b(f"s_mov_b32 s22, {FPREP:#x}")
    poll_issue(b, WS, "s22", 256, 100, 11)
    b(RET)
    b.lab("L_A_touch")
    b(f"s_cmp_eq_u32 {sIT}, 0")
    b("s_cbranch_scc0 L_ret")
    b(f"s_lshl_b32 s22, {sI}, 6")
    b(f"s_lshl_b32 s23, {sX}, 3")
    b("s_add_u32 s22, s22, s23")
    b(f"s_add_u32 s22, s22, {W}")
    b("s_lshl_b32 s23, s22, 7")
    b(f"s_add_u32 s23, s23, {FKB:#x}")
    b(f"s_mul_i32 s22, s22, {KVT}")
    b(f"s_add_u32 s22, s22, {KVB:#x}")
    set_exec(b, (1 << 20) - 1)
    b(f"buffer_load_dword v100, v11, {IT}, s22 offen sc1")
    b("s_mov_b64 exec, 1")
    b(f"buffer_load_dword v100, off, {IT}, s23 sc1")
    b("s_mov_b64 exec, -1")
    b(f"s_mul_i32 s22, s45, {XT}")
    b(f"s_add_u32 s22, s22, {OS:#x}")
    b("s_lshl_b32 s23, s46, 10")
    b("s_add_u32 s23, s23, s22")
    b(f"buffer_load_dwordx4 v[100:103], v{vL16}, {WS}, s23 offen sc1")
    b("s_lshr_b32 s23, s46, 3")
    b("s_lshl_b32 s23, s23, 10")
    b("s_add_u32 s23, s23, s22")
    b(f"s_add_u32 s23, s23, {32*1024}")
    b(f"buffer_load_dwordx4 v[100:103], v{vL16}, {WS}, s23 offen sc1")
    b(f"s_cmp_ge_u32 {W}, 5")
    b("s_cbranch_scc1 L_ret")
    b(f"s_cmp_eq_u32 {W}, 4")
    b("s_cbranch_scc1 L_A_touch4")
    b(f"s_mul_i32 s22, s42, {XT}")
    b("s_lshl_b32 s23, s43, 6")
    b("s_add_u32 s22, s22, s23")
    b(f"v_mul_u32_u24 v5, 1152, v{vT}")
    b(f"v_lshl_add_u32 v5, v{vH}, 4, v5")
    b(f"buffer_load_dwordx4 {vr(RES,4)}, v5, {X0}, s22 offen")
    b(f"buffer_load_dwordx4 {vr(RES+4,4)}, v5, {X0}, s22 offen offset:32")
    b(f"s_mul_i32 s22, s42, {XT}")
    b("s_lshl_b32 s23, s43, 11")
    b("s_add_u32 s22, s22, s23")
    b(f"s_add_u32 s22, s22, {XS:#x}")
    b(f"buffer_load_dwordx4 v[100:103], v{vL16}, {WS}, s22 offen sc1")
    b(f"buffer_load_dwordx4 v[100:103], v{vL16}, {WS}, s22 offen offset:1024 sc1")
    b(f"s_mul_i32 s22, s42, {20*256}")
    b("s_lshl_b32 s23, s43, 8")
    b("s_add_u32 s22, s22, s23")
    b(f"s_add_u32 s22, s22, {STS:#x}")
    b(f"v_lshrrev_b32 v4, 2, v{vL16}")
    b(f"buffer_load_dword v100, v4, {WS}, s22 offen sc1")
    b(RET)
    b.lab("L_A_slow")
    for ps in range(2):
        b(f"v_mov_b32 v{vKa}, v{vL16}")
        b(f"v_lshlrev_b32 v{vKe}, 8, v{vH}")
        b(f"v_lshl_add_u32 v{vKe}, v{vT}, 3, v{vKe}")
        if ps == 0:
            b(f"v_mov_b32 v7, {f2u(float('-inf')):#x}")
        else:
            v_addr(b, 4608)
        b("s_mov_b32 s41, 0")
        b.lab(f"L_A_slow{ps}")
        b(f"ds_read_b64 {vr(KE,2)}, v{vKe} offset:4096")
        for u in range(4):
            b(f"ds_read_b128 {vr(KM,4)}, v{vKa} offset:{u*1024}")
            if ps:
                b(f"ds_read_b128 {vr(VA,4)}, v{vVa} offset:{u*VT}")
                b(f"ds_read_b128 {vr(VB,4)}, v{vVa} offset:{u*VT+608}")
            slow_qk(b, u, False)
            if ps: slow_pv(b)
            else: slow_max(b)
        b(f"v_add_u32 v{vKa}, {GRP}, v{vKa}")
        b(f"v_add_u32 v{vKe}, {GRP}, v{vKe}")
        b(f"v_add_u32 v{vVa}, {GRP}, v{vVa}")
        b("s_add_u32 s41, s41, 1")
        b("s_cmp_lt_u32 s41, 16")
        b(f"s_cbranch_scc1 L_A_slow{ps}")
        if ps == 0: slow_mid(b)
    slow_end(b, "A")

def half_sub(b):
    b.lab("L_half")
    q16(b, 6)
    for p in range(4):
        b(f"v_lshlrev_b32 v{ACC+2*p}, 16, v{RES+p}")
        b(f"v_and_b32 v{ACC+2*p+1}, 0xffff0000, v{RES+p}")
    n = 36; depth = DEPTH
    hk = 36 - WLATE + 6
    def rd(i):
        if i in (0, 12, 24): b("s_barrier")
        if i == hk: b("s_waitcnt vmcnt(0)")
        b(f"ds_read_b128 {vr(XB_+4*(i%depth),4)}, v6 offset:{(i>>1)*2048+(i&1)*256}")
    for i in range(depth - 1): rd(i)
    for i in range(n):
        if i + depth - 1 < n:
            rd(i + depth - 1); out = depth - 1
        else:
            out = n - 1 - i
        b(f"s_waitcnt lgkmcnt({out})")
        acc = vr(ACC + 4 * (i & 1), 4)
        b(f"v_mfma_f32_16x16x32_bf16 {acc}, {vr(R+8*(i>>1),4)}, {vr(XB_+4*(i%depth),4)}, {acc}")
    half_addr(b)
    pack(b, ACC, 4, RES)
    b("s_setpc_b64 s[30:31]")
    b.lab("L_half2")
    b(f"v_and_b32 v6, 0x3ff, v6")
    b(f"v_lshl_add_u32 v6, v{vH}, 3, v6")
    lstore(b, [f"buffer_store_dwordx2 {vr(RES,2)}, v6, {WS}, s26 offen",
               f"buffer_store_dwordx2 {vr(RES+2,2)}, v6, {WS}, s26 offen offset:256"])
    for p in range(2):
        for u in range(2):
            b(f"v_dot2_f32_bf16 v{8+2*u}, v{RES+2*u+p}, s60, {0 if p == 0 else 'v%d' % (8+2*u)}")
            b(f"v_dot2_f32_bf16 v{9+2*u}, v{RES+2*u+p}, v{RES+2*u+p}, {0 if p == 0 else 'v%d' % (9+2*u)}")
    b(f"v_lshrrev_b32 v4, 2, v{vL16}")
    b("s_nop 1")
    b("v_permlane32_swap_b32 v8, v9")
    b("v_permlane32_swap_b32 v10, v11")
    b("s_nop 1")
    b("v_add_f32 v8, v8, v9")
    b("v_add_f32 v10, v10, v11")
    b("s_nop 1")
    b("v_permlane16_swap_b32 v8, v10")
    b("s_nop 1")
    b("v_add_f32 v8, v8, v10")
    lstore(b, [f"buffer_store_dword v8, v4, {WS}, s27 offen"])
    b("s_setpc_b64 s[30:31]")
    b.lab("L_final4")
    rowaddr16(b, 6)
    b(f"buffer_store_dwordx2 {vr(RES,2)}, v6, {AUX}, s22 offen")
    b(f"buffer_store_dwordx2 {vr(RES+2,2)}, v6, {AUX}, s23 offen")
    b("s_branch L_fin2")

def gen_out(a, isB):
    tag = "OB" if isB else "OA"
    OO = OS
    a(f"s_cmp_lt_u32 {W}, 5")
    a(f"s_cbranch_scc1 L_{tag}_c")
    a(f"s_cmp_eq_u32 {W}, 7")
    a(f"s_cbranch_scc1 L_{tag}_ld")
    if not isB:
        a(f"s_sub_u32 s22, {W}, 5")
        a(f"s_mul_i32 s23, s22, {WCT}")
        a(f"s_add_u32 s23, s23, {L_WB}")
        a(f"v_add_u32 v4, s23, v{vL16}")
        for ks in range(WBE):
            a(f"ds_write_b128 v4, {vr(R+4*ks,4)} offset:{ks*1024}")
        for _ in range(3): a("s_barrier")
        for ks in range(WBE, 36):
            a(f"ds_write_b128 v4, {vr(R+4*ks,4)} offset:{ks*1024}")
        a(f"s_cmp_eq_u32 {sIT}, 0")
        a("s_cbranch_scc0 L_OA_cs")
        for ks in range(36):
            cs_dot(a, ks)
        cs_pack(a, RES)
        a.lab("L_OA_cs")
        a("s_lshl_b32 s22, s22, 8")
        a(f"s_add_u32 s22, s22, {L_WBX}")
        a(f"v_lshrrev_b32 v4, 2, v{vL16}")
        a("v_add_u32 v4, s22, v4")
        a(f"ds_write_b32 v4, v{RES}")
        a(f"v_mov_b32 v4, {L_FLAG+16}")
        for r in range(4): a(f"v_mov_b32 v{8+r}, 0")
        a("ds_write_b128 v4, v[8:11]")
        a("ds_write_b128 v4, v[8:11] offset:16")
        a("s_waitcnt lgkmcnt(0)")
        a(f"s_branch L_{tag}_e")
    else:
        a(f"s_cmp_eq_u32 {sIT}, 0")
        a(f"s_cbranch_scc0 L_{tag}_idle")
        wa_role(a, f"L_{tag}_idle")
        a(f"s_mul_i32 s22, s22, {WCT}")
        a(f"s_add_u32 s22, s22, {WA_OFF:#x}")
        if WAE: r_loads(a, WS, "s22", 0, WAE)
        for n in range(3):
            a("s_barrier")
        if WAE < 36: r_loads(a, WS, "s22", WAE, 36)
        a(f"s_branch L_{tag}_e")
    a.lab(f"L_{tag}_idle")
    for n in range(3):
        a("s_barrier")
    a(f"s_branch L_{tag}_e")
    a.lab(f"L_{tag}_ld")
    if not isB:
        a("s_lshr_b32 s23, s42, 1")
        a("s_lshl_b32 s23, s23, 10")
        a(f"s_add_u32 s23, s23, {FOA:#x}")
        poll(a, IT, "s23", 8)
    else:
        a(f"s_lshl_b32 s23, {sX}, 12")
        a(f"s_add_u32 s23, s23, {FOB:#x}")
        poll(a, IT, "s23", 32)
    stamp(a, tag + "_flag")
    a(f"s_mul_i32 s22, s42, {XT}")
    a(f"s_add_u32 s22, s22, {OO:#x}")
    a("s_mov_b32 m0, 0")
    dma(a, WS, "s22", 36, 1024, 1024)
    for n in (24, 12, 0):
        a(f"s_waitcnt vmcnt({n})")
        a("s_barrier")
    stamp(a, tag + "_x")
    if isB:
        a(f"s_cmp_eq_u32 {sIT}, 0")
        a(f"s_cbranch_scc0 L_{tag}_e")
        wa_role(a, f"L_{tag}_e")
        wa_issue(a)
    a(f"s_branch L_{tag}_e")
    a.lab(f"L_{tag}_c")
    a(f"s_cmp_eq_u32 {W}, 4")
    a(f"s_cbranch_scc0 L_{tag}_c2")
    a("s_call_b64 s[30:31], L_half")
    if isB:
        a(f"s_cmp_eq_u32 {sIT}, 1")
        a("s_cbranch_scc1 L_final4")
    a("s_call_b64 s[30:31], L_half2")
    if isB:
        wa_role(a, f"L_{tag}_w0")
        wa_issue(a)
        a("s_waitcnt vmcnt(36)")
        a(f"s_branch L_{tag}_e")
    else:
        a(f"s_branch L_{tag}_w0")
    a.lab(f"L_{tag}_c2")
    for p in range(8):
        a(f"v_lshlrev_b32 v{ACC+2*p}, 16, v{RES+p}")
        a(f"v_and_b32 v{ACC+2*p+1}, 0xffff0000, v{RES+p}")
    hb = lambda: a("s_barrier")
    gemm_stage(a, [vL16], 0, 36, False, False, hooks={0: hb, 12: hb, 24: hb, (36 - WLATE + 6 if WLATE > 6 else 35): (lambda: a("s_waitcnt vmcnt(0)"))})
    x_addr(a, "s42", "s43", XS, STS)
    a("s_nop 3")
    pack(a, ACC, 8, RES)
    if isB:
        a(f"s_cmp_eq_u32 {sIT}, 1")
        a("s_cbranch_scc1 L_final")
        store_x_and_stats(a, RES, WS)
    else:
        store_x_and_stats(a, RES, WS)
    a.lab(f"L_{tag}_w0")
    a("s_waitcnt vmcnt(0)")
    a.lab(f"L_{tag}_e")
    if isB:
        a(f"s_cmp_eq_u32 {sIT}, 1")
        a("s_cbranch_scc1 L_fin2")
    a("s_barrier")
    a(f"s_cmp_lg_u32 {W}, 0")
    a(f"s_cbranch_scc1 L_{tag}_nf")
    a("s_lshl_b32 s22, s42, 9")
    a(f"s_lshr_b32 s23, {sI}, 3")
    a("s_lshl_b32 s23, s23, 7")
    a("s_add_u32 s22, s22, s23")
    a(f"s_add_u32 s22, s22, {(ITS + FXA) if isB else FXB:#x}")
    setflag(a, IT, "s22", local=True)
    a.lab(f"L_{tag}_nf")
    stamp(a, tag + "_end")

def gen_phb(a, slow):
    a(f"s_add_u32 s48, {W}, 4")
    a(f"s_sub_u32 s22, 7, {W}")
    a(f"s_cmp_lt_u32 {W}, 4")
    a("s_cselect_b32 s48, s48, s22")
    a(f"s_lshl_b32 s45, {sX}, 3")
    a("s_add_u32 s45, s45, s48")
    a(f"s_mov_b32 s46, {sI}")
    a("s_setprio 1")
    a(f"s_cmp_lt_u32 {W}, 4")
    a("s_cbranch_scc0 L_B_pr")
    a("s_setprio 2")
    a.lab("L_B_pr")
    BX = 104
    MK = 72
    aVG, aVL, aEX, aFAC = 4, 5, 11, 13
    a("s_add_u32 s28, s48, 8")
    a(f"s_mul_i32 s28, s28, {KVT}")
    a(f"s_add_u32 s28, s28, {L_KVB}")
    a("s_lshl_b32 s49, s46, 6")
    a("s_add_u32 s49, s49, s45")
    a(f"s_mul_i32 s29, s49, {KVT}")
    a(f"s_add_u32 s29, s29, {KVB:#x}")
    a("s_lshl_b32 s49, s49, 7")
    a(f"s_add_u32 s49, s49, {FKB:#x}")
    a(f"s_lshl_b32 s27, {W}, 8")
    a(f"s_add_u32 s27, s27, {L_MISC}")
    a("s_add_u32 s47, s48, 1")
    a(f"s_cmp_eq_u32 {sX}, 0")
    a("s_cselect_b32 s47, s47, 9")
    a(f"s_mul_i32 s41, s43, {XT}")
    a(f"s_add_u32 s41, s41, {WOB_OFF:#x}")
    a(f"s_cmp_lt_u32 {W}, 5")
    a(f"s_cselect_b32 s41, s41, {OOB:#x}")
    a(f"s_sub_u32 s24, s28, {8*KVT}")
    a(f"v_add_u32 v{vKa}, s24, v{vL16}")
    a(f"v_lshl_add_u32 v{vKe}, v{vT}, 2, s24")
    a("s_add_u32 s24, s24, 1152")
    v_addr(a, "s24")
    a(f"v_mov_b32 v11, {NEGBIG:#x}")
    mask_init(a, MK, True)
    a("s_lshl_b32 s23, s45, 9")
    a(f"s_add_u32 s23, s23, {FXB:#x}")
    poll(a, IT, "s23", 4)
    stamp(a, "B_xflag")
    a(f"s_and_b32 s24, {W}, 3")
    a("s_lshl_b32 s24, s24, 2")
    a(f"s_add_u32 s50, s24, {L_FLAG+32}")
    a(f"s_cmp_lt_u32 {W}, 4")
    a("s_cbranch_scc1 L_B_x")
    a("s_mov_b32 s51, 1")
    a("s_call_b64 s[30:31], L_B_wait")
    a.lab("L_B_x")
    stats_load(a, STR, "s45", STS)
    a(f"s_mul_i32 s22, s45, {XT}")
    a(f"s_add_u32 s22, s22, {XS:#x}")
    PF = BPF
    r_loads(a, WS, "s22", 0, PF, LD)
    a(f"v_add_u32 v6, {L_WB}, v{vL16}")
    a(f"v_add_u32 v7, {L_WB+WCT}, v{vL16}")
    a("s_waitcnt lgkmcnt(0)")
    items = [(ks, t) for ks in range(36) for t in range(2)]
    n = len(items); depth = 4
    def rd(i):
        ks, t = items[i]
        a(f"ds_read_b128 {vr(XB_+4*(i%depth),4)}, v{6+t} offset:{ks*1024}")
    for i in range(depth - 1): rd(i)
    for i in range(n):
        ks, t = items[i]
        if i == 0:
            main_a = a; a = A()
            stats_sum(a, STR)
            stats_compute(a, STR, BX, RSTD)
            a(f"v_lshrrev_b32 v4, 2, v{vL16}")
            a(f"v_add_u32 v4, {L_WBX}, v4")
            a(f"ds_read_b32 v106, v4")
            a(f"ds_read_b32 v108, v4 offset:256")
            a("v_mov_b32 v107, 0")
            a("v_mov_b32 v109, 0")
            a(f"v_lshl_add_u32 v4, v{vT}, 2, s27")
            a(f"ds_write_b32 v4, v{RSTD}")
            a(f"v_lshl_add_u32 v4, v{vH}, 4, s27")
            a("s_waitcnt lgkmcnt(0)")
            for q in range(4):
                a(f"ds_read_b128 {vr(STR+4*q,4)}, v4 offset:{32*q}")
            a(f"v_mul_u32_u24 v{aVG}, 304, v{vH}")
            a(f"v_lshl_add_u32 v{aVG}, v{vT}, 4, v{aVG}")
            a(f"v_add_u32 v{aVL}, s28, v{aVG}")
            a(f"v_cmp_ge_u32 vcc, 18, v{vT}")
            a(f"v_mov_b32 v{aEX}, {OOB:#x}")
            a(f"v_lshrrev_b32 v{aFAC}, 1, v{vT}")
            a(f"v_cndmask_b32 v{aVG}, v{aEX}, v{aVG}, vcc")
            a(f"v_mov_b32 v{aEX}, {LOOB:#x}")
            a(f"v_cndmask_b32 v{aVL}, v{aEX}, v{aVL}, vcc")
            a(f"v_cmp_eq_u32 vcc, 12, v{aFAC}")
            a(f"v_cmp_eq_u32 s[62:63], 13, v{aFAC}")
            a("s_add_u32 s24, s27, 128")
            a("s_add_u32 s25, s28, 1024")
            a(f"v_mov_b32 v{aFAC}, s24")
            a(f"v_cndmask_b32 v{aEX}, v{aEX}, v{aFAC}, vcc")
            a(f"v_mov_b32 v{aFAC}, s25")
            a(f"v_cndmask_b32 v{aEX}, v{aEX}, v{aFAC}, s[62:63]")
            a(f"v_and_b32 v{aFAC}, 1, v{vT}")
            a(f"v_lshl_add_u32 v{aEX}, v{aFAC}, 1, v{aEX}")
            a(f"v_lshl_add_u32 v{aEX}, v{vH}, 4, v{aEX}")
            a(f"v_mov_b32 v{aFAC}, {f2u(QSCALE):#x}")
            a(f"v_cndmask_b32 v{aFAC}, 1.0, v{aFAC}, vcc")
            a("s_waitcnt lgkmcnt(0)")
            for r in range(16):
                a(f"v_mul_f32 v{STR+r}, v{aFAC}, v{STR+r}")
            a(f"v_mul_f32 v{RSTD+1}, {f2u(QSCALE):#x}, v{RSTD}")
            a(f"v_mfma_f32_32x32x8_bf16 {vr(ACC,16)}, v[106:107], {vr(BX,2)}, {vr(ACC,16)}")
            a(f"v_mfma_f32_32x32x8_bf16 {vr(ACC+16,16)}, {vr(BX,2)}, v[108:109], {vr(ACC+16,16)}")
            side = list(a.l); a = main_a
        if i + depth - 1 < n:
            rd(i + depth - 1); out = depth - 1
        else:
            out = n - 1 - i
        if t == 0:
            a(f"s_waitcnt vmcnt({min(35, ks + PF - 1) - ks}) lgkmcnt({out})")
        else:
            a(f"s_waitcnt lgkmcnt({out})")
        acc = vr(ACC + 16 * t, 16); x = vr(R + 4 * ks, 4); w = vr(XB_ + 4 * (i % depth), 4)
        c = "0" if ks == 0 else acc
        a(f"v_mfma_f32_32x32x16_bf16 {acc}, {x}, {w}, {c}" if t else f"v_mfma_f32_32x32x16_bf16 {acc}, {w}, {x}, {c}")
        if t == 0 and ks + PF < 36:
            r_loads(a, WS, "s22", ks + PF, ks + PF + 1, LD)
        if i >= 2:
            for _ in range(4):
                if side: a.l.append(side.pop(0))
        if t == 0 and ks == LSTART:
            a("v_mov_b32 v15, s50" if not STAMPS else "v_mov_b32 v111, s50")
            a(f"ds_write_b32 v15, v{vNONCE}" if not STAMPS else f"ds_write_b32 v111, v{vNONCE}")
            if STAMPS: a("v_mov_b32 v111, 0")
    assert not side
    stamp(a, "B_gemm")
    V1 = ACC + 16
    a(f"v_add_u32 v6, s28, v{vL16}")
    a(f"v_lshlrev_b32 v7, 30, v{vH}")
    a(f"v_lshl_add_u32 v7, v{vT}, 2, v7")
    a(f"v_lshl_add_u32 v56, v{vT}, 2, s24")
    a(f"v_lshl_add_u32 v57, v{vT}, 2, s25")
    a(f"s_and_b32 s24, {W}, 4")
    a(f"s_add_u32 s24, s24, {L_FLAG+16}")
    a("v_mov_b32 v58, s24")
    a("v_mov_b32 v59, 1")
    a("s_mov_b32 s24, 0x40000")
    a("s_mov_b32 s25, 0x40000")
    a("s_nop 0")
    for r in range(8, 16):
        a(f"v_mul_f32 v{ACC+r}, v{RSTD}, v{ACC+r}")
    for p in range(4):
        a(f"v_cvt_pk_bf16_f32 v{KM+p-24}, v{ACC+8+2*p}, v{ACC+9+2*p}")
    a(f"ds_write_b128 v6, v[60:63]")
    a(f"buffer_store_dwordx4 v[60:63], v{vL16}, {IT}, s29 offen sc1")
    for r in range(16):
        a(f"v_mul_f32 v{V1+r}, v{STR+r}, v{V1+r}")
        if r % 2 == 1:
            a(f"v_cvt_pk_bf16_f32 v{V1+r//2}, v{V1+r-1}, v{V1+r}")
    for r in range(16):
        op = "ds_write_b16" if r % 2 == 0 else "ds_write_b16_d16_hi"
        a(f"{op} v{aEX}, v{V1+r//2} offset:{((r&3)+8*(r>>2))*4}")
    a("s_mov_b64 exec, s[24:25]")
    for p in range(8):
        a(f"v_mov_b32 v{V1+p}, s60")
    a("s_mov_b64 exec, -1")
    a("ds_read_b32 v64, v57")
    a("ds_read_b32 v65, v56")
    a(f"ds_write_b128 v{aVL}, {vr(V1,4)} offset:1152")
    a(f"ds_write_b128 v{aVL}, {vr(V1+4,4)} offset:{1152+608}")
    a(f"buffer_store_dwordx4 {vr(V1,4)}, v{aVG}, {IT}, s29 offen offset:1152 sc1")
    a(f"buffer_store_dwordx4 {vr(V1+4,4)}, v{aVG}, {IT}, s29 offen offset:{1152+608} sc1")
    for r in range(8):
        a(f"v_mul_f32 v{ACC+r}, v{RSTD+1}, v{ACC+r}")
    pack(a, ACC, 4)
    a(f"v_cmp_eq_u32 vcc, 0, v{vH}")
    a(f"v_mov_b32 v{QE+1}, 0")
    a(f"v_mov_b32 v{KE+1}, 0")
    a(f"v_mov_b32 v11, {NEGBIG:#x}")
    wodd(a)
    a("s_waitcnt lgkmcnt(0)")
    a(f"buffer_store_dword v64, v7, {IT}, s29 offen offset:1024 sc1")
    a(f"v_lshlrev_b32 v66, 3, v{vL16}")
    a(f"v_mov_b32 v109, v{vNONCE}")
    a("s_sub_u32 s22, s49, 1024")
    a("s_mov_b64 exec, 15")
    a(f"buffer_load_dword v109, v66, {IT}, s22 offen sc1")
    a("s_mov_b32 s36, 0")
    a("s_mov_b64 exec, 1")
    a("ds_add_u32 v58, v59")
    a("s_mov_b64 exec, -1")
    a(f"v_cndmask_b32 v{QE}, 0, v65, vcc")
    a(f"v_mov_b32 v{KE}, v64")
    a(f"v_mfma_f32_32x32x16_bf16 {vr(S_[0],16)}, v[60:63], {vr(QM,4)}, {vr(MK,16)}")
    a("s_nop 0")
    a(f"v_mfma_f32_32x32x8_bf16 {vr(S_[0],16)}, {vr(KE,2)}, {vr(QE,2)}, {vr(S_[0],16)}")
    stamp(a, "B_attn0")
    to = lambda i: (8 - i) * KVT
    def wait(word, val):
        a(f"s_mov_b32 s50, {L_FLAG+16+4*word}")
        a(f"s_mov_b32 s51, {val}")
        a("s_call_b64 s[30:31], L_B_wait")
    def wait_if(tile, word, val):
        l = a.nl("Lw")
        a(f"s_cmp_eq_u32 s48, {tile}")
        a(f"s_cbranch_scc0 {l}")
        wait(word, val)
        a.lab(l)
    def first_qk(k0, masked):
        a(f"ds_read_b128 {vr(KM,4)}, v{k0[0]} offset:{k0[2]}")
        a(f"ds_read_b32 v{KE}, v{k0[1]} offset:{k0[2]+1024}")
        a("s_waitcnt lgkmcnt(0)")
        a(f"v_mfma_f32_32x32x16_bf16 {vr(S_[0],16)}, {vr(KM,4)}, {vr(QM,4)}, {vr(S_[0],16) if masked else 0}")
        a(f"v_mfma_f32_32x32x8_bf16 {vr(S_[0],16)}, {vr(KE,2)}, {vr(QE,2)}, {vr(S_[0],16)}")
    a(f"s_cmp_eq_u32 {sX}, 0")
    a("s_cbranch_scc1 L_B_pub")
    a(f"s_cmp_ge_u32 {W}, 4")
    a("s_cbranch_scc1 L_B_L")
    a.lab("L_B_pub")
    a("s_waitcnt vmcnt(0)")
    stamp(a, "B_ack")
    setflag(a, IT, "s49")
    a(f"s_cmp_eq_u32 {sX}, 0")
    a("s_cbranch_scc1 L_B_L0")
    a("s_setprio 0")
    for st in (1, 2, 3):
        a(f"s_cmp_ge_u32 s48, {st+4}")
        a(f"s_mov_b32 s22, {to(st)-4*KVT}")
        a(f"s_cselect_b32 s22, {to(st)}, s22")
        for q, r in enumerate((vKa, vKe, vVa)):
            a(f"v_add_u32 v{100+3*(st-1)+q}, s22, v{r}")
    a(f"s_cmp_eq_u32 {W}, 0")
    a("s_cbranch_scc0 L_B_E1")
    a("s_mov_b32 s50, 2")
    a("s_call_b64 s[30:31], L_B_fetch")
    a("s_call_b64 s[30:31], L_B_fetched")
    stamp(a, "B_rem")
    a.lab("L_B_E1")
    if WEARLY: r_loads(a, WS, "s41", 0, WEARLY, wo=True)
    WN = 36 - WLATE
    wsp = [WEARLY + (WN - WEARLY) * q // 8 for q in range(9)]
    def wl(k0, k1):
        ex = []
        for ks in range(k0, k1):
            if ks == k0 or ks % 4 == 0: ex.append(f"s_add_u32 s61, s41, {(ks//4)*4096}")
            ex.append(f"buffer_load_dwordx4 {vr(R+4*ks,4)}, v{wreg(ks)}, {WS}, s61 offen offset:{(ks%4)*1024}")
        return ex
    def wlg(cond, k0, k1):
        l = a.nl("Lg")
        return [cond, f"s_cbranch_scc0 {l}"] + wl(k0, k1) + [f"{l}:"]
    wait(0, 4)
    K = lambda st: (vKa, to(0)) if st == 0 else ((vKa, 0) if st == 4 else (100 + 3 * (st - 1), 0))
    E = lambda st: (vKe, to(0) + 1024) if st == 0 else ((vKe, 1024) if st == 4 else (101 + 3 * (st - 1), 1024))
    Vv = lambda st, o: (vVa, to(0) + o) if st == 0 else ((vVa, o) if st == 4 else (102 + 3 * (st - 1), o))
    a(f"ds_read_b128 {vr(KM,4)}, v{K(1)[0]} offset:{K(1)[1]}")
    a(f"ds_read_b32 v{KE}, v{E(1)[0]} offset:{E(1)[1]}")
    a(f"ds_read_b128 {vr(VA,4)}, v{vVa} offset:{to(0)}")
    for j in range(5):
        if j <= 2: wait_if(5 + j, 2, 1)
        body(a, j & 1, rdKM=K(j + 2) if j + 2 <= 4 else None, rdKE=E(j + 2) if j + 2 <= 4 else None,
             rdVa=Vv(j + 1, 0) if j + 1 <= 4 else None, rdVb=Vv(j, 608), u=0, qk=(j < 4), pv1=(j > 0),
             cinit=((lambda n: mask_init(a, n, False)) if j == 3 else None), ke64=False, pvwait=(1 if j == 4 else 2),
             ozero=(j == 0), extra=wl(wsp[j], wsp[j + 1]))
    tail_pv1(a, 0)
    a("s_sub_u32 s22, 8, s48")
    a(f"s_mul_i32 s22, s22, {KVT}")
    for q, r in enumerate((vKa, vKe, vVa)):
        a(f"v_add_u32 v{100+q}, s22, v{r}")
    for r in range(16):
        a(f"v_mov_b32 v{S_[0]+r}, 0")
    a("s_mov_b32 s40, 4")
    wait(1, 4)
    a.lab("L_B_run2")
    tb = lambda i: i * KVT
    first_qk((100, 101, tb(0)), True)
    a(f"ds_read_b128 {vr(KM,4)}, v100 offset:{tb(1)}")
    a(f"ds_read_b32 v{KE}, v101 offset:{tb(1)+1024}")
    a(f"ds_read_b128 {vr(VA,4)}, v102 offset:{tb(0)}")
    a("s_nop 8")
    for j in range(4):
        body(a, j & 1, rdKM=(100, tb(j + 2)) if j + 2 <= 3 else None, rdKE=(101, tb(j + 2) + 1024) if j + 2 <= 3 else None,
             rdVa=(102, tb(j + 1)) if j + 1 <= 3 else None, rdVb=(102, tb(j) + 608), u=0, qk=(j < 3), pv1=(j > 0),
             ke64=False, pvwait=(1 if j == 3 else 2), extra=(wlg(f"s_cmp_lt_u32 {W}, 4", wsp[5 + j], wsp[6 + j]) if j < 3 else ()))
        if j < 3:
            a(f"s_cmp_eq_u32 s40, {j+1}")
            a(f"s_cbranch_scc1 L_B_t{j&1}")
    a("s_branch L_B_t1")
    a.lab("L_B_L0")
    a(f"s_cmp_lt_u32 {W}, 4")
    a("s_cbranch_scc1 L_B_L0b")
    a(f"s_cmp_lt_u32 {W}, 5")
    a("s_cbranch_scc0 L_B_L0b")
    r_loads(a, WS, "s41", 0, WN, wo=True)
    a.lab("L_B_L0b")
    wait(0, 4)
    a("s_mov_b32 s40, s47")
    a("s_mov_b32 s48, 99")
    a("s_branch L_B_L1")
    a.lab("L_B_L")
    a("s_add_u32 s40, s48, 5")
    a(f"v_mov_b32 v5, {L_FLAG+16}")
    a("ds_read_b128 v[100:103], v5")
    a("s_waitcnt lgkmcnt(0)")
    a("v_cmp_gt_u32 vcc, 4, v101")
    a("v_cmp_gt_u32 s[62:63], 1, v102")
    a("s_or_b64 vcc, vcc, s[62:63]")
    a("s_mov_b32 s50, 1")
    a("s_cbranch_vccz L_B_L4")
    a("s_waitcnt vmcnt(0)")
    setflag(a, IT, "s49")
    a("s_call_b64 s[30:31], L_B_try")
    wait(2, 1)
    a.lab("L_B_L1")
    wait(1, 4)
    a("s_mov_b32 s50, 0")
    a.lab("L_B_L4")
    a(f"s_cmp_eq_u32 {sX}, 0")
    a("s_cselect_b32 s51, 4, 5")
    a(f"s_cmp_lt_u32 {W}, s51")
    a("s_cselect_b32 s51, 77, 0")
    a(f"ds_read_b128 {vr(KM,4)}, v{vKa} offset:{to(1)}")
    a(f"ds_read_b32 v{KE}, v{vKe} offset:{to(1)+1024}")
    a(f"ds_read_b128 {vr(VA,4)}, v{vVa} offset:{to(0)}")
    for j in range(8):
        if j == 1:
            l = a.nl("Lf")
            a("s_cmp_eq_u32 s50, 1")
            a(f"s_cbranch_scc0 {l}")
            a("s_waitcnt vmcnt(0)")
            stamp(a, "B_ack")
            setflag(a, IT, "s49")
            a("s_call_b64 s[30:31], L_B_try")
            a.lab(l)
        if j == 2:
            l = a.nl("Lf")
            a("s_cmp_eq_u32 s48, 0")
            a(f"s_cbranch_scc0 {l}")
            a("s_mov_b32 s50, 3")
            a("s_call_b64 s[30:31], L_B_fetch")
            a.lab(l)
        body(a, j & 1, rdKM=to(j + 2) if j + 2 <= 7 else None, rdKE=to(j + 2) + 1024 if j + 2 <= 7 else None,
             rdVa=to(j + 1) if j + 1 <= 7 else None, rdVb=to(j) + 608, u=0, qk=(j < 7), pv1=(j > 0),
             ke64=False, pvwait=(1 if j == 7 else 2), ozero=(j == 0),
             extra=(wlg("s_cmp_eq_u32 s51, 77", WN * (j - 1) // 4, WN * j // 4) if 1 <= j < 5 else ()))
        if j < 7:
            a(f"s_cmp_eq_u32 s40, {j+1}")
            a(f"s_cbranch_scc1 L_B_u{j&1}")
    a.lab("L_B_u1")
    tail_pv1(a, 1)
    a.lab("L_B_L2")
    a(f"s_cmp_eq_u32 {sX}, 0")
    a("s_cbranch_scc1 L_B_done")
    for q, r in enumerate((vKa, vKe, vVa)):
        a(f"v_mov_b32 v{100+q}, v{r}")
    a("s_sub_u32 s40, 4, s48")
    a("s_cmp_eq_u32 s48, 0")
    a("s_cbranch_scc0 L_B_L3")
    a("s_call_b64 s[30:31], L_B_fetched")
    stamp(a, "B_rem2")
    a.lab("L_B_L3")
    a("s_nop 7")
    mask_init(a, S_[0], False)
    wait(3, 1)
    a("s_branch L_B_run2")
    a.lab("L_B_t0")
    tail_pv1(a, 0)
    a.lab("L_B_done")
    stamp(a, "B_attn1")
    attn_finish(a, "B", "s45", "s46", OS)
    a(f"s_cmp_lt_u32 {W}, 5")
    a("s_cbranch_scc0 L_B_nl")
    r_loads(a, WS, "s41", WN, 36, wo=True)
    a(f"s_waitcnt vmcnt({WLATE})")
    a("s_branch L_B_nl2")
    a.lab("L_B_nl")
    a("s_waitcnt vmcnt(0)")
    a.lab("L_B_nl2")
    a("s_barrier")
    a(f"s_cmp_lg_u32 {W}, 0")
    a("s_cbranch_scc1 L_B_end")
    a(f"s_lshl_b32 s22, {sX}, 12")
    a("s_lshl_b32 s23, s46, 7")
    a("s_add_u32 s22, s22, s23")
    a(f"s_add_u32 s22, s22, {FOB:#x}")
    setflag(a, IT, "s22", local=True)
    a.lab("L_B_end")
    a("s_setprio 0")
    stamp(a, "B_end")
    b = slow
    b.lab("L_B_t1")
    tail_pv1(b, 1)
    b("s_branch L_B_done")
    b.lab("L_B_u0")
    tail_pv1(b, 0)
    b("s_branch L_B_L2")
    RET = "s_setpc_b64 s[30:31]"
    b.lab("L_B_wait")
    b("v_mov_b32 v5, s50")
    b("s_mov_b32 s21, 0")
    b.lab("L_B_spin")
    b("ds_read_b32 v6, v5")
    b("s_add_u32 s21, s21, 1")
    b("s_cmp_gt_u32 s21, 0x400000")
    b("s_waitcnt lgkmcnt(0)")
    b("s_cbranch_scc1 L_B_spun")
    b("v_cmp_gt_u32 vcc, s51, v6")
    b("s_cbranch_vccz L_B_spun")
    b("s_sleep 1")
    b("s_branch L_B_spin")
    b.lab("L_B_spun")
    b(RET)
    b.lab("L_B_try")
    b("s_cmp_eq_u32 s48, 0")
    b("s_cbranch_scc0 L_ret")
    poll_test(b, 4, 109)
    b("s_cbranch_vccnz L_ret")
    b("s_branch L_B_fetch2")
    b.lab("L_B_fetch")
    b("s_cmp_eq_u32 s36, 1")
    b("s_cbranch_scc1 L_ret")
    poll_test(b, 4, 109)
    b("s_cbranch_vccz L_B_fetch2")
    b("s_sub_u32 s22, s49, 1024")
    poll(b, IT, "s22", 4)
    b.lab("L_B_fetch2")
    b("s_mov_b32 s36, 1")
    stamp(b, "B_poll")
    b(f"s_sub_u32 s22, s29, {8*KVT}")
    b(f"s_mul_i32 s23, s48, {KVT}")
    b(f"s_add_u32 m0, s23, {L_KVB}")
    dma(b, IT, "s22", 10, 1024, 1024, last_mask=0xffff)
    b(RET)
    b.lab("L_B_fetched")
    b("s_lshl_b32 s50, s50, 2")
    b(f"s_add_u32 s50, s50, {L_FLAG+16}")
    b("v_mov_b32 v5, s50")
    b("v_mov_b32 v6, 1")
    b("s_waitcnt vmcnt(0)")
    b("ds_write_b32 v5, v6")
    b("s_waitcnt lgkmcnt(0)")
    b(RET)
    b.lab("L_B_slow")
    for ps in range(2):
        if ps == 0:
            b(f"v_mov_b32 v7, {f2u(float('-inf')):#x}")
        for j in range(9):
            b(f"ds_read_b128 {vr(KM,4)}, v{vKa} offset:{to(j)}")
            b(f"ds_read_b32 v{KE}, v{vKe} offset:{to(j)+1024}")
            if ps:
                b(f"ds_read_b128 {vr(VA,4)}, v{vVa} offset:{to(j)}")
                b(f"ds_read_b128 {vr(VB,4)}, v{vVa} offset:{to(j)+608}")
            if j in (0, 8): mask_init(b, S_[0], j == 0)
            slow_qk(b, 0, j in (0, 8))
            if ps: slow_pv(b)
            else: slow_max(b)
            if j < 8:
                b(f"s_cmp_eq_u32 s47, {j+1}")
                b(f"s_cbranch_scc1 L_B_slowd{ps}")
        b.lab(f"L_B_slowd{ps}")
        if ps == 0: slow_mid(b)
    slow_end(b, "B")

def main(out):
    ref = open(f"cdna_kernels/{NAME}.s.ref").read().splitlines()
    hdr = [l for l in ref if l.startswith(";") and "@launch" not in l]
    a = A(); slow = A(); slow.n = 100000
    gen_start(a)
    gen_prep(a)
    gen_pha(a, slow)
    half_sub(slow)
    gen_out(a, False)
    gen_phb(a, slow)
    gen_out(a, True)
    a(f"s_mov_b32 {sIT}, 1")
    a(f"s_mov_b32 s33, {KVA2-ITS:#x}")
    a(f"s_add_u32 s16, s16, {ITS:#x}")
    a("s_addc_u32 s17, s17, 0")
    a("s_branch L_it")
    a.lab("L_final")
    a(f"v_mul_u32_u24 v4, 1152, v{vT}")
    a(f"v_lshl_add_u32 v4, v{vH}, 4, v4")
    a(f"s_mul_i32 s24, s42, {32*1152}")
    a("s_lshl_b32 s25, s43, 6")
    a("s_add_u32 s24, s24, s25")
    for q in range(2):
        a(f"buffer_store_dwordx4 {vr(RES+4*q,4)}, v4, {AUX}, s24 offen offset:{32*q}")
    a.lab("L_fin2")
    if STAMPS:
        a("s_waitcnt vmcnt(0)")
        stamp(a, "end")
        a(f"s_lshl_b32 s22, {W}, 8")
        a(f"v_lshrrev_b32 v4, 2, v{vL16}")
        a("v_add_u32 v4, s22, v4")
        a("s_lshl_b32 s22, s2, 11")
        a(f"s_add_u32 s22, s22, {DBG_OFF:#x}")
        a(f"buffer_store_dword v{vSTAMP}, v4, {WS}, s22 offen")
        if DBGOUT:
            sel = [(0, "prep_done"), (0, "A_attn0"), (0, "A_end"), (0, "OA_end"), (0, "B_end"), (0, "OB_end"), (1, "A_attn0"), (1, "A_n4b"), (1, "A_attn1"), (1, "OA_end"), (1, "B_end"), (1, "end")]
            a(f"s_or_b32 s22, s2, {W}")
            a("s_cmp_eq_u32 s22, 0")
            a("s_cbranch_scc0 L_end")
            a(f"v_readlane_b32 s23, v{vSTAMP}, 0")
            a("s_mov_b64 exec, 1")
            for q, (it, nm) in enumerate(sel):
                a(f"v_readlane_b32 s22, v{vSTAMP}, {32*it + STN.index(nm)}")
                a("s_nop 3")
                a("s_sub_u32 s22, s22, s23")
                a("v_mov_b32 v4, s22")
                a(f"buffer_store_dword v4, off, s[56:59], 0 offset:{4*(q+1)}")
                a("s_waitcnt vmcnt(0)")
            a(f"v_readlane_b32 s22, v{vSTAMP}, {32 + STN.index('c:A_attn1')}")
            a(f"v_readlane_b32 s23, v{vSTAMP}, {32 + STN.index('c:A_n4b')}")
            a("s_nop 3")
            a("s_sub_u32 s22, s22, s23")
            a("v_mov_b32 v4, s22")
            a(f"buffer_store_dword v4, off, s[56:59], 0 offset:52")
        open(out + ".stamps", "w").write("\n".join(STN))
        assert len(STN) <= 32
    a.lab("L_end")
    a("s_endpgm")
    K = NAME + "_kernel"
    txt = "\n".join(hdr) + "\n; @launch grid=(256,1,1) block=(512,1,1) lds=163840\n"
    txt += f'.amdgcn_target "amdgcn-amd-amdhsa--gfx950"\n.text\n.globl {K}\n.p2align 8\n.type {K},@function\n{K}:\n'
    txt += a.text() + slow.text() + "CODE_END:\n"
    txt += f""".section .rodata,"a"
.p2align 6
.amdhsa_kernel {K}
  .amdhsa_next_free_vgpr 256
  .amdhsa_next_free_sgpr 102
  .amdhsa_accum_offset 256
  .amdhsa_group_segment_fixed_size 0
  .amdhsa_kernarg_size 88
  .amdhsa_user_sgpr_count 2
  .amdhsa_user_sgpr_kernarg_segment_ptr 1
  .amdhsa_system_sgpr_workgroup_id_x 1
  .amdhsa_float_denorm_mode_32 3
.end_amdhsa_kernel
"""
    open(out, "w").write(txt)

if __name__ == "__main__":
    if "stamps" in sys.argv: STAMPS = True
    if "nolocal" in sys.argv: NOLOCAL = True
    for x in sys.argv[2:]:
        if "=" in x:
            k, v = x.split("="); globals()[k] = int(v)
    main(sys.argv[1])
```
